```python
import torch

def _softmax(x, axis=-1):
    return torch.softmax(x, dim=axis)
def _gelu(x):
    return torch.nn.functional.gelu(x, approximate="tanh")
def _silu(x):
    return torch.nn.functional.silu(x)
def _sigmoid(x):
    return torch.sigmoid(x)
def _layernorm(x, axis=-1, eps=1e-5):
    m = x.mean(dim=axis, keepdim=True)
    v = x.var(dim=axis, keepdim=True, unbiased=False)
    return (x - m) / torch.sqrt(v + eps)
def _scatter_add(tgt, idx, src, axis=0):
    return tgt.clone().index_add_(axis, idx, src)
def _segment_sum(src, seg, n):
    out = torch.zeros((n,) + src.shape[1:], dtype=src.dtype)
    return out.index_add_(0, seg, src)
def _pad(x, pw):
    flat = tuple(v for pair in reversed(pw) for v in pair)
    return torch.nn.functional.pad(x, flat)

kernel_name = 'parallel_sum__spectral_gfnet__mixer_token_mlp__prompt'

def setup_inputs():

    _w = (lambda a: (lambda t: t.to(torch.bfloat16) if t.is_floating_point() else t)(torch.as_tensor(a)))
    def _A_setup():
        B, S, D = 1, 2048, 512
        Df = D // 2 + 1
        return {
            "x": _w((lambda *s: torch.randn(*s, dtype=torch.bfloat16) * 0.05)(B, S, D)),
            "w_r": _w((lambda *s: torch.randn(*s, dtype=torch.bfloat16) * 0.2)(S, Df) * 0.02),
            "w_i": _w((lambda *s: torch.randn(*s, dtype=torch.bfloat16) * 0.2)(S, Df) * 0.02),
        }
    _A_in = _A_setup()

    def _B_setup():
        B, S, D, F = 1, 2048, 512, 1792
        return {
            "x": _w((lambda *s: torch.randn(*s, dtype=torch.bfloat16) * 0.05)(B, S, D)),
            "w1": _w((lambda *s: torch.randn(*s, dtype=torch.bfloat16) * 0.4)(S, F) * (S ** -0.5)),
            "b1": _w((lambda *s: torch.randn(*s, dtype=torch.bfloat16) * 3.2)(F) * 0.02),
            "w2": _w((lambda *s: torch.randn(*s, dtype=torch.bfloat16) * 0.1)(F, S) * (F ** -0.5)),
            "b2": _w((lambda *s: torch.randn(*s, dtype=torch.bfloat16) * 0.4)(S) * 0.02),
        }
    _B_in = _B_setup()

    return {
        "A_x": _A_in["x"],
        "A_w_r": _A_in["w_r"],
        "A_w_i": _A_in["w_i"],
        "B_x": _B_in["x"],
        "B_w1": _B_in["w1"],
        "B_b1": _B_in["b1"],
        "B_w2": _B_in["w2"],
        "B_b2": _B_in["b2"],
    }

def reference(A_x, A_w_r, A_w_i, B_x, B_w1, B_b1, B_w2, B_b2):
    def _A_ref(x, w_r, w_i):
        B, S, D = x.shape
        X = (lambda x, axes=(-2,-1): torch.fft.rfft2(x.float(), dim=axes))(x, axes=(-2, -1))
        W = w_r + 1j * w_i
        X = X * W
        y = (lambda x, s, axes=(-2,-1): torch.fft.irfft2(x, s=s, dim=axes).to(torch.bfloat16))(X, (S, D), axes=(-2, -1))
        return y

    def _B_ref(x, w1, b1, w2, b2):
        B, S, D = x.shape
        h = _layernorm(x, axis=-1)
        u = torch.einsum("bsd,sf->bdf", h, w1) + b1
        u = _gelu(u)
        y = torch.einsum("bdf,fs->bds", u, w2) + b2
        return (lambda x, *d: x.permute(*d))(y, 0, 2, 1)

    x = A_x
    xn = _layernorm(x, axis=-1)
    return x + _A_ref(xn, A_w_r, A_w_i) + _B_ref(xn, B_w1, B_b1, B_w2, B_b2)
```

```python
from asmlib import *

class G:
    SRD_P = 4; SRD_Q = 8; SOFF_P = 12; SOFF_Q = 13; RING = 14; TRIP = 15
    T0 = 16
    V_LANE = 1; V_P0 = 2; V_P1 = 3; V_Q0 = 4; V_Q1 = 5; V_RA0 = 6; V_RA1 = 7; V_RB0 = 8; V_RB1 = 9
    FR = 12
    V_TMP = 44
    ACC_KIND = 'a'; ACC0 = 0

def acc(i, n=1):
    b = G.ACC0 + i
    return f'{G.ACC_KIND}{b}' if n == 1 else f'{G.ACC_KIND}[{b}:{b+n-1}]'
def acc_mov(a, vdst, i):
    a(f'v_accvgpr_read_b32 v{vdst}, {acc(i)}' if G.ACC_KIND == 'a' else f'v_mov_b32 v{vdst}, {acc(i)}')

def gemm_setup(a, strideP, strideQ, s_colP, s_colQ, s_wave, R):
    L, T = G.V_LANE, G.V_TMP
    a(f'v_and_b32 v{L}, 63, v0')
    a(f'v_lshrrev_b32 v{T}, 3, v{L}')
    a(f'v_and_b32 v{T+1}, 7, v{L}')
    a(f'v_lshlrev_b32 v{T+2}, 1, v{T}')
    a(f'v_and_b32 v{T+2}, 4, v{T+2}')
    a(f'v_xor_b32 v{T+1}, v{T+1}, v{T+2}')
    a(f'v_lshlrev_b32 v{T+1}, 4, v{T+1}')
    a(f's_mov_b32 s{G.T0}, {strideP}')
    a(f'v_mad_u32_u24 v{G.V_P0}, v{T}, s{G.T0}, v{T+1}')
    a(f'v_add_u32 v{G.V_P0}, s{s_colP}, v{G.V_P0}')
    a(f'v_add_u32 v{G.V_P1}, {8*strideP-1024}, v{G.V_P0}')
    a(f's_mov_b32 s{G.T0}, {strideQ}')
    a(f'v_mad_u32_u24 v{G.V_Q0}, v{T}, s{G.T0}, v{T+1}')
    a(f'v_add_u32 v{G.V_Q0}, s{s_colQ}, v{G.V_Q0}')
    a(f'v_add_u32 v{G.V_Q1}, {8*strideQ-1024}, v{G.V_Q0}')
    a(f's_mul_i32 s{G.RING}, s{s_wave}, {R*4096}')
    a(f'v_lshrrev_b32 v{T}, 5, v{L}')
    a(f'v_lshlrev_b32 v{T}, 3, v{T}')
    a(f'v_bfe_u32 v{T+1}, v{L}, 2, 2')
    a(f'v_add_u32 v{T}, v{T}, v{T+1}')
    a(f'v_lshlrev_b32 v{T}, 7, v{T}')
    a(f'v_bfe_u32 v{T+2}, v{L}, 4, 1')
    a(f'v_lshlrev_b32 v{T+2}, 5, v{T+2}')
    a(f'v_and_b32 v{T+3}, 3, v{L}')
    a(f'v_lshl_add_u32 v{T+2}, v{T+3}, 3, v{T+2}')
    a(f'v_lshlrev_b32 v{T+1}, 5, v{T+1}')
    a(f'v_and_b32 v{T+1}, 64, v{T+1}')
    a(f'v_or_b32 v{T+2}, v{T+2}, v{T+1}')
    a(f'v_add3_u32 v{T}, v{T}, v{T+2}, s{G.RING}')
    a(f's_lshl_b32 s{G.T0}, s{s_wave}, 6')
    a(f's_and_b32 s{G.T0}, s{G.T0}, 64')
    a(f'v_xor_b32 v{G.V_RA0}, s{G.T0}, v{T}')
    a(f'v_xor_b32 v{G.V_RA1}, 64, v{G.V_RA0}')
    a(f's_lshl_b32 s{G.T0}, s{s_wave}, 5')
    a(f's_and_b32 s{G.T0}, s{G.T0}, 64')
    a(f'v_xor_b32 v{G.V_RB0}, s{G.T0}, v{T}')
    a(f'v_xor_b32 v{G.V_RB1}, 64, v{G.V_RB0}')
    a(f's_mul_i32 s{G.SOFF_P}, s{s_wave}, {16*strideP}')
    a(f's_mul_i32 s{G.SOFF_Q}, s{s_wave}, {16*strideQ}')

def dma_issue(a, slot, strideP, strideQ, mods=''):
    a(f's_add_u32 m0, s{G.RING}, {slot*4096}')
    a('s_nop 0')
    a(f'buffer_load_dwordx4 v{G.V_P0}, s[{G.SRD_P}:{G.SRD_P+3}], s{G.SOFF_P} offen {mods}lds')
    a(f'buffer_load_dwordx4 v{G.V_P1}, s[{G.SRD_P}:{G.SRD_P+3}], s{G.SOFF_P} offen offset:1024 {mods}lds')
    a(f's_add_u32 m0, s{G.RING}, {slot*4096+2048}')
    a(f's_add_u32 s{G.SOFF_P}, s{G.SOFF_P}, {64*strideP}')
    a(f'buffer_load_dwordx4 v{G.V_Q0}, s[{G.SRD_Q}:{G.SRD_Q+3}], s{G.SOFF_Q} offen {mods}lds')
    a(f'buffer_load_dwordx4 v{G.V_Q1}, s[{G.SRD_Q}:{G.SRD_Q+3}], s{G.SOFF_Q} offen offset:1024 {mods}lds')
    a(f's_add_u32 s{G.SOFF_Q}, s{G.SOFF_Q}, {64*strideQ}')

def frag_reads(a, slot, fset):
    f = G.FR + 16 * fset
    o = slot * 4096
    for side in range(2):
        for t in range(2):
            ra = (G.V_RA0, G.V_RA1, G.V_RB0, G.V_RB1)[side * 2 + t]
            for q in range(2):
                r = f + side * 8 + t * 4 + q * 2
                a(f'ds_read_b64_tr_b16 v[{r}:{r+1}], v{ra} offset:{o + side*2048 + q*512}')

def mfmas(a, fset, first=False):
    f = G.FR + 16 * fset
    out = []
    for nt in range(2):
        for mt in range(2):
            i0 = (nt * 2 + mt) * 16
            c = '0' if first else acc(i0, 16)
            out.append(f'v_mfma_f32_32x32x16_bf16 {acc(i0, 16)}, v[{f+mt*4}:{f+mt*4+3}], v[{f+8+nt*4}:{f+8+nt*4+3}], {c}')
    return out

def gemm_loop(a, U, R, strideP, strideQ, switch=None, mods=''):
    assert U % R == 0
    trips = U // R
    for i in range(64):
        a(f'v_accvgpr_write_b32 {acc(i)}, 0' if G.ACC_KIND == 'a' else f'v_mov_b32 {acc(i)}, 0')
    for s in range(R):
        if switch and switch[0] == s:
            for l in switch[1]: a(l)
        dma_issue(a, s, strideP, strideQ, mods)
    a(f's_waitcnt vmcnt({(R-1)*4})')
    frag_reads(a, 0, 0)
    a(f's_mov_b32 s{G.TRIP}, 0')
    loop = a.label('kloop')
    unroll = R if R % 2 == 0 else 2 * R
    assert U % unroll == 0, 'odd R needs U % (2R) == 0'
    a(f'{loop}:')
    for t in range(unroll):
        slot = t % R; fs = t % 2
        m = mfmas(a, fs)
        a('s_waitcnt lgkmcnt(0)')
        a(m[0])
        if switch and switch[0] >= R and (switch[0] - R) % unroll == t:
            a(f's_cmp_eq_u32 s{G.TRIP}, {(switch[0]-R)//unroll}')
            for l in switch[2]: a(l)
        dma_issue(a, slot, strideP, strideQ, mods)
        a(m[1])
        a(f's_waitcnt vmcnt({(R-1)*4})')
        frag_reads(a, (slot + 1) % R, 1 - fs)
        a(m[2]); a(m[3])
    a(f's_add_u32 s{G.TRIP}, s{G.TRIP}, 1')
    a(f's_cmp_lt_u32 s{G.TRIP}, {U//unroll}')
    a(f's_cbranch_scc1 {loop}')
    a('s_waitcnt vmcnt(0) lgkmcnt(0)')

def gemm_reduce(a, s_wave, vdst, R):
    L, T = G.V_LANE, G.V_TMP
    a(f'v_lshlrev_b32 v{T}, 4, v{L}')
    a(f'v_add_u32 v{T+1}, s{G.RING}, v{T}')
    for t in range(1, 4):
        a(f's_xor_b32 s{G.T0}, s{s_wave}, {t}')
        a(f's_mul_i32 s{G.T0}, s{G.T0}, {R*4096}')
        a(f'v_add_u32 v{T+1+t}, s{G.T0}, v{T}')
    a('s_nop 7'); a('s_nop 3')
    for t in range(1, 4):
        for i in range(4):
            a(f'ds_write_b128 v{T+1}, {acc(t*16+i*4, 4)} offset:{t*4096+i*1024}')
    for i in range(16):
        acc_mov(a, vdst+i, i)
    a('s_waitcnt lgkmcnt(0)')
    a('s_barrier')
    f = G.FR
    for t in range(1, 4):
        for i in range(4):
            if t < 3:
                a(f'ds_read_b128 v[{f+(t-1)*16+i*4}:{f+(t-1)*16+i*4+3}], v{T+1+t} offset:{t*4096+i*1024}')
            else:
                a(f'ds_read_b128 {acc(16+i*4, 4)}, v{T+1+t} offset:{t*4096+i*1024}')
    a('s_waitcnt lgkmcnt(8)')
    for i in range(16):
        a(f'v_add_f32 v{vdst+i}, v{vdst+i}, v{f+i}')
    a('s_waitcnt lgkmcnt(4)')
    for i in range(16):
        a(f'v_add_f32 v{vdst+i}, v{vdst+i}, v{f+16+i}')
    a('s_waitcnt lgkmcnt(0)')
    for i in range(16):
        acc_mov(a, f+i, 16+i)
    for i in range(16):
        a(f'v_add_f32 v{vdst+i}, v{vdst+i}, v{f+i}')
```

```python
from asmlib import *
from layout import *
from k3 import stamp
import tables as tb

N_LN, N_WP, N_FI, N_AB = 256, 128, 128, 8

def row_sum(a, v, t):
    for n in (8, 4, 2, 1):
        a('s_nop 1')
        a(f'v_add_f32_dpp v{v}, v{v}, v{v} row_ror:{n} row_mask:0xf bank_mask:0xf')
    a(f'v_mov_b32 v{t}, v{v}')
    a('s_nop 1')
    a(f'v_permlane32_swap_b32 v{v}, v{t}')
    a('s_nop 0')
    a(f'v_add_f32 v{v}, v{v}, v{t}')

def rbf(a, d, s):
    a(f'v_cvt_pk_bf16_f32 v{d}, v{s}, v{s}')
    a(f'v_lshlrev_b32 v{d}, 16, v{d}')

def layernorm(a, X, P, T, unpack):
    t0, t1, t2, t3 = T, T + 1, T + 2, T + 3
    a(f'v_add_f32 v{t0}, v{X}, v{X+1}'); a(f'v_add_f32 v{t1}, v{X+2}, v{X+3}')
    for i in range(4, 16, 2):
        a(f'v_add_f32 v{t0}, v{t0}, v{X+i}'); a(f'v_add_f32 v{t1}, v{t1}, v{X+i+1}')
    a(f'v_add_f32 v{t0}, v{t0}, v{t1}')
    row_sum(a, t0, t1)
    a(f'v_mul_f32 v{t0}, 0x3b000000, v{t0}')
    rbf(a, t2, t0)
    a(f'v_sub_f32 v{t3}, v{t0}, v{t2}')
    for i in range(16):
        a(f'v_sub_f32 v{X+i}, v{X+i}, v{t2}')
    a(f'v_mul_f32 v{t0}, v{X}, v{X}'); a(f'v_mul_f32 v{t1}, v{X+1}, v{X+1}')
    for i in range(2, 16, 2):
        a(f'v_fmac_f32 v{t0}, v{X+i}, v{X+i}'); a(f'v_fmac_f32 v{t1}, v{X+i+1}, v{X+i+1}')
    a(f'v_add_f32 v{t0}, v{t0}, v{t1}')
    row_sum(a, t0, t1)
    a(f'v_mul_f32 v{t0}, 0x3b000000, v{t0}')
    a(f'v_fma_f32 v{t0}, -v{t3}, v{t3}, v{t0}')
    a(f'v_max_f32 v{t0}, 0, v{t0}')
    rbf(a, t0, t0)
    a(f'v_add_f32 v{t0}, 0x3727c5ac, v{t0}')
    rbf(a, t0, t0)
    a(f'v_sqrt_f32 v{t0}, v{t0}')
    a('s_nop 0')
    rbf(a, t0, t0)
    a(f'v_rcp_f32 v{t0}, v{t0}')
    for q in range(8):
        a(f'v_cvt_pk_bf16_f32 v{P+q}, v{X+2*q}, v{X+2*q+1}')
    for q in range(8):
        a(f'v_lshlrev_b32 v{X+2*q}, 16, v{P+q}')
        a(f'v_and_b32 v{X+2*q+1}, 0xffff0000, v{P+q}')
    for i in range(16):
        a(f'v_mul_f32 v{X+i}, v{X+i}, v{t0}')
    for q in range(8):
        a(f'v_cvt_pk_bf16_f32 v{P+q}, v{X+2*q}, v{X+2*q+1}')
    if unpack:
        for q in range(8):
            a(f'v_lshlrev_b32 v{X+2*q}, 16, v{P+q}')
            a(f'v_and_b32 v{X+2*q+1}, 0xffff0000, v{P+q}')

def srd(a, s, base, off, size):
    if off:
        a(f's_add_u32 s{s}, s{base}, {off}'); a(f's_addc_u32 s{s+1}, s{base+1}, 0')
    else:
        a(f's_mov_b32 s{s}, s{base}'); a(f's_mov_b32 s{s+1}, s{base+1}')
    a(f's_mov_b32 s{s+2}, {size}'); a(f's_mov_b32 s{s+3}, 0x20000')

def table_base(a, s, label):
    l = a.label('pc')
    a(f's_getpc_b64 s[{s}:{s+1}]')
    a(f'{l}:')
    a(f's_add_u32 s{s}, s{s}, {label}-{l}')
    a(f's_addc_u32 s{s+1}, s{s+1}, 0')

def table_load(a, s, voff, dsts, g0=0):
    cur = 0
    for n, dst in enumerate(dsts):
        g = g0 + n
        while g * 1024 - cur > 4095 - 1024 + 1024 - 1 and g * 1024 - cur >= 4096:
            a(f'v_add_u32 v{voff}, 4096, v{voff}'); cur += 4096
        a(f'global_load_dwordx4 {dst}, v{voff}, s[{s}:{s+1}] offset:{g*1024-cur}')
    return cur

def ln_role(a, stamps):
    S_X, S_WS, S_WAVE, S_TAB = 4, 6, 8, 10
    SRD_X, SRD_H, SRD_Z = 12, 16, 20
    L, VO, VT = 1, 2, 3
    X, XA = 8, 24
    C32, NS32, TC, TS, A2R, A2I = 32, 40, 48, 56, 64, 68
    D1R, D1I = 72, 88
    BR, BI = 104, 112
    T = 120
    a(f'v_and_b32 v{L}, 63, v0')
    a(f'v_lshrrev_b32 v{T}, 6, v0')
    a(f's_load_dwordx2 s[{S_X}:{S_X+1}], s[0:1], 0')
    a(f's_load_dwordx2 s[{S_WS}:{S_WS+1}], s[0:1], 80')
    a(f'v_readfirstlane_b32 s{S_WAVE}, v{T}')
    table_base(a, S_TAB, 'tab_k1')
    for i in range(16):
        a(f'v_mov_b32 v{X+i}, 0')
    a(f's_lshl_b32 s9, s2, 2'); a(f's_add_u32 s9, s9, s{S_WAVE}')
    a(f'v_bfe_u32 v{T}, v{L}, 4, 1')
    a(f'v_lshlrev_b32 v{T}, 10, v{T}')
    a(f'v_add_u32 v{T}, s9, v{T}')
    a(f'v_lshlrev_b32 v{T}, 10, v{T}')
    a(f'v_and_b32 v{T+1}, 15, v{L}')
    a(f'v_lshl_add_u32 v{T}, v{T+1}, 1, v{T}')
    a(f'v_lshrrev_b32 v{T+1}, 5, v{L}')
    a(f'v_lshl_add_u32 v{VO}, v{T+1}, 7, v{T}')
    a(f'v_lshlrev_b32 v{VT}, 4, v{L}')
    a('s_waitcnt lgkmcnt(0)')
    if stamps: stamp(a, stamps[0], 0, stamps[1], stamps[2], S_WS, 2, T, 24)
    srd(a, SRD_X, S_X, 0, 2048 * 1024)
    for b in range(2):
        for jj in range(8):
            a(f'buffer_load_short_d16_hi v{X+8*b+jj}, v{VO}, s[{SRD_X}:{SRD_X+3}], 0 offen offset:{512*b+256*(jj//4)+32*(jj%4)}')
    dst = [f'v[{r}:{r+3}]' for r in range(C32, C32 + 40, 4)]
    table_load(a, S_TAB, VT, dst)
    srd(a, SRD_H, S_WS, WS_H, 2048 * 1024)
    srd(a, SRD_Z, S_WS, WS_ZB, 2 * 32 * 256 * 128)
    a(f'v_cvt_f32_u32 v{T+4}, s9')
    a(f'v_mul_f32 v{T+4}, 0x3a000000, v{T+4}')
    a(f'v_cos_f32 v{T+5}, v{T+4}')
    a(f'v_sin_f32 v{T+6}, v{T+4}')
    a('s_waitcnt vmcnt(10)')
    layernorm(a, X, XA, T, True)
    HP = XA
    a('s_waitcnt vmcnt(0)')
    for b in range(2):
        c = '0' if b == 0 else f'v[{D1R}:{D1R+15}]'
        a(f'v_mfma_f32_32x32x16_bf16 v[{D1R}:{D1R+15}], v[{XA+4*b}:{XA+4*b+3}], v[{C32+4*b}:{C32+4*b+3}], {c}')
        c = '0' if b == 0 else f'v[{D1I}:{D1I+15}]'
        a(f'v_mfma_f32_32x32x16_bf16 v[{D1I}:{D1I+15}], v[{XA+4*b}:{XA+4*b+3}], v[{NS32+4*b}:{NS32+4*b+3}], {c}')
    layernorm(a, X, HP, T, False)
    for q in range(8):
        b, jq = q // 4, q % 4
        for e in range(2):
            jj = 2 * jq + e
            op = 'buffer_store_short_d16_hi' if e else 'buffer_store_short'
            a(f'{op} v{HP+q}, v{VO}, s[{SRD_H}:{SRD_H+3}], 0 offen offset:{512*b+256*(jj//4)+32*(jj%4)}')
    for i in range(4):
        for j in range(4):
            r_, i_ = D1R + 4*i + j, D1I + 4*i + j
            tc, ts = TC + 4*(i % 2) + j, TS + 4*(i % 2) + j
            a(f'v_mul_f32 v{X+j}, v{r_}, v{tc}')
            a(f'v_fmac_f32 v{X+j}, v{i_}, v{ts}')
            a(f'v_mul_f32 v{X+4+j}, v{i_}, v{tc}')
            a(f'v_fma_f32 v{X+4+j}, -v{r_}, v{ts}, v{X+4+j}')
        a(f'v_cvt_pk_bf16_f32 v{BR+2*i}, v{X}, v{X+1}');   a(f'v_cvt_pk_bf16_f32 v{BR+2*i+1}, v{X+2}, v{X+3}')
        a(f'v_cvt_pk_bf16_f32 v{BI+2*i}, v{X+4}, v{X+5}'); a(f'v_cvt_pk_bf16_f32 v{BI+2*i+1}, v{X+6}, v{X+7}')
    a('s_nop 1')
    D2 = (D1R, D1I)
    for r in range(2):
        a(f'v_mfma_f32_32x32x16_bf16 v[{D2[r]}:{D2[r]+15}], v[{A2R}:{A2R+3}], v[{BR+4*r}:{BR+4*r+3}], 0')
    for r in range(2):
        a(f'v_mfma_f32_32x32x16_bf16 v[{D2[r]}:{D2[r]+15}], v[{A2I}:{A2I+3}], v[{BI+4*r}:{BI+4*r+3}], v[{D2[r]}:{D2[r]+15}]')
    a(f'v_lshlrev_b32 v{VT}, 4, v{L}')
    a(f's_lshl_b32 s9, s{S_WAVE}, 12')
    a(f'v_add_u32 v{VT}, s9, v{VT}')
    a('s_nop 7'); a('s_nop 7')
    a('s_mov_b64 exec, 1')
    a(f'v_mov_b32 v{D2[0]+1}, v{D2[0]+8}')
    a(f'v_mov_b32 v{D2[1]+1}, v{D2[1]+8}')
    a('s_mov_b64 exec, -1')
    Z0, DF, Z1 = X, X + 8, XA
    for i in range(8):
        a(f'v_add_f32 v{Z0+i}, v{D2[0]+i}, v{D2[1]+i}')
        a(f'v_sub_f32 v{DF+i}, v{D2[0]+i}, v{D2[1]+i}')
    for i in range(0, 8, 2):
        a(f'v_mul_f32 v{Z1+i}, v{DF+i}, v{T+5}')
        a(f'v_fmac_f32 v{Z1+i}, v{DF+i+1}, v{T+6}')
        a(f'v_mul_f32 v{Z1+i+1}, v{DF+i+1}, v{T+5}')
        a(f'v_fma_f32 v{Z1+i+1}, -v{DF+i}, v{T+6}, v{Z1+i+1}')
    for ip in range(2):
        a(f'ds_write_b128 v{VT}, v[{Z0+4*ip}:{Z0+4*ip+3}] offset:{ip*1024}')
        a(f'ds_write_b128 v{VT}, v[{Z1+4*ip}:{Z1+4*ip+3}] offset:{2048+ip*1024}')
    a(f'v_and_b32 v{T}, 31, v0')
    a(f'v_lshrrev_b32 v{T+1}, 5, v0')
    a(f'v_lshrrev_b32 v{T+2}, 2, v{T+1}')
    a(f'v_lshlrev_b32 v{T+2}, 10, v{T+2}')
    a(f'v_bfe_u32 v{T+3}, v{T+1}, 1, 1')
    a(f'v_lshl_add_u32 v{T}, v{T+3}, 5, v{T}')
    a(f'v_lshl_add_u32 v{T}, v{T}, 4, v{T+2}')
    a(f'v_and_b32 v{T+1}, 1, v{T+1}')
    a(f'v_lshl_add_u32 v{T}, v{T+1}, 3, v{T}')
    a(f'v_lshrrev_b32 v{T+1}, 3, v0')
    a(f'v_lshlrev_b32 v{T+1}, 15, v{T+1}')
    a(f'v_and_b32 v{T+2}, 7, v0')
    a(f'v_lshl_add_u32 v{T+1}, v{T+2}, 4, v{T+1}')
    a(f's_lshl_b32 s9, s2, 7')
    a(f'v_add_u32 v{T+1}, s9, v{T+1}')
    a('s_waitcnt lgkmcnt(0)')
    a('s_barrier')
    G0 = 32
    for par in range(2):
        for w in range(4):
            a(f'ds_read_b64 v[{G0+16*par+2*w}:{G0+16*par+2*w+1}], v{T} offset:{w*4096+par*2048}')
    for par in range(2):
        g = G0 + 16 * par; o = g + 8
        a(f's_waitcnt lgkmcnt({4*(1-par)})')
        a(f'v_cvt_pk_bf16_f32 v{o}, v{g}, v{g+2}');     a(f'v_cvt_pk_bf16_f32 v{o+1}, v{g+4}, v{g+6}')
        a(f'v_cvt_pk_bf16_f32 v{o+2}, v{g+1}, v{g+3}'); a(f'v_cvt_pk_bf16_f32 v{o+3}, v{g+5}, v{g+7}')
        if par == 0:
            a(f'buffer_store_dwordx4 v[{o}:{o+3}], v{T+1}, s[{SRD_Z}:{SRD_Z+3}], 0 offen')
        else:
            a(f'v_add_u32 v{T+2}, {32*256*128}, v{T+1}')
            a(f'buffer_store_dwordx4 v[{o}:{o+3}], v{T+2}, s[{SRD_Z}:{SRD_Z+3}], 0 offen')
    if stamps:
        a('s_waitcnt vmcnt(0)')
        stamp(a, stamps[0], 1, stamps[1], stamps[2], S_WS, 2, T, 24)
    a('s_endpgm')

def wp_role(a, first):
    S_WR, S_WI, S_WS = 4, 6, 8
    SR, SI, SO = 12, 16, 20
    a(f's_load_dwordx2 s[{S_WR}:{S_WR+1}], s[0:1], 8')
    a(f's_load_dwordx2 s[{S_WI}:{S_WI+1}], s[0:1], 16')
    a(f's_load_dwordx2 s[{S_WS}:{S_WS+1}], s[0:1], 80')
    a('v_lshrrev_b32 v2, 6, v0'); a('v_and_b32 v1, 63, v0')
    a('v_readfirstlane_b32 s10, v2')
    a(f's_sub_u32 s11, s2, {first}'); a('s_lshl_b32 s11, s11, 2'); a('s_add_u32 s11, s11, s10')
    a('s_and_b32 s24, s11, 63'); a('s_lshr_b32 s25, s11, 6')
    a('s_lshl_b32 s26, s25, 8'); a('s_add_u32 s26, s26, s24')
    a('s_mul_i32 s26, s26, 514')
    a('v_lshlrev_b32 v2, 3, v1'); a('v_add_u32 v2, s26, v2')
    a('s_and_b32 s27, s11, 1'); a('s_lshl_b32 s27, s27, 8'); a('s_lshl_b32 s28, s25, 5'); a('s_add_u32 s27, s27, s28')
    a('s_lshr_b32 s28, s24, 1'); a('s_add_u32 s27, s27, s28'); a('s_lshl_b32 s27, s27, 7')
    a('v_lshrrev_b32 v3, 1, v1'); a('v_lshlrev_b32 v3, 16, v3'); a('v_and_b32 v4, 1, v1'); a('v_lshl_add_u32 v3, v4, 6, v3')
    a('v_add_u32 v3, s27, v3')
    a('s_waitcnt lgkmcnt(0)')
    srd(a, SR, S_WR, 0, 2048 * 514); srd(a, SI, S_WI, 0, 2048 * 514); srd(a, SO, S_WS, WS_WP, 32 * 512 * 128)
    for j in range(4):
        a(f's_mov_b32 s28, {j*64*514}')
        a(f'buffer_load_dwordx2 v[{8+2*j}:{9+2*j}], v2, s[{SR}:{SR+3}], s28 offen')
        a(f'buffer_load_dwordx2 v[{16+2*j}:{17+2*j}], v2, s[{SI}:{SI+3}], s28 offen')
    a('s_mov_b32 s29, 0x05040100'); a('s_mov_b32 s30, 0x07060302')
    a('s_waitcnt vmcnt(0)')
    for e in range(4):
        for j in range(4):
            a(f'v_perm_b32 v{24+4*e+j}, v{16+2*j+e//2}, v{8+2*j+e//2}, s{30 if e%2 else 29}')
    for e in range(4):
        a(f'buffer_store_dwordx4 v[{24+4*e}:{27+4*e}], v3, s[{SO}:{SO+3}], 0 offen offset:{16*e}')
    a('s_endpgm')

def finv_role(a, first):
    S_WS, SO = 4, 8
    a(f's_load_dwordx2 s[{S_WS}:{S_WS+1}], s[0:1], 80')
    a(f's_sub_u32 s6, s2, {first}'); a('s_lshl_b32 s6, s6, 8')
    a('v_add_u32 v1, s6, v0')
    a('v_lshrrev_b32 v2, 6, v1')
    a('v_and_b32 v3, 63, v1'); a('v_lshlrev_b32 v3, 3, v3')
    a('v_lshrrev_b32 v4, 1, v2')
    a('v_and_b32 v5, 1, v2')
    a('v_cmp_eq_u32 vcc, 1, v2')
    a('v_lshlrev_b32 v6, 7, v5')
    a('v_mov_b32 v7, 0x100')
    a('v_cndmask_b32 v4, v4, v7, vcc')
    a('v_cndmask_b32 v6, v6, 0, vcc') if False else a('v_mov_b32 v7, 0')
    a('v_cndmask_b32 v6, v6, v7, vcc')
    a('v_cmp_gt_u32 vcc, 2, v2')
    a(f'v_mov_b32 v7, 0x36000000')
    a(f'v_mov_b32 v8, 0x35800000')
    a('v_cndmask_b32 v7, v7, v8, vcc')
    a('v_mad_u32_u24 v6, v4, v3, v6')
    for e in range(8):
        a(f'v_and_b32 v{10+e}, 511, v6')
        a(f'v_cvt_f32_u32 v{10+e}, v{10+e}')
        a(f'v_mul_f32 v{10+e}, 0x3b000000, v{10+e}')
        a(f'v_cos_f32 v{10+e}, v{10+e}')
        a('v_add_u32 v6, v6, v4')
        a(f'v_mul_f32 v{10+e}, v{10+e}, v7')
    for q in range(4):
        a(f'v_cvt_pk_bf16_f32 v{20+q}, v{10+2*q}, v{11+2*q}')
    a('v_lshlrev_b32 v1, 4, v1')
    a('s_waitcnt lgkmcnt(0)')
    srd(a, SO, S_WS, WS_FINV, 512 * 1024)
    a(f'buffer_store_dwordx4 v[20:23], v1, s[{SO}:{SO+3}], 0 offen')
    a('s_endpgm')

def ab_role(a, first):
    S_WR, S_WI, S_WS = 4, 6, 8
    SR, SI, SO = 12, 16, 20
    a(f's_load_dwordx2 s[{S_WR}:{S_WR+1}], s[0:1], 8')
    a(f's_load_dwordx2 s[{S_WI}:{S_WI+1}], s[0:1], 16')
    a(f's_load_dwordx2 s[{S_WS}:{S_WS+1}], s[0:1], 80')
    a(f's_sub_u32 s10, s2, {first}'); a('s_lshl_b32 s10, s10, 8')
    a('v_add_u32 v1, s10, v0')
    a('v_sub_u32 v2, 0x800, v1'); a('v_and_b32 v2, 0x7ff, v2')
    a('s_movk_i32 s11, 514')
    a('v_mul_lo_u32 v3, v1, s11'); a('v_mul_lo_u32 v4, v2, s11')
    a('s_waitcnt lgkmcnt(0)')
    srd(a, SR, S_WR, 0, 2048 * 514); srd(a, SI, S_WI, 0, 2048 * 514); srd(a, SO, S_WS, WS_AL, 0x4000)
    for n, (v, s, off) in enumerate([(3, SR, 0), (4, SR, 0), (3, SR, 512), (4, SR, 512), (3, SI, 0), (4, SI, 0), (3, SI, 512), (4, SI, 512)]):
        a(f'buffer_load_ushort v{8+n}, v{v}, s[{s}:{s+3}], 0 offen offset:{off}')
    a('v_and_b32 v5, 1, v1'); a('v_lshlrev_b32 v5, 8, v5')
    a('v_lshrrev_b32 v6, 8, v1'); a('v_lshl_add_u32 v5, v6, 5, v5')
    a('v_bfe_u32 v6, v1, 1, 5'); a('v_add_u32 v5, v5, v6')
    a('v_bfe_u32 v6, v1, 6, 2'); a('v_lshlrev_b32 v6, 2, v6'); a('v_lshl_add_u32 v5, v5, 4, v6')
    a('s_waitcnt vmcnt(0)')
    for n in range(8):
        a(f'v_lshlrev_b32 v{8+n}, 16, v{8+n}')
    a('v_add_f32 v16, v8, v9'); a('v_add_f32 v17, v10, v11')
    a('v_sub_f32 v18, v12, v13'); a('v_sub_f32 v19, v14, v15')
    a('v_add_f32 v20, v16, v17'); a('v_add_f32 v21, v18, v19'); a('v_sub_f32 v22, v16, v17'); a('v_sub_f32 v23, v18, v19')
    for n in range(4):
        a(f'v_mul_f32 v{20+n}, 0x3e800000, v{20+n}')
    a('v_cvt_pk_bf16_f32 v24, v20, v21'); a('v_cvt_pk_bf16_f32 v25, v22, v23')
    a(f'buffer_store_dword v24, v5, s[{SO}:{SO+3}], 0 offen')
    a(f'v_add_u32 v5, {WS_BE-WS_AL}, v5')
    a(f'buffer_store_dword v25, v5, s[{SO}:{SO+3}], 0 offen')
    a('s_endpgm')

K1_GRID = N_LN + N_WP + N_FI + N_AB
def k1(a, name, stamps=None):
    kernel_begin(a, name)
    lw, lf, lab, end = a.label('wp'), a.label('finv'), a.label('ab'), a.label('end')
    a(f's_cmp_ge_u32 s2, {N_LN}'); a(f's_cbranch_scc1 {lw}')
    ln_role(a, stamps)
    a(f'{lw}:')
    a(f's_cmp_ge_u32 s2, {N_LN+N_WP}'); a(f's_cbranch_scc1 {lf}')
    wp_role(a, N_LN)
    a(f'{lf}:')
    a(f's_cmp_ge_u32 s2, {N_LN+N_WP+N_FI}'); a(f's_cbranch_scc1 {lab}')
    finv_role(a, N_LN + N_WP)
    a(f'{lab}:')
    a(f's_cmp_ge_u32 s2, {K1_GRID}'); a(f's_cbranch_scc1 {end}')
    ab_role(a, N_LN + N_WP + N_FI)
    a(f'{end}:')
    a('s_endpgm')

def k1_tables(a):
    tb.emit(a, 'tab_k1', tb.f32mat('c') + tb.f32mat('ns') + tb.t512() + tb.a2())

if __name__ == '__main__':
    import sys
    name = 'k1_kernel'
    launches = [(name, (K1_GRID, 1, 1), (256, 1, 1), 16384)]
    a = Asm()
    a(HEADER + launch_lines(launches) + '.amdgcn_target "amdgcn-amd-amdhsa--gfx950"\n.text')
    k1(a, name, stamps=(0, 256, 4))
    k1_tables(a)
    a('.section .rodata,"a"\n.p2align 6')
    a(descriptor(name, 128))
    open(sys.argv[1], 'w').write(a.text())
    build(sys.argv[1], launches)
```

```python
from asmlib import *
from gemm import *
from layout import *
from k3 import stamp
from k1 import srd, table_base, table_load
import tables as tb

N_GEMM, N_FFT = 224, 32
K2_R = 8
K2_LDS = 131072 + 8448

def gemm1_role(a, stamps):
    R = K2_R
    G.ACC_KIND, G.ACC0 = 'v', 128
    S_H, S_W1, S_B1, S_WS = 24, 26, 28, 32
    S_WAVE, S_FT, S_DT, S_CP, S_CQ = 34, 35, 36, 37, 38
    done = a.label('g1_done')
    a('v_lshrrev_b32 v1, 6, v0')
    a(f's_load_dwordx2 s[{S_W1}:{S_W1+1}], s[0:1], 32')
    a(f's_load_dwordx2 s[{S_B1}:{S_B1+1}], s[0:1], 40')
    a(f's_load_dwordx2 s[{S_WS}:{S_WS+1}], s[0:1], 80')
    a(f'v_readfirstlane_b32 s{S_WAVE}, v1')
    a('s_nop 3')
    a(f's_cmp_ge_u32 s{S_WAVE}, 4')
    a(f's_cbranch_scc1 {done}')
    a('s_and_b32 s16, s2, 7'); a('s_lshr_b32 s17, s2, 3')
    a('s_and_b32 s18, s16, 1'); a('s_lshl_b32 s18, s18, 2'); a('s_and_b32 s19, s17, 3'); a(f's_add_u32 s{S_DT}, s18, s19')
    a('s_lshr_b32 s18, s16, 1'); a('s_mul_i32 s18, s18, 7'); a('s_lshr_b32 s19, s17, 2'); a(f's_add_u32 s{S_FT}, s18, s19')
    a(f's_lshl_b32 s{S_CP}, s{S_DT}, 7'); a(f's_lshl_b32 s{S_CQ}, s{S_FT}, 7')
    a('s_waitcnt lgkmcnt(0)')
    if stamps: stamp(a, stamps[0], 0, stamps[1], stamps[2], S_WS, 2, 44, 20)
    srd(a, G.SRD_P, S_WS, WS_H, 2048 * 1024)
    srd(a, G.SRD_Q, S_W1, 0, 2048 * 3584)
    gemm_setup(a, 1024, 3584, S_CP, S_CQ, S_WAVE, R)
    V_XO, V_B1 = 50, 60
    L, T = G.V_LANE, G.V_TMP
    a(f's_lshr_b32 s16, s{S_WAVE}, 1'); a('s_lshl_b32 s16, s16, 5')
    a(f's_lshl_b32 s17, s{S_FT}, 6'); a('s_add_u32 s16, s16, s17')
    a(f'v_and_b32 v{T}, 31, v{L}'); a(f'v_add_u32 v{T}, s16, v{T}')
    a(f'v_lshlrev_b32 v{T+1}, 1, v{T}')
    a(f'global_load_ushort v{V_B1}, v{T+1}, s[{S_B1}:{S_B1+1}]')
    a(f's_and_b32 s16, s{S_WAVE}, 1'); a('s_lshl_b32 s16, s16, 6'); a(f's_add_u32 s16, s16, s{S_CP}')
    a(f'v_lshrrev_b32 v{T+1}, 5, v{L}'); a(f'v_lshlrev_b32 v{T+1}, 4, v{T+1}')
    a(f'v_lshl_add_u32 v{V_XO}, v{T}, 10, v{T+1}'); a(f'v_add_u32 v{V_XO}, s16, v{V_XO}')
    gemm_loop(a, 32, R, 1024, 3584)
    if stamps: stamp(a, stamps[0], 1, stamps[1], stamps[2], S_WS, 2, 44, 20)
    VD = 64
    gemm_reduce(a, S_WAVE, VD, R)
    a(f'v_lshlrev_b32 v{V_B1}, 16, v{V_B1}')
    c0 = -2.0 * 0.7978845608028654 * 1.4426950408889634
    import struct
    fb = lambda x: '0x%08x' % struct.unpack('<I', struct.pack('<f', x))[0]
    a(f's_mov_b32 s16, {fb(c0)}'); a(f's_mov_b32 s17, {fb(c0 * 0.044715)}')
    a(f'v_mov_b32 v61, s16')
    for q in range(8):
        d0, d1 = VD + 2*q, VD + 2*q + 1
        a(f'v_cvt_pk_bf16_f32 v{T}, v{d0}, v{d1}')
        a(f'v_lshlrev_b32 v{d0}, 16, v{T}'); a(f'v_and_b32 v{d1}, 0xffff0000, v{T}')
        a(f'v_add_f32 v{d0}, v{d0}, v{V_B1}'); a(f'v_add_f32 v{d1}, v{d1}, v{V_B1}')
        a(f'v_cvt_pk_bf16_f32 v{T}, v{d0}, v{d1}')
        a(f'v_lshlrev_b32 v{d0}, 16, v{T}'); a(f'v_and_b32 v{d1}, 0xffff0000, v{T}')
        a(f'v_mul_f32 v{T+1}, v{d0}, v{d0}'); a(f'v_mul_f32 v{T+2}, v{d1}, v{d1}')
        a(f'v_fma_f32 v{T+1}, v{T+1}, s17, v61'); a(f'v_fma_f32 v{T+2}, v{T+2}, s17, v61')
        a(f'v_mul_f32 v{T+1}, v{T+1}, v{d0}'); a(f'v_mul_f32 v{T+2}, v{T+2}, v{d1}')
        a(f'v_exp_f32 v{T+1}, v{T+1}'); a(f'v_exp_f32 v{T+2}, v{T+2}')
        a('s_nop 0')
        a(f'v_add_f32 v{T+1}, 1.0, v{T+1}'); a(f'v_add_f32 v{T+2}, 1.0, v{T+2}')
        a(f'v_rcp_f32 v{T+1}, v{T+1}'); a(f'v_rcp_f32 v{T+2}, v{T+2}')
        a('s_nop 0')
        a(f'v_mul_f32 v{d0}, v{d0}, v{T+1}'); a(f'v_mul_f32 v{d1}, v{d1}, v{T+2}')
    a('s_nop 1')
    for p in range(2):
        for j in range(4):
            a(f'v_permlane32_swap_b32 v{VD+8*p+j}, v{VD+8*p+4+j}')
    O = 52
    for p in range(2):
        for jj in range(4):
            a(f'v_cvt_pk_bf16_f32 v{O+4*p+jj}, v{VD+8*p+2*jj}, v{VD+8*p+2*jj+1}')
    srd(a, 4, S_WS, WS_GT, 1792 * 1024)
    a(f'buffer_store_dwordx4 v[{O}:{O+3}], v{V_XO}, s[4:7], 0 offen')
    a(f'buffer_store_dwordx4 v[{O+4}:{O+7}], v{V_XO}, s[4:7], 0 offen offset:32')
    if stamps:
        a('s_waitcnt vmcnt(0)')
        stamp(a, stamps[0], 2, stamps[1], stamps[2], S_WS, 2, 44, 20)
    a(f'{done}:')
    a('s_endpgm')

LDS_Z, LDS_W, LDS_X = 0, 65536, 131072
class F:
    L = 1; VT = 2; RZ0 = 3; RZ1 = 4; RW = 5; VY = 6; T = 8
    C, S, NS = 24, 32, 40
    TC, TS = 48, 64
    UC, US = 80, 96
    AR, AI = 112, 120
    DR, DI = 128, 144
    ER, EI = 160, 176
    W = 192
    X2 = 208

def cplx_stage(a, form, conj):
    s_for_re = F.NS if conj else F.S
    s_for_im = F.S if conj else F.NS
    seq = []
    for b in range(2):
        seq += [(F.DR, F.AR + 4*b, F.C + 4*b), (F.DI, F.AI + 4*b, F.C + 4*b)]
    for b in range(2):
        seq += [(F.DR, F.AI + 4*b, s_for_re + 4*b), (F.DI, F.AR + 4*b, s_for_im + 4*b)]
    seen = set()
    for (d, x, c) in seq:
        cc = f'v[{d}:{d+15}]' if d in seen else '0'
        seen.add(d)
        if form == 'A':
            a(f'v_mfma_f32_32x32x16_bf16 v[{d}:{d+15}], v[{x}:{x+3}], v[{c}:{c+3}], {cc}')
        else:
            a(f'v_mfma_f32_32x32x16_bf16 v[{d}:{d+15}], v[{c}:{c+3}], v[{x}:{x+3}], {cc}')
    a('s_nop 7'); a('s_nop 3')

def cmul_pack(a, cr, ci, conj, unpack_w=False):
    T = F.T
    for i in range(4):
        for j in range(4):
            n = 4*i + j
            r_, i_ = F.DR + n, F.DI + n
            c, s = cr + n, ci + n
            a(f'v_mul_f32 v{T+j}, v{r_}, v{c}')
            a(f'v_mul_f32 v{T+4+j}, v{i_}, v{c}')
            if conj:
                a(f'v_fma_f32 v{T+j}, -v{i_}, v{s}, v{T+j}'); a(f'v_fmac_f32 v{T+4+j}, v{r_}, v{s}')
            else:
                a(f'v_fmac_f32 v{T+j}, v{i_}, v{s}'); a(f'v_fma_f32 v{T+4+j}, -v{r_}, v{s}, v{T+4+j}')
        a(f'v_cvt_pk_bf16_f32 v{F.AR+2*i}, v{T}, v{T+1}');     a(f'v_cvt_pk_bf16_f32 v{F.AR+2*i+1}, v{T+2}, v{T+3}')
        a(f'v_cvt_pk_bf16_f32 v{F.AI+2*i}, v{T+4}, v{T+5}');   a(f'v_cvt_pk_bf16_f32 v{F.AI+2*i+1}, v{T+6}, v{T+7}')
    a('s_nop 1')

def filter_generic(a):
    T = F.T
    for i in range(4):
        for j in range(4):
            n = 4*i + j
            r_, i_, w = F.DR + n, F.DI + n, F.W + n
            a(f'v_lshlrev_b32 v{T+8}, 16, v{w}'); a(f'v_and_b32 v{T+9}, 0xffff0000, v{w}')
            a(f'v_mul_f32 v{T+j}, v{r_}, v{T+8}'); a(f'v_mul_f32 v{T+4+j}, v{i_}, v{T+8}')
            a(f'v_fma_f32 v{T+j}, -v{i_}, v{T+9}, v{T+j}'); a(f'v_fmac_f32 v{T+4+j}, v{r_}, v{T+9}')
        a(f'v_cvt_pk_bf16_f32 v{F.AR+2*i}, v{T}, v{T+1}');     a(f'v_cvt_pk_bf16_f32 v{F.AR+2*i+1}, v{T+2}, v{T+3}')
        a(f'v_cvt_pk_bf16_f32 v{F.AI+2*i}, v{T+4}, v{T+5}');   a(f'v_cvt_pk_bf16_f32 v{F.AI+2*i+1}, v{T+6}, v{T+7}')
    a('s_nop 1')

def filter_special(a, p, S_WS):
    T = F.T; L = F.L
    MR = F.X2; BE = F.X2 + 32
    a(f'v_lshlrev_b32 v{T+10}, 4, v{L}')
    a(f'v_add_u32 v{T+10}, {p*4096}, v{T+10}')
    for i in range(4):
        a(f'global_load_dwordx4 v[{F.W+4*i}:{F.W+4*i+3}], v{T+10}, s[{S_WS}:{S_WS+1}] offset:{i*1024}')
    a(f'v_add_u32 v{T+10}, {WS_BE-WS_AL}, v{T+10}')
    for i in range(4):
        a(f'global_load_dwordx4 v[{BE+4*i}:{BE+4*i+3}], v{T+10}, s[{S_WS}:{S_WS+1}] offset:{i*1024}')
    a(f'v_and_b32 v{T+11}, 31, v{L}'); a(f'v_lshrrev_b32 v{T+12}, 5, v{L}')
    a(f'v_lshl_add_u32 v{T+11}, v{T+12}, 7, v{T+11}')
    a(f'v_lshlrev_b32 v{T+12}, 3, v{T+11}'); a(f'v_add_u32 v{T+12}, {LDS_X}, v{T+12}')
    for i in range(4):
        for j in range(4):
            a(f'ds_write2_b32 v{T+12}, v{F.DR+4*i+j}, v{F.DI+4*i+j} offset0:{64*j} offset1:{64*j+1}')
        if i < 3: a(f'v_add_u32 v{T+12}, 2048, v{T+12}')
    top = 1024 if p == 0 else 1023
    if p == 0:
        a('s_mov_b64 exec, 1')
        a(f'v_mov_b32 v{T+12}, {LDS_X + 1024*8}')
        a(f'ds_write2_b32 v{T+12}, v{F.DR}, v{F.DI} offset0:0 offset1:1')
        a('s_mov_b64 exec, -1')
    a(f'v_sub_u32 v{T+12}, {top - 96}, v{T+11}')
    a(f'v_lshlrev_b32 v{T+12}, 3, v{T+12}'); a(f'v_add_u32 v{T+12}, {LDS_X}, v{T+12}')
    a('s_waitcnt lgkmcnt(0)')
    for i in range(4):
        for j in range(4):
            n = 4*i + j
            a(f'ds_read_b64 v[{MR+2*n}:{MR+2*n+1}], v{T+12} offset:{(3-j)*256}')
        if i < 3: a(f'v_subrev_u32 v{T+12}, 2048, v{T+12}')
    a('s_waitcnt vmcnt(0) lgkmcnt(0)')
    for i in range(4):
        for j in range(4):
            n = 4*i + j
            r_, i_, w, be, mr, mi = F.DR + n, F.DI + n, F.W + n, BE + n, MR + 2*n, MR + 2*n + 1
            a(f'v_lshlrev_b32 v{T+8}, 16, v{w}'); a(f'v_and_b32 v{T+9}, 0xffff0000, v{w}')
            a(f'v_mul_f32 v{T+j}, v{r_}, v{T+8}'); a(f'v_mul_f32 v{T+4+j}, v{i_}, v{T+8}')
            a(f'v_fma_f32 v{T+j}, -v{i_}, v{T+9}, v{T+j}'); a(f'v_fmac_f32 v{T+4+j}, v{r_}, v{T+9}')
            a(f'v_lshlrev_b32 v{T+8}, 16, v{be}'); a(f'v_and_b32 v{T+9}, 0xffff0000, v{be}')
            a(f'v_fmac_f32 v{T+j}, v{mr}, v{T+8}'); a(f'v_fmac_f32 v{T+j}, v{mi}, v{T+9}')
            a(f'v_fmac_f32 v{T+4+j}, v{mr}, v{T+9}'); a(f'v_fma_f32 v{T+4+j}, -v{mi}, v{T+8}, v{T+4+j}')
        a(f'v_cvt_pk_bf16_f32 v{F.AR+2*i}, v{T}, v{T+1}');     a(f'v_cvt_pk_bf16_f32 v{F.AR+2*i+1}, v{T+2}, v{T+3}')
        a(f'v_cvt_pk_bf16_f32 v{F.AI+2*i}, v{T+4}, v{T+5}');   a(f'v_cvt_pk_bf16_f32 v{F.AI+2*i+1}, v{T+6}, v{T+7}')
    a('s_nop 1')

def fft_role(a, stamps):
    S_WS, S_WAVE, S_G, S_TAB, S_SPEC = 4, 6, 7, 8, 10
    SZ, SW, SY = 12, 16, 20
    L, T = F.L, F.T
    a(f'v_lshrrev_b32 v{T}, 6, v0'); a(f'v_and_b32 v{L}, 63, v0')
    a(f's_load_dwordx2 s[{S_WS}:{S_WS+1}], s[0:1], 80')
    a(f'v_readfirstlane_b32 s{S_WAVE}, v{T}')
    a(f's_sub_u32 s{S_G}, s2, {N_GEMM}')
    table_base(a, S_TAB, 'tab_fft')
    a(f'v_lshlrev_b32 v{F.VT}, 4, v{L}')
    a('s_waitcnt lgkmcnt(0)')
    if stamps: stamp(a, stamps[0], 0, stamps[1], stamps[2], S_WS, 2, T, 24)
    srd(a, SZ, S_WS, WS_ZB, 2 * 32 * 256 * 128)
    srd(a, SW, S_WS, WS_WP, 32 * 512 * 128)
    srd(a, SY, S_WS, WS_YT, 512 * 4096)
    a(f'v_lshrrev_b32 v{T}, 3, v{L}')
    a(f'v_and_b32 v{T+1}, 7, v{L}')
    a(f'v_xor_b32 v{T+2}, v{T+1}, v{T}')
    a(f'v_lshrrev_b32 v{T+3}, 1, v{T}'); a(f'v_xor_b32 v{T+3}, v{T+1}, v{T+3}')
    a(f'v_lshlrev_b32 v{T}, 7, v{T}')
    a(f's_lshr_b32 s24, s{S_WAVE}, 2'); a('s_lshl_b32 s24, s24, 5'); a(f's_add_u32 s24, s24, s{S_G}'); a('s_lshl_b32 s24, s24, 15')
    a(f's_and_b32 s25, s{S_WAVE}, 3'); a('s_lshl_b32 s25, s25, 13'); a('s_add_u32 s24, s24, s25')
    a(f's_lshl_b32 s26, s{S_WAVE}, 13')
    for n in range(8):
        a(f'v_xor_b32 v{T+4}, {n}, v{T+2}'); a(f'v_and_b32 v{T+4}, 7, v{T+4}')
        a(f'v_lshl_add_u32 v{T+4}, v{T+4}, 4, v{T}')
        a(f's_add_u32 m0, s26, {LDS_Z + n*1024}'); a(f's_add_u32 s27, s24, {n*1024}')
        a(f'buffer_load_dwordx4 v{T+4}, s[{SZ}:{SZ+3}], s27 offen lds')
    a(f's_lshl_b32 s24, s{S_G}, 16'); a('s_add_u32 s24, s24, s26')
    for n in range(8):
        a(f'v_xor_b32 v{T+4}, {4*(n&1)}, v{T+3}'); a(f'v_and_b32 v{T+4}, 7, v{T+4}')
        a(f'v_lshl_add_u32 v{T+4}, v{T+4}, 4, v{T}')
        a(f's_add_u32 m0, s26, {LDS_W + n*1024}'); a(f's_add_u32 s27, s24, {n*1024}')
        a(f'buffer_load_dwordx4 v{T+4}, s[{SW}:{SW+3}], s27 offen lds')
    dst = [f'v[{r}:{r+3}]' for r in range(F.C, F.C + 88, 4)]
    table_load(a, S_TAB, F.VT, dst)
    a(f'v_lshrrev_b32 v{T}, 5, v{L}'); a(f'v_bfe_u32 v{T+1}, v{L}, 2, 2')
    a(f'v_lshl_add_u32 v{T}, v{T}, 2, v{T+1}')
    a(f'v_bfe_u32 v{T+1}, v{L}, 4, 1'); a(f'v_and_b32 v{T+2}, 3, v{L}')
    a(f'v_lshl_add_u32 v{T+1}, v{T+1}, 2, v{T+2}')
    a(f'v_xor_b32 v{T+2}, v{T}, v{T+1}'); a(f'v_xor_b32 v{T+2}, s{S_WAVE}, v{T+2}')
    a(f'v_lshlrev_b32 v{T+2}, 4, v{T+2}')
    a(f'v_lshl_add_u32 v{T}, v{T}, 3, v{T+1}')
    a(f'v_lshl_add_u32 v{F.RZ0}, v{T}, 7, v{T+2}')
    a(f'v_bfe_u32 v{T}, v{L}, 1, 3'); a(f'v_xor_b32 v{T}, s{S_WAVE}, v{T}'); a(f'v_lshlrev_b32 v{T}, 4, v{T}')
    a(f'v_lshl_add_u32 v{F.RW}, v{L}, 7, v{T}')
    a(f'v_add_u32 v{F.RW}, {LDS_W}, v{F.RW}')
    a(f's_lshl_b32 s24, s{S_G}, 3'); a(f's_add_u32 s24, s24, s{S_WAVE}')
    a(f's_lshl_b32 s25, s24, 13')
    a(f'v_and_b32 v{T}, 31, v{L}'); a(f'v_lshlrev_b32 v{T}, 6, v{T}'); a(f'v_lshrrev_b32 v{T+1}, 5, v{L}')
    a(f'v_lshl_add_u32 v{T}, v{T+1}, 4, v{T}'); a(f'v_add_u32 v{F.VY}, s25, v{T}')
    a(f's_mov_b32 s{S_SPEC}, s24')
    a(f's_add_u32 s28, s{S_WS}, {WS_AL}'); a(f's_addc_u32 s29, s{S_WS+1}, 0')
    a('s_waitcnt vmcnt(0)')
    a('s_barrier')
    if stamps: stamp(a, stamps[0], 1, stamps[1], stamps[2], S_WS, 2, T, 24)
    for p in range(2):
        for c in range(2):
            for b in range(2):
                for q in range(2):
                    r = (F.AI if c else F.AR) + 4*b + 2*q
                    a(f'ds_read_b64_tr_b16 v[{r}:{r+1}], v{F.RZ0} offset:{p*32768 + (16*b+8*q)*8*128 + 8*c}')
        for i in range(4):
            a(f'ds_read_b128 v[{F.W+4*i}:{F.W+4*i+3}], v{F.RW} offset:{p*32768 + i*8192}')
        a('s_waitcnt lgkmcnt(4)')
        cplx_stage(a, 'A', False)
        cmul_pack(a, F.TC, F.TS, False)
        cplx_stage(a, 'B', False)
        a('s_waitcnt lgkmcnt(0)')
        sp, jn = a.label('spec'), a.label('join')
        a(f's_cmp_eq_u32 s{S_SPEC}, 0'); a(f's_cbranch_scc1 {sp}')
        filter_generic(a)
        a(f's_branch {jn}')
        a(f'{sp}:')
        filter_special(a, p, 28)
        a(f'{jn}:')
        cplx_stage(a, 'A', True)
        cmul_pack(a, F.TC, F.TS, True)
        cplx_stage(a, 'A', True)
        if p == 0:
            for n in range(16):
                a(f'v_mov_b32 v{F.ER+n}, v{F.DR+n}'); a(f'v_mov_b32 v{F.EI+n}, v{F.DI+n}')
    for n in range(16):
        r_, i_, c, s = F.DR + n, F.DI + n, F.UC + n, F.US + n
        a(f'v_mul_f32 v{T}, v{r_}, v{c}'); a(f'v_mul_f32 v{T+1}, v{i_}, v{c}')
        a(f'v_fma_f32 v{T}, -v{i_}, v{s}, v{T}'); a(f'v_fmac_f32 v{T+1}, v{r_}, v{s}')
        a(f'v_sub_f32 v{r_}, v{F.ER+n}, v{T}'); a(f'v_sub_f32 v{i_}, v{F.EI+n}, v{T+1}')
        a(f'v_add_f32 v{F.ER+n}, v{F.ER+n}, v{T}'); a(f'v_add_f32 v{F.EI+n}, v{F.EI+n}, v{T+1}')
    outs = [(F.ER, 0, 0), (F.DR, 0, 2048), (F.EI, 1, 0), (F.DI, 1, 2048)]
    a('s_movk_i32 s24, 0x1000')
    for (src, c, hi) in outs:
        a('s_nop 1')
        for pp in range(2):
            for j in range(4):
                a(f'v_permlane32_swap_b32 v{src+8*pp+j}, v{src+8*pp+4+j}')
        for pp in range(2):
            o = F.AR + 4*pp + (8 if c else 0)
            for jj in range(4):
                a(f'v_cvt_pk_bf16_f32 v{o+jj}, v{src+8*pp+2*jj}, v{src+8*pp+2*jj+1}')
            so = 's24' if c else '0'
            a(f'buffer_store_dwordx4 v[{o}:{o+3}], v{F.VY}, s[{SY}:{SY+3}], {so} offen offset:{hi + 32*pp}')
        a('s_nop 1')
    if stamps:
        a('s_waitcnt vmcnt(0)')
        stamp(a, stamps[0], 2, stamps[1], stamps[2], S_WS, 2, T, 24)
    a('s_endpgm')

def k2(a, name, stamps=None):
    kernel_begin(a, name)
    lf, end = a.label('fft'), a.label('end')
    a(f's_cmp_ge_u32 s2, {N_GEMM}'); a(f's_cbranch_scc1 {lf}')
    gemm1_role(a, stamps)
    a(f'{lf}:')
    a(f's_cmp_ge_u32 s2, {N_GEMM+N_FFT}'); a(f's_cbranch_scc1 {end}')
    fft_role(a, stamps)
    a(f'{end}:')
    a('s_endpgm')

def k2_tables(a):
    tb.emit(a, 'tab_fft', tb.f32mat('c') + tb.f32mat('s') + tb.f32mat('ns') + tb.t1024() + tb.t2048())

if __name__ == '__main__':
    import sys
    name = 'k2_kernel'
    launches = [(name, (256, 1, 1), (512, 1, 1), K2_LDS)]
    a = Asm()
    a(HEADER + launch_lines(launches) + '.amdgcn_target "amdgcn-amd-amdhsa--gfx950"\n.text')
    k2(a, name, stamps=(0, 256, 4))
    k2_tables(a)
    a('.section .rodata,"a"\n.p2align 6')
    a(descriptor(name, 256))
    open(sys.argv[1], 'w').write(a.text())
    build(sys.argv[1], launches)
```

```python
from asmlib import *
from gemm import *
from layout import *

def stamp(a, launch, slot, nwg, nslots, s_ws, s_wg, vt, st):
    skip = a.label('stamp')
    a(f's_memrealtime s[{st}:{st+1}]')
    a(f'v_cmp_eq_u32 vcc, 0, v0')
    a(f's_and_saveexec_b64 s[{st+2}:{st+3}], vcc')
    a(f's_cbranch_execz {skip}')
    a(f's_waitcnt lgkmcnt(0)')
    a(f'v_mov_b32 v{vt}, s{st}')
    a(f'v_mov_b32 v{vt+1}, s{st+1}')
    a(f's_mul_i32 s{st}, s{s_wg}, {nslots*8}')
    a(f's_add_u32 s{st}, s{st}, {WS_STAMP + (launch*nwg*nslots+slot)*8}')
    a(f'v_mov_b32 v{vt+2}, s{st}')
    a(f'global_store_dwordx2 v{vt+2}, v[{vt}:{vt+1}], s[{s_ws}:{s_ws+1}]')
    a(f'{skip}:')
    a(f's_mov_b64 exec, s[{st+2}:{st+3}]')

def clk_start(a, s0=44):
    a(f's_memtime s[{s0}:{s0+1}]')
    a(f's_memrealtime s[{s0+2}:{s0+3}]')
    a('s_waitcnt lgkmcnt(0)')
def clk_end(a, slot, s0=44, st=48, vt=44):
    skip = a.label('clk')
    a(f's_memtime s[{st}:{st+1}]')
    a(f's_memrealtime s[{st+2}:{st+3}]')
    a(f's_load_dwordx2 s[{st+4}:{st+5}], s[0:1], 72')
    a('s_waitcnt lgkmcnt(0)')
    a(f's_sub_u32 s{st}, s{st}, s{s0}')
    a(f's_sub_u32 s{st+2}, s{st+2}, s{s0+2}')
    a('s_cmp_lg_u32 s2, 0')
    a(f's_cbranch_scc1 {skip}')
    a(f'v_cmp_eq_u32 vcc, 0, v0')
    a(f's_and_saveexec_b64 s[{st+6}:{st+7}], vcc')
    a(f's_cbranch_execz {skip}_r')
    a(f'v_mov_b32 v{vt}, s{st}')
    a(f'v_mov_b32 v{vt+1}, s{st+2}')
    a(f'v_mov_b32 v{vt+2}, {slot*8}')
    a(f'global_store_dwordx2 v{vt+2}, v[{vt}:{vt+1}], s[{st+4}:{st+5}]')
    a(f'{skip}_r:')
    a(f's_mov_b64 exec, s[{st+6}:{st+7}]')
    a(f'{skip}:')

def k3(a, name, R=9, map_a=4, stamps=None, mods=''):
    G.ACC_KIND, G.ACC0 = 'a', 0
    kernel_begin(a, name)
    end = a.label('end')
    S_X, S_W2, S_B2, S_OUT, S_WS = 24, 26, 28, 30, 32
    S_WAVE, S_ST, S_DT, S_CP, S_CQ = 34, 35, 36, 37, 38
    S_YT = 40
    a('s_cmp_ge_u32 s2, 256')
    a(f's_cbranch_scc1 {end}')
    a(f's_load_dwordx2 s[{S_X}:{S_X+1}], s[0:1], 0')
    a(f's_load_dwordx2 s[{S_W2}:{S_W2+1}], s[0:1], 48')
    a(f's_load_dwordx2 s[{S_B2}:{S_B2+1}], s[0:1], 56')
    a(f's_load_dwordx2 s[{S_OUT}:{S_OUT+1}], s[0:1], 64')
    a(f's_load_dwordx2 s[{S_WS}:{S_WS+1}], s[0:1], 80')
    a('v_lshrrev_b32 v1, 6, v0')
    a('s_nop 0')
    a(f'v_readfirstlane_b32 s{S_WAVE}, v1')
    a('s_and_b32 s16, s2, 7')
    a('s_lshr_b32 s17, s2, 3')
    if map_a == 4:
        a('s_and_b32 s18, s17, 3'); a('s_lshl_b32 s16, s16, 2'); a(f's_add_u32 s{S_ST}, s16, s18'); a(f's_lshr_b32 s{S_DT}, s17, 2')
    else:
        a('s_lshr_b32 s18, s16, 1'); a('s_lshl_b32 s18, s18, 3'); a('s_and_b32 s19, s17, 7'); a(f's_add_u32 s{S_ST}, s18, s19')
        a('s_and_b32 s18, s16, 1'); a('s_lshl_b32 s18, s18, 2'); a('s_lshr_b32 s19, s17, 3'); a(f's_add_u32 s{S_DT}, s18, s19')
    a(f's_lshl_b32 s{S_CP}, s{S_DT}, 7')
    a(f's_lshl_b32 s{S_CQ}, s{S_ST}, 7')
    a('s_waitcnt lgkmcnt(0)')
    if stamps: stamp(a, stamps[0], 0, stamps[1], stamps[2], S_WS, 2, 44, 20); clk_start(a)
    a(f's_add_u32 s{G.SRD_P}, s{S_WS}, {WS_GT}')
    a(f's_addc_u32 s{G.SRD_P+1}, s{S_WS+1}, 0')
    a(f's_mov_b32 s{G.SRD_P+2}, {2304*1024}')
    a(f's_mov_b32 s{G.SRD_P+3}, 0x20000')
    a(f's_mov_b32 s{G.SRD_Q}, s{S_W2}')
    a(f's_mov_b32 s{G.SRD_Q+1}, s{S_W2+1}')
    a(f's_mov_b32 s{G.SRD_Q+2}, {1792*4096}')
    a(f's_mov_b32 s{G.SRD_Q+3}, 0x20000')
    a(f's_add_u32 s{S_YT}, s{S_WS}, {WS_YT - 1792*4096}')
    a(f's_addc_u32 s{S_YT+1}, s{S_WS+1}, 0')
    a(f's_mov_b32 s{S_YT+2}, {2304*4096}')
    gemm_setup(a, 1024, 4096, S_CP, S_CQ, S_WAVE, R)
    V_XO, V_X, V_B2 = 50, 52, 60
    L, T = G.V_LANE, G.V_TMP
    a(f's_lshr_b32 s16, s{S_WAVE}, 1')
    a(f's_lshl_b32 s16, s16, 5')
    a(f's_lshl_b32 s17, s{S_ST}, 6')
    a(f's_add_u32 s16, s16, s17')
    a(f'v_and_b32 v{T}, 31, v{L}')
    a(f'v_add_u32 v{T}, s16, v{T}')
    a(f'v_lshlrev_b32 v{T+1}, 1, v{T}')
    a(f'global_load_ushort v{V_B2}, v{T+1}, s[{S_B2}:{S_B2+1}]')
    a(f's_and_b32 s16, s{S_WAVE}, 1')
    a(f's_lshl_b32 s16, s16, 6')
    a(f's_add_u32 s16, s16, s{S_CP}')
    a(f'v_lshrrev_b32 v{T+1}, 5, v{L}')
    a(f'v_lshlrev_b32 v{T+1}, 4, v{T+1}')
    a(f'v_lshl_add_u32 v{V_XO}, v{T}, 10, v{T+1}')
    a(f'v_add_u32 v{V_XO}, s16, v{V_XO}')
    a(f'global_load_dwordx4 v[{V_X}:{V_X+3}], v{V_XO}, s[{S_X}:{S_X+1}]')
    a(f'global_load_dwordx4 v[{V_X+4}:{V_X+7}], v{V_XO}, s[{S_X}:{S_X+1}] offset:32')
    sw_now = [f's_mov_b32 s{G.SRD_Q}, s{S_YT}', f's_mov_b32 s{G.SRD_Q+1}, s{S_YT+1}', f's_mov_b32 s{G.SRD_Q+2}, s{S_YT+2}']
    sw_sel = [f's_cselect_b32 s{G.SRD_Q+j}, s{S_YT+j}, s{G.SRD_Q+j}' for j in range(3)]
    gemm_loop(a, 36, R, 1024, 4096, switch=(28, sw_now, sw_sel), mods=mods)
    if stamps: stamp(a, stamps[0], 1, stamps[1], stamps[2], S_WS, 2, 44, 20); clk_end(a, 0)
    VD = 64
    gemm_reduce(a, S_WAVE, VD, R)
    a(f'v_lshlrev_b32 v{V_B2}, 16, v{V_B2}')
    for i in range(16):
        a(f'v_add_f32 v{VD+i}, v{VD+i}, v{V_B2}')
    for p in range(2):
        for j in range(4):
            a(f'v_permlane32_swap_b32 v{VD+8*p+j}, v{VD+8*p+4+j}')
    for p in range(2):
        for jj in range(4):
            xr = V_X + 4*p + jj
            d0 = VD + 8*p + 2*jj; d1 = d0 + 1
            a(f'v_lshlrev_b32 v{T}, 16, v{xr}')
            a(f'v_and_b32 v{T+1}, 0xffff0000, v{xr}')
            a(f'v_add_f32 v{d0}, v{d0}, v{T}')
            a(f'v_add_f32 v{d1}, v{d1}, v{T+1}')
            a(f'v_cvt_pk_bf16_f32 v{xr}, v{d0}, v{d1}')
    a(f'global_store_dwordx4 v{V_XO}, v[{V_X}:{V_X+3}], s[{S_OUT}:{S_OUT+1}]')
    a(f'global_store_dwordx4 v{V_XO}, v[{V_X+4}:{V_X+7}], s[{S_OUT}:{S_OUT+1}] offset:32')
    if stamps:
        a('s_waitcnt vmcnt(0)')
        stamp(a, stamps[0], 2, stamps[1], stamps[2], S_WS, 2, 44, 20); clk_end(a, 1)
    a(f'{end}:')
    a('s_endpgm')

if __name__ == '__main__':
    import sys
    opts = dict(x.split('=') for x in sys.argv[2:])
    R = int(opts.get('R', 9)); ma = int(opts.get('map', 4)); mods = opts.get('mods', '')
    if mods: mods += ' '
    name = 'k3_kernel'
    launches = [(name, (256, 1, 1), (256, 1, 1), R * 4096 * 4)]
    a = Asm()
    a(HEADER + launch_lines(launches) + '.amdgcn_target "amdgcn-amd-amdhsa--gfx950"\n.text')
    k3(a, name, R, ma, stamps=(0, 256, 4), mods=mods)
    a('.section .rodata,"a"\n.p2align 6')
    a(descriptor(name, 80, 64))
    open(sys.argv[1], 'w').write(a.text())
    build(sys.argv[1], launches)
```

```python
WS_H    = 0x000000
WS_GT   = 0x200000
WS_FINV = WS_GT + 1792 * 1024
WS_ZB   = 0x480000
WS_WP   = 0x680000
WS_AL   = 0x880000
WS_BE   = 0x882000
WS_YT   = 0x900000
WS_END  = 0xB00000
WS_STAMP = 0x10000000 - (16 << 20)
```

```python
import numpy as np
def bf16bits(x):
    x = np.ascontiguousarray(x, dtype=np.float32)
    u = x.view(np.uint32)
    return (((u + 0x7FFF + ((u >> 16) & 1)) >> 16) & 0xFFFF).astype(np.uint32)
def f32bits(x):
    return np.ascontiguousarray(x, dtype=np.float32).view(np.uint32)
lane = np.arange(64)
A = lane % 32; H = lane // 32
def pi(b, h, jj): return 16 * b + 8 * (jj // 4) + 4 * h + (jj % 4)
def cosr(num, den): return np.cos(2 * np.pi * (np.asarray(num) % den) / den)
def sinr(num, den): return np.sin(2 * np.pi * (np.asarray(num) % den) / den)
def pack_frag(fn, b):
    regs = []
    for q in range(4):
        lo = bf16bits(fn(A, pi(b, H, 2 * q))); hi = bf16bits(fn(A, pi(b, H, 2 * q + 1)))
        regs.append(lo | (hi << 16))
    return regs
def f32mat(kind):
    f = {'c': lambda a, k: cosr(a * k, 32), 's': lambda a, k: sinr(a * k, 32), 'ns': lambda a, k: -sinr(a * k, 32)}[kind]
    return pack_frag(f, 0) + pack_frag(f, 1)
def t512():
    c = []; s = []
    for i2 in range(2):
        for j in range(4):
            n2 = 8 * i2 + 4 * H + j
            c.append(f32bits(cosr(A * n2, 512))); s.append(f32bits(sinr(A * n2, 512)))
    return c + s
def a2():
    ip = A // 8; hp = (A // 4) % 2; jp = A % 4
    c = jp % 2; k2 = 4 * ip + 2 * hp + jp // 2
    def are(a, n2): return np.where(c == 0, cosr(n2 * k2, 16), -sinr(n2 * k2, 16))
    def aim(a, n2): return np.where(c == 0, sinr(n2 * k2, 16), cosr(n2 * k2, 16))
    return pack_frag(are, 0) + pack_frag(aim, 0)
def t1024():
    c = []; s = []
    for i in range(4):
        for j in range(4):
            n = 8 * i + 4 * H + j
            c.append(f32bits(cosr(A * n, 1024))); s.append(f32bits(sinr(A * n, 1024)))
    return c + s
def t2048():
    c = []; s = []
    for i in range(4):
        for j in range(4):
            sp = 32 * A + 8 * i + 4 * H + j
            c.append(f32bits(cosr(sp, 2048))); s.append(f32bits(sinr(sp, 2048)))
    return c + s
def emit(a, label, regs):
    assert len(regs) % 4 == 0
    a('.p2align 8')
    a(f'{label}:')
    for g in range(len(regs) // 4):
        m = np.stack(regs[4 * g:4 * g + 4], axis=1).reshape(-1)
        for o in range(0, 256, 16):
            a('.long ' + ','.join('0x%x' % v for v in m[o:o + 16]))
def load(a, pairs, s_base, v_off, tmp):
    pass
```

```python
import sys
from asmlib import *
import k1, k2, k3
which = sys.argv[2]
st = int(sys.argv[3]) if len(sys.argv) > 3 else 1
launches = []; descs = []
a = Asm()
ks = which.split(',')
for k in ks:
    if k == '1': launches.append(('k1_kernel', (k1.K1_GRID, 1, 1), (256, 1, 1), 16384))
    if k == '2': launches.append(('k2_kernel', (256, 1, 1), (512, 1, 1), k2.K2_LDS))
    if k == '3': launches.append(('k3_kernel', (256, 1, 1), (256, 1, 1), 9 * 4096 * 4))
a(HEADER + launch_lines(launches) + '.amdgcn_target "amdgcn-amd-amdhsa--gfx950"\n.text')
for i, k in enumerate(ks):
    stamps = (i, 256, 4) if st else None
    if k == '1': k1.k1(a, 'k1_kernel', stamps); descs.append(descriptor('k1_kernel', 128))
    if k == '2': k2.k2(a, 'k2_kernel', stamps); descs.append(descriptor('k2_kernel', 256))
    if k == '3': k3.k3(a, 'k3_kernel', 9, 4, stamps=stamps); descs.append(descriptor('k3_kernel', 80, 64))
if '1' in ks: k1.k1_tables(a)
if '2' in ks: k2.k2_tables(a)
a('.section .rodata,"a"\n.p2align 6')
for d in descs: a(d)
open(sys.argv[1], 'w').write(a.text())
build(sys.argv[1], launches)
```

```python
from asmlib import *
from layout import *
from k3 import stamp
import tables as tb

N_LN, N_WP, N_FI, N_AB = 256, 128, 128, 8

def row_sum(a, v, t):
    for n in (8, 4, 2, 1):
        a('s_nop 1')
        a(f'v_add_f32_dpp v{v}, v{v}, v{v} row_ror:{n} row_mask:0xf bank_mask:0xf')
    a(f'v_mov_b32 v{t}, v{v}')
    a('s_nop 1')
    a(f'v_permlane32_swap_b32 v{v}, v{t}')
    a('s_nop 0')
    a(f'v_add_f32 v{v}, v{v}, v{t}')

def rbf(a, d, s):
    a(f'v_cvt_pk_bf16_f32 v{d}, v{s}, v{s}')
    a(f'v_lshlrev_b32 v{d}, 16, v{d}')

def layernorm(a, X, P, T, unpack):
    t0, t1, t2, t3 = T, T + 1, T + 2, T + 3
    a(f'v_add_f32 v{t0}, v{X}, v{X+1}'); a(f'v_add_f32 v{t1}, v{X+2}, v{X+3}')
    for i in range(4, 16, 2):
        a(f'v_add_f32 v{t0}, v{t0}, v{X+i}'); a(f'v_add_f32 v{t1}, v{t1}, v{X+i+1}')
    a(f'v_add_f32 v{t0}, v{t0}, v{t1}')
    row_sum(a, t0, t1)
    a(f'v_mul_f32 v{t0}, 0x3b000000, v{t0}')
    rbf(a, t2, t0)
    a(f'v_sub_f32 v{t3}, v{t0}, v{t2}')
    for i in range(16):
        a(f'v_sub_f32 v{X+i}, v{X+i}, v{t2}')
    a(f'v_mul_f32 v{t0}, v{X}, v{X}'); a(f'v_mul_f32 v{t1}, v{X+1}, v{X+1}')
    for i in range(2, 16, 2):
        a(f'v_fmac_f32 v{t0}, v{X+i}, v{X+i}'); a(f'v_fmac_f32 v{t1}, v{X+i+1}, v{X+i+1}')
    a(f'v_add_f32 v{t0}, v{t0}, v{t1}')
    row_sum(a, t0, t1)
    a(f'v_mul_f32 v{t0}, 0x3b000000, v{t0}')
    a(f'v_fma_f32 v{t0}, -v{t3}, v{t3}, v{t0}')
    a(f'v_max_f32 v{t0}, 0, v{t0}')
    rbf(a, t0, t0)
    a(f'v_add_f32 v{t0}, 0x3727c5ac, v{t0}')
    rbf(a, t0, t0)
    a(f'v_sqrt_f32 v{t0}, v{t0}')
    a('s_nop 0')
    rbf(a, t0, t0)
    a(f'v_rcp_f32 v{t0}, v{t0}')
    for q in range(8):
        a(f'v_cvt_pk_bf16_f32 v{P+q}, v{X+2*q}, v{X+2*q+1}')
    for q in range(8):
        a(f'v_lshlrev_b32 v{X+2*q}, 16, v{P+q}')
        a(f'v_and_b32 v{X+2*q+1}, 0xffff0000, v{P+q}')
    for i in range(16):
        a(f'v_mul_f32 v{X+i}, v{X+i}, v{t0}')
    for q in range(8):
        a(f'v_cvt_pk_bf16_f32 v{P+q}, v{X+2*q}, v{X+2*q+1}')
    if unpack:
        for q in range(8):
            a(f'v_lshlrev_b32 v{X+2*q}, 16, v{P+q}')
            a(f'v_and_b32 v{X+2*q+1}, 0xffff0000, v{P+q}')

def srd(a, s, base, off, size):
    if off:
        a(f's_add_u32 s{s}, s{base}, {off}'); a(f's_addc_u32 s{s+1}, s{base+1}, 0')
    else:
        a(f's_mov_b32 s{s}, s{base}'); a(f's_mov_b32 s{s+1}, s{base+1}')
    a(f's_mov_b32 s{s+2}, {size}'); a(f's_mov_b32 s{s+3}, 0x20000')

def table_base(a, s, label):
    l = a.label('pc')
    a(f's_getpc_b64 s[{s}:{s+1}]')
    a(f'{l}:')
    a(f's_add_u32 s{s}, s{s}, {label}-{l}')
    a(f's_addc_u32 s{s+1}, s{s+1}, 0')

def table_load(a, s, voff, dsts, g0=0):
    cur = 0
    for n, dst in enumerate(dsts):
        g = g0 + n
        while g * 1024 - cur > 4095 - 1024 + 1024 - 1 and g * 1024 - cur >= 4096:
            a(f'v_add_u32 v{voff}, 4096, v{voff}'); cur += 4096
        a(f'global_load_dwordx4 {dst}, v{voff}, s[{s}:{s+1}] offset:{g*1024-cur}')
    return cur

def ln_role(a, stamps):
    S_X, S_WS, S_WAVE, S_TAB = 4, 6, 8, 10
    SRD_X, SRD_H, SRD_Z = 12, 16, 20
    L, VO, VT = 1, 2, 3
    X, XA = 8, 24
    C32, NS32, TC, TS, A2R, A2I = 32, 40, 48, 56, 64, 68
    D1R, D1I = 72, 88
    BR, BI = 104, 112
    T = 120
    a(f'v_and_b32 v{L}, 63, v0')
    a(f'v_lshrrev_b32 v{T}, 6, v0')
    a(f's_load_dwordx2 s[{S_X}:{S_X+1}], s[0:1], 0')
    a(f's_load_dwordx2 s[{S_WS}:{S_WS+1}], s[0:1], 80')
    a(f'v_readfirstlane_b32 s{S_WAVE}, v{T}')
    table_base(a, S_TAB, 'tab_k1')
    for i in range(16):
        a(f'v_mov_b32 v{X+i}, 0')
    a(f's_lshl_b32 s9, s2, 2'); a(f's_add_u32 s9, s9, s{S_WAVE}')
    a(f'v_bfe_u32 v{T}, v{L}, 4, 1')
    a(f'v_lshlrev_b32 v{T}, 10, v{T}')
    a(f'v_add_u32 v{T}, s9, v{T}')
    a(f'v_lshlrev_b32 v{T}, 10, v{T}')
    a(f'v_and_b32 v{T+1}, 15, v{L}')
    a(f'v_lshl_add_u32 v{T}, v{T+1}, 1, v{T}')
    a(f'v_lshrrev_b32 v{T+1}, 5, v{L}')
    a(f'v_lshl_add_u32 v{VO}, v{T+1}, 7, v{T}')
    a(f'v_lshlrev_b32 v{VT}, 4, v{L}')
    a('s_waitcnt lgkmcnt(0)')
    if stamps: stamp(a, stamps[0], 0, stamps[1], stamps[2], S_WS, 2, T, 24)
    srd(a, SRD_X, S_X, 0, 2048 * 1024)
    for b in range(2):
        for jj in range(8):
            a(f'buffer_load_short_d16_hi v{X+8*b+jj}, v{VO}, s[{SRD_X}:{SRD_X+3}], 0 offen offset:{512*b+256*(jj//4)+32*(jj%4)}')
    dst = [f'v[{r}:{r+3}]' for r in range(C32, C32 + 40, 4)]
    table_load(a, S_TAB, VT, dst)
    srd(a, SRD_H, S_WS, WS_H, 2048 * 1024)
    srd(a, SRD_Z, S_WS, WS_ZB, 2 * 32 * 256 * 128)
    a(f'v_cvt_f32_u32 v{T+4}, s9')
    a(f'v_mul_f32 v{T+4}, 0x3a000000, v{T+4}')
    a(f'v_cos_f32 v{T+5}, v{T+4}')
    a(f'v_sin_f32 v{T+6}, v{T+4}')
    a('s_waitcnt vmcnt(10)')
    layernorm(a, X, XA, T, True)
    HP = XA
    a('s_waitcnt vmcnt(0)')
    for b in range(2):
        c = '0' if b == 0 else f'v[{D1R}:{D1R+15}]'
        a(f'v_mfma_f32_32x32x16_bf16 v[{D1R}:{D1R+15}], v[{XA+4*b}:{XA+4*b+3}], v[{C32+4*b}:{C32+4*b+3}], {c}')
        c = '0' if b == 0 else f'v[{D1I}:{D1I+15}]'
        a(f'v_mfma_f32_32x32x16_bf16 v[{D1I}:{D1I+15}], v[{XA+4*b}:{XA+4*b+3}], v[{NS32+4*b}:{NS32+4*b+3}], {c}')
    layernorm(a, X, HP, T, False)
    for q in range(8):
        b, jq = q // 4, q % 4
        for e in range(2):
            jj = 2 * jq + e
            op = 'buffer_store_short_d16_hi' if e else 'buffer_store_short'
            a(f'{op} v{HP+q}, v{VO}, s[{SRD_H}:{SRD_H+3}], 0 offen offset:{512*b+256*(jj//4)+32*(jj%4)}')
    for i in range(4):
        for j in range(4):
            r_, i_ = D1R + 4*i + j, D1I + 4*i + j
            tc, ts = TC + 4*(i % 2) + j, TS + 4*(i % 2) + j
            a(f'v_mul_f32 v{X+j}, v{r_}, v{tc}')
            a(f'v_fmac_f32 v{X+j}, v{i_}, v{ts}')
            a(f'v_mul_f32 v{X+4+j}, v{i_}, v{tc}')
            a(f'v_fma_f32 v{X+4+j}, -v{r_}, v{ts}, v{X+4+j}')
        a(f'v_cvt_pk_bf16_f32 v{BR+2*i}, v{X}, v{X+1}');   a(f'v_cvt_pk_bf16_f32 v{BR+2*i+1}, v{X+2}, v{X+3}')
        a(f'v_cvt_pk_bf16_f32 v{BI+2*i}, v{X+4}, v{X+5}'); a(f'v_cvt_pk_bf16_f32 v{BI+2*i+1}, v{X+6}, v{X+7}')
    a('s_nop 1')
    D2 = (D1R, D1I)
    for r in range(2):
        a(f'v_mfma_f32_32x32x16_bf16 v[{D2[r]}:{D2[r]+15}], v[{A2R}:{A2R+3}], v[{BR+4*r}:{BR+4*r+3}], 0')
    for r in range(2):
        a(f'v_mfma_f32_32x32x16_bf16 v[{D2[r]}:{D2[r]+15}], v[{A2I}:{A2I+3}], v[{BI+4*r}:{BI+4*r+3}], v[{D2[r]}:{D2[r]+15}]')
    a(f'v_lshlrev_b32 v{VT}, 4, v{L}')
    a(f's_lshl_b32 s9, s{S_WAVE}, 12')
    a(f'v_add_u32 v{VT}, s9, v{VT}')
    a('s_nop 7'); a('s_nop 7')
    a('s_mov_b64 exec, 1')
    a(f'v_mov_b32 v{D2[0]+1}, v{D2[0]+8}')
    a(f'v_mov_b32 v{D2[1]+1}, v{D2[1]+8}')
    a('s_mov_b64 exec, -1')
    Z0, DF, Z1 = X, X + 8, XA
    for i in range(8):
        a(f'v_add_f32 v{Z0+i}, v{D2[0]+i}, v{D2[1]+i}')
        a(f'v_sub_f32 v{DF+i}, v{D2[0]+i}, v{D2[1]+i}')
    for i in range(0, 8, 2):
        a(f'v_mul_f32 v{Z1+i}, v{DF+i}, v{T+5}')
        a(f'v_fmac_f32 v{Z1+i}, v{DF+i+1}, v{T+6}')
        a(f'v_mul_f32 v{Z1+i+1}, v{DF+i+1}, v{T+5}')
        a(f'v_fma_f32 v{Z1+i+1}, -v{DF+i}, v{T+6}, v{Z1+i+1}')
    for ip in range(2):
        a(f'ds_write_b128 v{VT}, v[{Z0+4*ip}:{Z0+4*ip+3}] offset:{ip*1024}')
        a(f'ds_write_b128 v{VT}, v[{Z1+4*ip}:{Z1+4*ip+3}] offset:{2048+ip*1024}')
    a(f'v_and_b32 v{T}, 31, v0')
    a(f'v_lshrrev_b32 v{T+1}, 5, v0')
    a(f'v_lshrrev_b32 v{T+2}, 2, v{T+1}')
    a(f'v_lshlrev_b32 v{T+2}, 10, v{T+2}')
    a(f'v_bfe_u32 v{T+3}, v{T+1}, 1, 1')
    a(f'v_lshl_add_u32 v{T}, v{T+3}, 5, v{T}')
    a(f'v_lshl_add_u32 v{T}, v{T}, 4, v{T+2}')
    a(f'v_and_b32 v{T+1}, 1, v{T+1}')
    a(f'v_lshl_add_u32 v{T}, v{T+1}, 3, v{T}')
    a(f'v_lshrrev_b32 v{T+1}, 3, v0')
    a(f'v_lshlrev_b32 v{T+1}, 15, v{T+1}')
    a(f'v_and_b32 v{T+2}, 7, v0')
    a(f'v_lshl_add_u32 v{T+1}, v{T+2}, 4, v{T+1}')
    a(f's_lshl_b32 s9, s2, 7')
    a(f'v_add_u32 v{T+1}, s9, v{T+1}')
    a('s_waitcnt lgkmcnt(0)')
    a('s_barrier')
    G0 = 32
    for par in range(2):
        for w in range(4):
            a(f'ds_read_b64 v[{G0+16*par+2*w}:{G0+16*par+2*w+1}], v{T} offset:{w*4096+par*2048}')
    for par in range(2):
        g = G0 + 16 * par; o = g + 8
        a(f's_waitcnt lgkmcnt({4*(1-par)})')
        a(f'v_cvt_pk_bf16_f32 v{o}, v{g}, v{g+2}');     a(f'v_cvt_pk_bf16_f32 v{o+1}, v{g+4}, v{g+6}')
        a(f'v_cvt_pk_bf16_f32 v{o+2}, v{g+1}, v{g+3}'); a(f'v_cvt_pk_bf16_f32 v{o+3}, v{g+5}, v{g+7}')
        if par == 0:
            a(f'buffer_store_dwordx4 v[{o}:{o+3}], v{T+1}, s[{SRD_Z}:{SRD_Z+3}], 0 offen')
        else:
            a(f'v_add_u32 v{T+2}, {32*256*128}, v{T+1}')
            a(f'buffer_store_dwordx4 v[{o}:{o+3}], v{T+2}, s[{SRD_Z}:{SRD_Z+3}], 0 offen')
    if stamps:
        a('s_waitcnt vmcnt(0)')
        stamp(a, stamps[0], 1, stamps[1], stamps[2], S_WS, 2, T, 24)
    a('s_endpgm')

def wp_role(a, first):
    S_WR, S_WI, S_WS = 4, 6, 8
    SR, SI, SO = 12, 16, 20
    a(f's_load_dwordx2 s[{S_WR}:{S_WR+1}], s[0:1], 8')
    a(f's_load_dwordx2 s[{S_WI}:{S_WI+1}], s[0:1], 16')
    a(f's_load_dwordx2 s[{S_WS}:{S_WS+1}], s[0:1], 80')
    a('v_lshrrev_b32 v2, 6, v0'); a('v_and_b32 v1, 63, v0')
    a('v_readfirstlane_b32 s10, v2')
    a(f's_sub_u32 s11, s2, {first}'); a('s_lshl_b32 s11, s11, 2'); a('s_add_u32 s11, s11, s10')
    a('s_and_b32 s24, s11, 63'); a('s_lshr_b32 s25, s11, 6')
    a('s_lshl_b32 s26, s25, 8'); a('s_add_u32 s26, s26, s24')
    a('s_mul_i32 s26, s26, 514')
    a('v_lshlrev_b32 v2, 3, v1'); a('v_add_u32 v2, s26, v2')
    a('s_and_b32 s27, s11, 1'); a('s_lshl_b32 s27, s27, 8'); a('s_lshl_b32 s28, s25, 5'); a('s_add_u32 s27, s27, s28')
    a('s_lshr_b32 s28, s24, 1'); a('s_add_u32 s27, s27, s28'); a('s_lshl_b32 s27, s27, 7')
    a('v_lshrrev_b32 v3, 1, v1'); a('v_lshlrev_b32 v3, 16, v3'); a('v_and_b32 v4, 1, v1'); a('v_lshl_add_u32 v3, v4, 6, v3')
    a('v_add_u32 v3, s27, v3')
    a('s_waitcnt lgkmcnt(0)')
    srd(a, SR, S_WR, 0, 2048 * 514); srd(a, SI, S_WI, 0, 2048 * 514); srd(a, SO, S_WS, WS_WP, 32 * 512 * 128)
    for j in range(4):
        a(f's_mov_b32 s28, {j*64*514}')
        a(f'buffer_load_dwordx2 v[{8+2*j}:{9+2*j}], v2, s[{SR}:{SR+3}], s28 offen')
        a(f'buffer_load_dwordx2 v[{16+2*j}:{17+2*j}], v2, s[{SI}:{SI+3}], s28 offen')
    a('s_mov_b32 s29, 0x05040100'); a('s_mov_b32 s30, 0x07060302')
    a('s_waitcnt vmcnt(0)')
    for e in range(4):
        for j in range(4):
            a(f'v_perm_b32 v{24+4*e+j}, v{16+2*j+e//2}, v{8+2*j+e//2}, s{30 if e%2 else 29}')
    for e in range(4):
        a(f'buffer_store_dwordx4 v[{24+4*e}:{27+4*e}], v3, s[{SO}:{SO+3}], 0 offen offset:{16*e}')
    a('s_endpgm')

def finv_role(a, first):
    S_WS, SO = 4, 8
    a(f's_load_dwordx2 s[{S_WS}:{S_WS+1}], s[0:1], 80')
    a(f's_sub_u32 s6, s2, {first}'); a('s_lshl_b32 s6, s6, 8')
    a('v_add_u32 v1, s6, v0')
    a('v_lshrrev_b32 v2, 6, v1')
    a('v_and_b32 v3, 63, v1'); a('v_lshlrev_b32 v3, 3, v3')
    a('v_lshrrev_b32 v4, 1, v2')
    a('v_and_b32 v5, 1, v2')
    a('v_cmp_eq_u32 vcc, 1, v2')
    a('v_lshlrev_b32 v6, 7, v5')
    a('v_mov_b32 v7, 0x100')
    a('v_cndmask_b32 v4, v4, v7, vcc')
    a('v_cndmask_b32 v6, v6, 0, vcc') if False else a('v_mov_b32 v7, 0')
    a('v_cndmask_b32 v6, v6, v7, vcc')
    a('v_cmp_gt_u32 vcc, 2, v2')
    a(f'v_mov_b32 v7, 0x36000000')
    a(f'v_mov_b32 v8, 0x35800000')
    a('v_cndmask_b32 v7, v7, v8, vcc')
    a('v_mad_u32_u24 v6, v4, v3, v6')
    for e in range(8):
        a(f'v_and_b32 v{10+e}, 511, v6')
        a(f'v_cvt_f32_u32 v{10+e}, v{10+e}')
        a(f'v_mul_f32 v{10+e}, 0x3b000000, v{10+e}')
        a(f'v_cos_f32 v{10+e}, v{10+e}')
        a('v_add_u32 v6, v6, v4')
        a(f'v_mul_f32 v{10+e}, v{10+e}, v7')
    for q in range(4):
        a(f'v_cvt_pk_bf16_f32 v{20+q}, v{10+2*q}, v{11+2*q}')
    a('v_lshlrev_b32 v1, 4, v1')
    a('s_waitcnt lgkmcnt(0)')
    srd(a, SO, S_WS, WS_FINV, 512 * 1024)
    a(f'buffer_store_dwordx4 v[20:23], v1, s[{SO}:{SO+3}], 0 offen')
    a('s_endpgm')

def ab_role(a, first):
    S_WR, S_WI, S_WS = 4, 6, 8
    SR, SI, SO = 12, 16, 20
    a(f's_load_dwordx2 s[{S_WR}:{S_WR+1}], s[0:1], 8')
    a(f's_load_dwordx2 s[{S_WI}:{S_WI+1}], s[0:1], 16')
    a(f's_load_dwordx2 s[{S_WS}:{S_WS+1}], s[0:1], 80')
    a(f's_sub_u32 s10, s2, {first}'); a('s_lshl_b32 s10, s10, 8')
    a('v_add_u32 v1, s10, v0')
    a('v_sub_u32 v2, 0x800, v1'); a('v_and_b32 v2, 0x7ff, v2')
    a('s_movk_i32 s11, 514')
    a('v_mul_lo_u32 v3, v1, s11'); a('v_mul_lo_u32 v4, v2, s11')
    a('s_waitcnt lgkmcnt(0)')
    srd(a, SR, S_WR, 0, 2048 * 514); srd(a, SI, S_WI, 0, 2048 * 514); srd(a, SO, S_WS, WS_AL, 0x4000)
    for n, (v, s, off) in enumerate([(3, SR, 0), (4, SR, 0), (3, SR, 512), (4, SR, 512), (3, SI, 0), (4, SI, 0), (3, SI, 512), (4, SI, 512)]):
        a(f'buffer_load_ushort v{8+n}, v{v}, s[{s}:{s+3}], 0 offen offset:{off}')
    a('v_and_b32 v5, 1, v1'); a('v_lshlrev_b32 v5, 8, v5')
    a('v_lshrrev_b32 v6, 8, v1'); a('v_lshl_add_u32 v5, v6, 5, v5')
    a('v_bfe_u32 v6, v1, 1, 5'); a('v_add_u32 v5, v5, v6')
    a('v_bfe_u32 v6, v1, 6, 2'); a('v_lshlrev_b32 v6, 2, v6'); a('v_lshl_add_u32 v5, v5, 4, v6')
    a('s_waitcnt vmcnt(0)')
    for n in range(8):
        a(f'v_lshlrev_b32 v{8+n}, 16, v{8+n}')
    a('v_add_f32 v16, v8, v9'); a('v_add_f32 v17, v10, v11')
    a('v_sub_f32 v18, v12, v13'); a('v_sub_f32 v19, v14, v15')
    a('v_add_f32 v20, v16, v17'); a('v_add_f32 v21, v18, v19'); a('v_sub_f32 v22, v16, v17'); a('v_sub_f32 v23, v18, v19')
    for n in range(4):
        a(f'v_mul_f32 v{20+n}, 0x3e800000, v{20+n}')
    a('v_cvt_pk_bf16_f32 v24, v20, v21'); a('v_cvt_pk_bf16_f32 v25, v22, v23')
    a(f'buffer_store_dword v24, v5, s[{SO}:{SO+3}], 0 offen')
    a(f'v_add_u32 v5, {WS_BE-WS_AL}, v5')
    a(f'buffer_store_dword v25, v5, s[{SO}:{SO+3}], 0 offen')
    a('s_endpgm')

def pf_role(a, first):
    a('s_load_dwordx2 s[4:5], s[0:1], 32')
    a('s_load_dwordx2 s[6:7], s[0:1], 48')
    a('v_lshrrev_b32 v2, 6, v0'); a('v_and_b32 v1, 63, v0')
    a('v_readfirstlane_b32 s10, v2')
    a(f's_sub_u32 s11, s2, {first}')
    a('s_and_b32 s12, s11, 7')
    a('s_lshr_b32 s13, s11, 3')
    a('s_lshl_b32 s13, s13, 2'); a('s_add_u32 s13, s13, s10'); a('s_lshl_b32 s13, s13, 6')
    a('v_add_u32 v1, s13, v1')
    a('s_waitcnt lgkmcnt(0)')
    srd(a, 16, 4, 0, 2048 * 3584); srd(a, 20, 6, 0, 1792 * 4096)
    if PF & 1:
        a('s_lshr_b32 s14, s12, 1'); a('s_mul_i32 s14, s14, 896')
        a('s_movk_i32 s15, 3584'); a('v_mul_lo_u32 v2, v1, s15'); a('v_add_u32 v2, s14, v2')
        for e in range(7):
            a(f'buffer_load_dword v{8+e}, v2, s[16:19], 0 offen offset:{128*e}')
    if PF & 2:
        a('s_lshl_b32 s14, s12, 9')
        a('v_lshlrev_b32 v3, 12, v1'); a('v_add_u32 v3, s14, v3')
        for e in range(4):
            a(f'buffer_load_dword v{16+e}, v3, s[20:23], 0 offen offset:{128*e}')
    a('s_endpgm')

PF = 0
N_PF = 64
def grid(): return N_LN + N_WP + N_FI + N_AB + (N_PF if PF else 0)
K1_GRID = N_LN + N_WP + N_FI + N_AB
def k1(a, name, stamps=None):
    kernel_begin(a, name)
    lw, lf, lab, end = a.label('wp'), a.label('finv'), a.label('ab'), a.label('end')
    a(f's_cmp_ge_u32 s2, {N_LN}'); a(f's_cbranch_scc1 {lw}')
    ln_role(a, stamps)
    a(f'{lw}:')
    a(f's_cmp_ge_u32 s2, {N_LN+N_WP}'); a(f's_cbranch_scc1 {lf}')
    wp_role(a, N_LN)
    a(f'{lf}:')
    a(f's_cmp_ge_u32 s2, {N_LN+N_WP+N_FI}'); a(f's_cbranch_scc1 {lab}')
    finv_role(a, N_LN + N_WP)
    a(f'{lab}:')
    lp = a.label('pf')
    a(f's_cmp_ge_u32 s2, {K1_GRID}'); a(f's_cbranch_scc1 {lp}')
    ab_role(a, N_LN + N_WP + N_FI)
    a(f'{lp}:')
    if PF:
        a(f's_cmp_ge_u32 s2, {grid()}'); a(f's_cbranch_scc1 {end}')
        pf_role(a, K1_GRID)
    a(f'{end}:')
    a('s_endpgm')

def k1_tables(a):
    tb.emit(a, 'tab_k1', tb.f32mat('c') + tb.f32mat('ns') + tb.t512() + tb.a2())

if __name__ == '__main__':
    import sys
    name = 'k1_kernel'
    launches = [(name, (K1_GRID, 1, 1), (256, 1, 1), 16384)]
    a = Asm()
    a(HEADER + launch_lines(launches) + '.amdgcn_target "amdgcn-amd-amdhsa--gfx950"\n.text')
    k1(a, name, stamps=(0, 256, 4))
    k1_tables(a)
    a('.section .rodata,"a"\n.p2align 6')
    a(descriptor(name, 128))
    open(sys.argv[1], 'w').write(a.text())
    build(sys.argv[1], launches)
```

```python
import sys
from asmlib import *
import k1, k2, k3
def make(path, stamps_on=False, extra_empty=0, pf=0, k3R=9, k3map=4, do_build=True):
    launches = []; descs = []
    a = Asm()
    k1.PF = pf
    launches.append(('k1_kernel', (k1.grid(), 1, 1), (256, 1, 1), 16384))
    launches.append(('k2_kernel', (256, 1, 1), (512, 1, 1), k2.K2_LDS))
    launches.append(('k3_kernel', (256, 1, 1), (256, 1, 1), k3R * 4096 * 4))
    for i in range(extra_empty):
        launches.append(('empty_kernel', (256, 1, 1), (64, 1, 1), 0))
    a(HEADER + launch_lines(launches) + '.amdgcn_target "amdgcn-amd-amdhsa--gfx950"\n.text')
    st = lambda i: (i, 256, 4) if stamps_on else None
    k1.k1(a, 'k1_kernel', st(0)); descs.append(descriptor('k1_kernel', 128))
    k2.k2(a, 'k2_kernel', st(1)); descs.append(descriptor('k2_kernel', 256))
    k3.k3(a, 'k3_kernel', k3R, k3map, stamps=st(2)); descs.append(descriptor('k3_kernel', 80, 64))
    if extra_empty:
        kernel_begin(a, 'empty_kernel'); a('s_endpgm'); descs.append(descriptor('empty_kernel', 8))
    k1.k1_tables(a); k2.k2_tables(a)
    a('.section .rodata,"a"\n.p2align 6')
    for d in descs: a(d)
    open(path, 'w').write(a.text())
    if do_build: build(path, launches)
if __name__ == '__main__':
    o = dict(x.split('=') for x in sys.argv[2:])
    make(sys.argv[1], stamps_on=int(o.get('st', 0)), extra_empty=int(o.get('empty', 0)), pf=int(o.get('pf', 0)), k3R=int(o.get('R', 9)), k3map=int(o.get('map', 4)))
```

```python
from asmlib import *

class Em(Asm):
    VM_PREFIX = ('buffer_load', 'buffer_store', 'global_load', 'global_store', 'global_atomic', 'buffer_atomic')
    def __init__(self):
        super().__init__()
        self.vm = 0
        self.bg = []
        self.bg_every = 0
        self.bg_count = 0
        self.in_bg = False
    def __call__(self, s=''):
        for l in s.split('\n'):
            t = l.strip()
            self.lines.append(l)
            if t.startswith(self.VM_PREFIX):
                self.vm += 1
            if self.bg and self.bg_every and not self.in_bg and t and not t.endswith(':') and not t.startswith(('.', ';')):
                self.bg_count += 1
                if self.bg_count >= self.bg_every:
                    self.bg_count = 0
                    self.pop_bg()
    def pop_bg(self):
        if not self.bg: return
        self.in_bg = True
        g = self.bg.pop(0)
        if callable(g): g(self)
        else:
            for l in g: self(l)
        self.in_bg = False
    def bg_start(self, groups, every):
        self.bg = list(groups); self.bg_every = every; self.bg_count = 0
    def bg_flush(self):
        while self.bg: self.pop_bg()
        self.bg_every = 0
    def mark(self):
        return self.vm
    def wait_vm(self, handle, extra=''):
        n = self.vm - handle
        if n > 63:
            if extra: self.nobg(f's_waitcnt {extra}')
            return
        self.nobg(f's_waitcnt vmcnt({n}) {extra}'.rstrip())
    def atomic(self):
        em = self
        class Ctx:
            def __enter__(c): c.old = em.in_bg; em.in_bg = True
            def __exit__(c, *args): em.in_bg = c.old
        return Ctx()
    def nobg(self, s):
        old = self.in_bg; self.in_bg = True
        self(s)
        self.in_bg = old
```

```python
import sys, struct
from asm2 import *
import tables as tb

WS_BASE = 0
WS_H    = WS_BASE + 0x000000
WS_GT   = WS_BASE + 0x200000
WS_FINV = WS_GT + 1792 * 1024
WS_ZB   = WS_BASE + 0x480000
WS_WP   = WS_BASE + 0x680000
WS_AL   = WS_BASE + 0x880000
WS_BE   = WS_BASE + 0x882000
WS_F1   = WS_BASE + 0x890000
WS_F2   = WS_BASE + 0x898000
WS_F3   = WS_BASE + 0x8A0000
WS_YT   = WS_BASE + 0x900000
WS_STAMP = 0x10000000 - (16 << 20)
NSLOT = 16

NRING = 18
RINGB = NRING * 2048
LDS_EX = 4 * RINGB
LDS_TOTAL = LDS_EX + 16384
LDS_Z, LDS_W, LDS_X = 0, 65536, 131072

class S:
    WAVE = 3
    X, WR, WI, BX, W1, B1, W2, B2, OUT, DBG, WS = 4, 6, 8, 10, 12, 14, 16, 18, 20, 22, 24
    NONCE, XCD, J, RING = 26, 27, 28, 29
    DT, FT, ST, GRP = 30, 31, 32, 33
    A, B, C, D = 36, 40, 44, 48
    SOA, SOB = 52, 53
    TAB = 54
    T = 56
    STMP = 72

CFG = dict(stamps=0, early=12, inmod='nt', wmod='nt', spin=1 << 18)

def fb(x): return '0x%08x' % struct.unpack('<I', struct.pack('<f', x))[0]

def srd(a, s, base, off, size):
    with a.atomic():
        if off:
            a(f's_add_u32 s{s}, s{base}, {off}'); a(f's_addc_u32 s{s+1}, s{base+1}, 0')
        else:
            a(f's_mov_b32 s{s}, s{base}'); a(f's_mov_b32 s{s+1}, s{base+1}')
        a(f's_mov_b32 s{s+2}, {size}'); a(f's_mov_b32 s{s+3}, 0x20000')

def stamp(a, slot, vt):
    if not CFG['stamps']: return
    st = S.STMP
    skip = a.label('stamp')
    old = a.in_bg; a.in_bg = True
    a(f's_memrealtime s[{st}:{st+1}]')
    a(f'v_cmp_eq_u32 vcc, 0, v0')
    a(f's_and_saveexec_b64 s[{st+2}:{st+3}], vcc')
    a(f's_waitcnt lgkmcnt(0)')
    a(f's_cbranch_execz {skip}')
    a(f'v_mov_b32 v{vt}, s{st}'); a(f'v_mov_b32 v{vt+1}, s{st+1}')
    a(f's_mul_i32 s{st}, s2, {NSLOT*8}'); a(f's_add_u32 s{st}, s{st}, {WS_STAMP + slot*8}')
    a(f'v_mov_b32 v{vt+2}, s{st}')
    a.lines.append(f'global_store_dwordx2 v{vt+2}, v[{vt}:{vt+1}], s[{S.WS}:{S.WS+1}]')
    a(f'{skip}:')
    a(f's_mov_b64 exec, s[{st+2}:{st+3}]')
    a.in_bg = old
    a.nobg('s_waitcnt vmcnt(0)') if CFG['stamps'] == 2 else None

def table_base(a, s, label):
    l = a.label('pc')
    a(f's_getpc_b64 s[{s}:{s+1}]'); a(f'{l}:')
    a(f's_add_u32 s{s}, s{s}, {label}-{l}'); a(f's_addc_u32 s{s+1}, s{s+1}, 0')

def table_load(a, s, voff, dsts, g0=0):
    cur = 0
    for n, dst in enumerate(dsts):
        g = g0 + n
        while g * 1024 - cur >= 4096:
            a(f'v_add_u32 v{voff}, 4096, v{voff}'); cur += 4096
        a(f'global_load_dwordx4 {dst}, v{voff}, s[{s}:{s+1}] offset:{g*1024-cur}')

def publish(a, off_expr_lines, s_off, vt):
    skip = a.label('pub')
    a(f's_cmp_lg_u32 s{S.WAVE}, 0'); a(f's_cbranch_scc1 {skip}')
    for l in off_expr_lines: a(l)
    a('s_mov_b64 exec, 1')
    a(f'v_mov_b32 v{vt}, s{S.NONCE}'); a(f'v_mov_b32 v{vt+1}, s{s_off}')
    a.lines.append(f'global_store_dword v{vt+1}, v{vt}, s[{S.WS}:{S.WS+1}] sc1')
    a('s_mov_b64 exec, -1')
    a(f'{skip}:')

def poll(a, groups, vt):
    skip, loop, ok = a.label('poll_skip'), a.label('poll'), a.label('poll_ok')
    T = S.T
    a(f's_cmp_lg_u32 s{S.WAVE}, 0'); a(f's_cbranch_scc1 {skip}')
    loads = []
    nv = 0
    for (lines, count) in groups:
        for l in lines: a(l)
        for c0 in range(0, count, 64):
            n = min(64, count - c0)
            va = vt + 2 * nv
            a(f'v_and_b32 v{va}, 63, v0')
            if n < 64: a(f'v_min_u32 v{va}, {n-1}, v{va}')
            a(f'v_lshlrev_b32 v{va}, 7, v{va}')
            a(f'v_add_u32 v{va}, s{T}, v{va}')
            if c0: a(f'v_add_u32 v{va}, {c0*128}, v{va}')
            loads.append(va); nv += 1
    a(f's_mov_b32 s{T+1}, 0')
    a(f'{loop}:')
    for va in loads:
        a.lines.append(f'global_load_dword v{va+1}, v{va}, s[{S.WS}:{S.WS+1}] sc1')
    a('s_waitcnt vmcnt(0)')
    first = True
    for va in loads:
        a(f'v_xor_b32 v{va+1}, s{S.NONCE}, v{va+1}')
        if not first: a(f'v_or_b32 v{loads[0]+1}, v{loads[0]+1}, v{va+1}')
        first = False
    a(f'v_cmp_eq_u32 vcc, 0, v{loads[0]+1}')
    a('s_nop 4')
    a('s_cmp_eq_u64 vcc, -1'); a(f's_cbranch_scc1 {ok}')
    a(f's_add_u32 s{T+1}, s{T+1}, 1'); a(f's_cmp_lt_u32 s{T+1}, {CFG["spin"]}'); a(f's_cbranch_scc1 {loop}')
    a(f'{ok}:')
    a(f'{skip}:')
    a('s_barrier')

class V:
    LANE = 1
    P0, P1, Q0, Q1 = 2, 3, 4, 5
    RA0, RA1, RB0, RB1 = 6, 7, 8, 9
    FR = 12
    FQ = 28
    T = 44
    ACC = 64
    VD = 128

def dma_offsets(a, dst0, dst1, stride, s_col):
    L, T = V.LANE, V.T
    a(f'v_lshrrev_b32 v{T}, 3, v{L}'); a(f'v_and_b32 v{T+1}, 7, v{L}')
    a(f'v_lshlrev_b32 v{T+2}, 1, v{T}'); a(f'v_and_b32 v{T+2}, 4, v{T+2}')
    a(f'v_xor_b32 v{T+1}, v{T+1}, v{T+2}'); a(f'v_lshlrev_b32 v{T+1}, 4, v{T+1}')
    a(f's_mov_b32 s{S.T}, {stride}')
    a(f'v_mad_u32_u24 v{dst0}, v{T}, s{S.T}, v{T+1}')
    a(f'v_add_u32 v{dst0}, s{s_col}, v{dst0}')
    a(f'v_add_u32 v{dst1}, {8*stride-1024}, v{dst0}')

def read_addresses(a):
    L, T = V.LANE, V.T
    a(f'v_lshrrev_b32 v{T}, 5, v{L}'); a(f'v_lshlrev_b32 v{T}, 3, v{T}')
    a(f'v_bfe_u32 v{T+1}, v{L}, 2, 2'); a(f'v_add_u32 v{T}, v{T}, v{T+1}'); a(f'v_lshlrev_b32 v{T}, 7, v{T}')
    a(f'v_bfe_u32 v{T+2}, v{L}, 4, 1'); a(f'v_lshlrev_b32 v{T+2}, 5, v{T+2}')
    a(f'v_and_b32 v{T+3}, 3, v{L}'); a(f'v_lshl_add_u32 v{T+2}, v{T+3}, 3, v{T+2}')
    a(f'v_lshlrev_b32 v{T+1}, 5, v{T+1}'); a(f'v_and_b32 v{T+1}, 64, v{T+1}'); a(f'v_or_b32 v{T+2}, v{T+2}, v{T+1}')
    a(f'v_add3_u32 v{T}, v{T}, v{T+2}, s{S.RING}')
    a(f's_lshl_b32 s{S.T}, s{S.WAVE}, 6'); a(f's_and_b32 s{S.T}, s{S.T}, 64')
    a(f'v_xor_b32 v{V.RA0}, s{S.T}, v{T}'); a(f'v_xor_b32 v{V.RA1}, 64, v{V.RA0}')
    a(f's_lshl_b32 s{S.T}, s{S.WAVE}, 5'); a(f's_and_b32 s{S.T}, s{S.T}, 64')
    a(f'v_xor_b32 v{V.RB0}, s{S.T}, v{T}'); a(f'v_xor_b32 v{V.RB1}, 64, v{V.RB0}')

def dma_groups(slot, v0, v1, srd_, so, stride, mods):
    g0 = [f's_add_u32 m0, s{S.RING}, {slot*2048}', 's_nop 0',
          f'buffer_load_dwordx4 v{v0}, s[{srd_}:{srd_+3}], s{so} offen {mods} lds']
    g1 = [f'buffer_load_dwordx4 v{v1}, s[{srd_}:{srd_+3}], s{so} offen offset:1024 {mods} lds',
          f's_add_u32 s{so}, s{so}, {stride if isinstance(stride, str) else 64*stride}']
    return g0, g1

def tile_reads(a, slot, side, dst):
    for t in range(2):
        ra = (V.RA0, V.RA1, V.RB0, V.RB1)[side * 2 + t]
        for q in range(2):
            a(f'ds_read_b64_tr_b16 {dst(t, q)}, v{ra} offset:{slot*2048 + q*512}')

def vpair(base): return lambda t, q: f'v[{base+4*t+2*q}:{base+4*t+2*q+1}]'
def apair(base): return lambda t, q: f'a[{base+4*t+2*q}:{base+4*t+2*q+1}]'

class Preload:
    def __init__(self, nsteps, srd_, stride, mods, slots):
        self.n, self.srd, self.stride, self.mods, self.slots = nsteps, srd_, stride, mods, list(slots)
        self.issued = 0; self.done = 0; self.h = {}; self.slot = {}; self.free = list(slots)
    def issue_groups(self, k):
        out = []
        for _ in range(k):
            if self.issued >= self.n or not self.free: break
            u = self.issued; self.issued += 1
            sl = self.free.pop(0); self.slot[u] = sl
            g0, g1 = dma_groups(sl, V.Q0, V.Q1, self.srd, S.SOB, self.stride, self.mods)
            def mk(u, g1):
                def f(a):
                    for l in g1: a(l)
                    self.h[u] = a.mark()
                return f
            out += [g0, mk(u, g1)]
        return out
    def issue(self, a, k):
        for g in self.issue_groups(k):
            g(a) if callable(g) else [a(l) for l in g]
    def drain(self, a, upto=None, more_slots=()):
        self.free += list(more_slots)
        upto = self.n if upto is None else upto
        self.issue(a, len(self.free))
        pend = None
        while self.done < upto:
            u = self.done
            a.wait_vm(self.h[u])
            tile_reads(a, self.slot[u], 1, apair(8 * u))
            if pend is not None:
                a('s_waitcnt lgkmcnt(4)')
                self.free.append(self.slot[pend]); self.issue(a, 1)
            pend = u
            self.done += 1
        a('s_waitcnt lgkmcnt(0)')
        if pend is not None: self.free.append(self.slot[pend])

def mfma_step(fs, qreg):
    f = V.FR + 8 * fs
    out = []
    for nt in range(2):
        for mt in range(2):
            acc = V.ACC + (nt * 2 + mt) * 16
            out.append(f'v_mfma_f32_32x32x16_bf16 v[{acc}:{acc+15}], v[{f+4*mt}:{f+4*mt+3}], {qreg(nt)}, v[{acc}:{acc+15}]')
    return out

def stream_loop(a, steps, depth, bg_extra=()):
    items = []
    for u, st in enumerate(steps):
        for it in st['items']: items.append((u, it))
    nxt = 0; free = list(range(NRING)); slot = {}; h = {}
    def issue_one():
        nonlocal nxt
        u, it = items[nxt]; key = (u, it[0]); nxt += 1
        sl = free.pop(0); slot[key] = sl
        pre = it[7] if len(it) > 7 else []
        for l in pre: a(l)
        g0, g1 = dma_groups(sl, it[1], it[2], it[3], it[4], it[5], it[6])
        for l in g0 + g1: a(l)
        h[key] = a.mark()
    def reads(u):
        fs = u % 2
        for it in steps[u]['items']:
            key = (u, it[0])
            if it[0] == 0: tile_reads(a, slot[key], 0, vpair(V.FR + 8 * fs))
            else: tile_reads(a, slot[key], 1, vpair(V.FQ + 8 * fs))
    def last_handle(u): return max(h[(u, it[0])] for it in steps[u]['items'])
    for i in range(64): a(f'v_mov_b32 v{V.ACC+i}, 0')
    inflight = lambda: NRING - len(free)
    while nxt < len(items) and inflight() < depth: issue_one()
    for g in bg_extra:
        g(a) if callable(g) else [a(l) for l in g]
    a.wait_vm(last_handle(0))
    reads(0)
    n = len(steps)
    for u in range(n):
        fs = u % 2
        q = steps[u]['q']
        qreg = (lambda nt, q=q: f'a[{8*q+4*nt}:{8*q+4*nt+3}]') if q is not None else (lambda nt, fs=fs: f'v[{V.FQ+8*fs+4*nt}:{V.FQ+8*fs+4*nt+3}]')
        m = mfma_step(fs, qreg)
        a('s_waitcnt lgkmcnt(0)')
        a(m[0])
        for it in steps[u]['items']: free.append(slot[(u, it[0])])
        while nxt < len(items) and inflight() < depth and free: issue_one()
        a(m[1])
        if u + 1 < n:
            a.wait_vm(last_handle(u + 1))
            reads(u + 1)
        a(m[2]); a(m[3])

def reduce_partials(a, bg=None):
    L, T = V.LANE, V.T
    a(f'v_lshlrev_b32 v{T}, 4, v{L}')
    a(f'v_add_u32 v{T+1}, s{S.RING}, v{T}')
    for t in range(1, 4):
        a(f's_xor_b32 s{S.T}, s{S.WAVE}, {t}'); a(f's_mul_i32 s{S.T}, s{S.T}, {RINGB}')
        a(f'v_add_u32 v{T+1+t}, s{S.T}, v{T}')
    a('s_nop 7')
    for t in range(1, 4):
        for i in range(4):
            r = V.ACC + t*16 + i*4
            a(f'ds_write_b128 v{T+1}, v[{r}:{r+3}] offset:{(t-1)*4096+i*1024}')
    a('s_waitcnt lgkmcnt(0)')
    a('s_barrier')
    for t in range(1, 4):
        for i in range(4):
            r = V.ACC + t*16 + i*4
            a(f'ds_read_b128 v[{r}:{r+3}], v{T+1+t} offset:{(t-1)*4096+i*1024}')
    a('s_waitcnt lgkmcnt(8)')
    for i in range(16): a(f'v_add_f32 v{V.VD+i}, v{V.ACC+i}, v{V.ACC+16+i}')
    a('s_waitcnt lgkmcnt(4)')
    for i in range(16): a(f'v_add_f32 v{V.VD+i}, v{V.VD+i}, v{V.ACC+32+i}')
    a('s_waitcnt lgkmcnt(0)')
    for i in range(16): a(f'v_add_f32 v{V.VD+i}, v{V.VD+i}, v{V.ACC+48+i}')

def row_sum(a, v, t):
    for n in (8, 4, 2, 1):
        a('s_nop 1')
        a(f'v_add_f32_dpp v{v}, v{v}, v{v} row_ror:{n} row_mask:0xf bank_mask:0xf')
    a(f'v_mov_b32 v{t}, v{v}')
    a('s_nop 1')
    a(f'v_permlane32_swap_b32 v{v}, v{t}')
    a('s_nop 0')
    a(f'v_add_f32 v{v}, v{v}, v{t}')

def rbf(a, d, s):
    a(f'v_cvt_pk_bf16_f32 v{d}, v{s}, v{s}')
    a(f'v_lshlrev_b32 v{d}, 16, v{d}')

def layernorm(a, X, P, T, unpack):
    t0, t1, t2, t3 = T, T + 1, T + 2, T + 3
    a(f'v_add_f32 v{t0}, v{X}, v{X+1}'); a(f'v_add_f32 v{t1}, v{X+2}, v{X+3}')
    for i in range(4, 16, 2):
        a(f'v_add_f32 v{t0}, v{t0}, v{X+i}'); a(f'v_add_f32 v{t1}, v{t1}, v{X+i+1}')
    a(f'v_add_f32 v{t0}, v{t0}, v{t1}')
    row_sum(a, t0, t1)
    a(f'v_mul_f32 v{t0}, 0x3b000000, v{t0}')
    rbf(a, t2, t0)
    a(f'v_sub_f32 v{t3}, v{t0}, v{t2}')
    for i in range(16):
        a(f'v_sub_f32 v{X+i}, v{X+i}, v{t2}')
    a(f'v_mul_f32 v{t0}, v{X}, v{X}'); a(f'v_mul_f32 v{t1}, v{X+1}, v{X+1}')
    for i in range(2, 16, 2):
        a(f'v_fmac_f32 v{t0}, v{X+i}, v{X+i}'); a(f'v_fmac_f32 v{t1}, v{X+i+1}, v{X+i+1}')
    a(f'v_add_f32 v{t0}, v{t0}, v{t1}')
    row_sum(a, t0, t1)
    a(f'v_mul_f32 v{t0}, 0x3b000000, v{t0}')
    a(f'v_fma_f32 v{t0}, -v{t3}, v{t3}, v{t0}')
    a(f'v_max_f32 v{t0}, 0, v{t0}')
    rbf(a, t0, t0)
    a(f'v_add_f32 v{t0}, 0x3727c5ac, v{t0}')
    rbf(a, t0, t0)
    a(f'v_sqrt_f32 v{t0}, v{t0}')
    a('s_nop 0')
    rbf(a, t0, t0)
    a(f'v_rcp_f32 v{t0}, v{t0}')
    for q in range(8):
        a(f'v_cvt_pk_bf16_f32 v{P+q}, v{X+2*q}, v{X+2*q+1}')
    for q in range(8):
        a(f'v_lshlrev_b32 v{X+2*q}, 16, v{P+q}')
        a(f'v_and_b32 v{X+2*q+1}, 0xffff0000, v{P+q}')
    for i in range(16):
        a(f'v_mul_f32 v{X+i}, v{X+i}, v{t0}')
    for q in range(8):
        a(f'v_cvt_pk_bf16_f32 v{P+q}, v{X+2*q}, v{X+2*q+1}')
    if unpack:
        for q in range(8):
            a(f'v_lshlrev_b32 v{X+2*q}, 16, v{P+q}')
            a(f'v_and_b32 v{X+2*q+1}, 0xffff0000, v{P+q}')

def finv_job(a, R):
    skip = a.label('finv')
    a(f's_cmp_lg_u32 s{S.WAVE}, 3'); a(f's_cbranch_scc1 {skip}')
    srd(a, S.D, S.WS, WS_FINV, 512 * 1024)
    L = V.LANE
    for e in range(2):
        t = S.T
        a(f's_mov_b32 s{t}, s2')
        a(f's_mov_b32 s{t+1}, {128*e}')
        a(f's_mov_b32 s{t+2}, 0x36000000')
        a('s_cmp_eq_u32 s2, 0')
        a(f's_cselect_b32 s{t+2}, 0x35800000, s{t+2}')
        if e == 1:
            a(f's_cselect_b32 s{t}, 0x100, s{t}')
            a(f's_cselect_b32 s{t+1}, 0, s{t+1}')
        a(f'v_lshlrev_b32 v{R}, 3, v{L}')
        a(f'v_mul_u32_u24 v{R}, s{t}, v{R}'); a(f'v_add_u32 v{R}, s{t+1}, v{R}')
        for k in range(8):
            r = R + 2 + k
            a(f'v_and_b32 v{r}, 511, v{R}'); a(f'v_cvt_f32_u32 v{r}, v{r}'); a(f'v_mul_f32 v{r}, 0x3b000000, v{r}')
            a(f'v_cos_f32 v{r}, v{r}'); a(f'v_add_u32 v{R}, s{t}, v{R}'); a(f'v_mul_f32 v{r}, s{t+2}, v{r}')
        o = R + 12 + 4*e
        for q in range(4): a(f'v_cvt_pk_bf16_f32 v{o+q}, v{R+2+2*q}, v{R+3+2*q}')
        a(f's_lshl_b32 s{t+3}, s2, 11'); a(f's_add_u32 s{t+3}, s{t+3}, {1024*e}')
        a(f'v_lshlrev_b32 v{R+1}, 4, v{L}')
        a.lines.append(f'buffer_store_dwordx4 v[{o}:{o+3}], v{R+1}, s[{S.D}:{S.D+3}], s{t+3} offen sc1')
    a(f'{skip}:')

def ab_loads(a, R):
    skip = a.label('abl')
    a(f's_cmp_lg_u32 s{S.WAVE}, 2'); a(f's_cbranch_scc1 {skip}')
    L = V.LANE
    a(f's_lshl_b32 s{S.T}, s2, 3')
    a(f'v_and_b32 v{R}, 7, v{L}'); a(f'v_add_u32 v{R}, s{S.T}, v{R}')
    a(f'v_sub_u32 v{R+1}, 0x800, v{R}'); a(f'v_and_b32 v{R+1}, 0x7ff, v{R+1}')
    a(f's_movk_i32 s{S.T}, 514')
    a(f'v_mul_lo_u32 v{R+2}, v{R}, s{S.T}'); a(f'v_mul_lo_u32 v{R+3}, v{R+1}, s{S.T}')
    for n, (v, s, off) in enumerate([(2, S.B, 0), (3, S.B, 0), (2, S.B, 512), (3, S.B, 512), (2, S.C, 0), (3, S.C, 0), (2, S.C, 512), (3, S.C, 512)]):
        a.lines.append(f'buffer_load_ushort v{R+4+n}, v{R+v}, s[{s}:{s+3}], 0 offen offset:{off}')
    a(f'{skip}:')

def ab_finish(a, R):
    with a.atomic(): ab_finish_(a, R)
def ab_finish_(a, R):
    skip = a.label('abf')
    a(f's_cmp_lg_u32 s{S.WAVE}, 2'); a(f's_cbranch_scc1 {skip}')
    for n in range(8): a(f'v_lshlrev_b32 v{R+4+n}, 16, v{R+4+n}')
    a(f'v_add_f32 v{R+2}, v{R+4}, v{R+5}'); a(f'v_add_f32 v{R+3}, v{R+6}, v{R+7}')
    a(f'v_sub_f32 v{R+4}, v{R+8}, v{R+9}'); a(f'v_sub_f32 v{R+5}, v{R+10}, v{R+11}')
    a(f'v_add_f32 v{R+6}, v{R+2}, v{R+3}'); a(f'v_add_f32 v{R+7}, v{R+4}, v{R+5}')
    a(f'v_sub_f32 v{R+8}, v{R+2}, v{R+3}'); a(f'v_sub_f32 v{R+9}, v{R+4}, v{R+5}')
    for n in range(4): a(f'v_mul_f32 v{R+6+n}, 0x3e800000, v{R+6+n}')
    a(f'v_cvt_pk_bf16_f32 v{R+2}, v{R+6}, v{R+7}'); a(f'v_cvt_pk_bf16_f32 v{R+3}, v{R+8}, v{R+9}')
    a(f'v_and_b32 v{R+4}, 1, v{R}'); a(f'v_lshlrev_b32 v{R+4}, 8, v{R+4}')
    a(f'v_lshrrev_b32 v{R+5}, 8, v{R}'); a(f'v_lshl_add_u32 v{R+4}, v{R+5}, 5, v{R+4}')
    a(f'v_bfe_u32 v{R+5}, v{R}, 1, 5'); a(f'v_add_u32 v{R+4}, v{R+4}, v{R+5}')
    a(f'v_bfe_u32 v{R+5}, v{R}, 6, 2'); a(f'v_lshlrev_b32 v{R+5}, 2, v{R+5}'); a(f'v_lshl_add_u32 v{R+4}, v{R+4}, 4, v{R+5}')
    srd(a, S.D, S.WS, WS_AL, 0x4000)
    a('s_mov_b64 exec, 0xff')
    a.lines.append(f'buffer_store_dword v{R+2}, v{R+4}, s[{S.D}:{S.D+3}], 0 offen sc1')
    a(f'v_add_u32 v{R+4}, {WS_BE-WS_AL}, v{R+4}')
    a.lines.append(f'buffer_store_dword v{R+3}, v{R+4}, s[{S.D}:{S.D+3}], 0 offen sc1')
    a('s_mov_b64 exec, -1')
    a(f'{skip}:')

def phase1(a, pre):
    L = V.LANE
    VO, VT, VE = 10, 11, 44
    X, XA = 128, 144
    C32, NS32, TC, TS, A2R, A2I = 152, 160, 168, 176, 184, 188
    D1R, D1I = 192, 208
    BR, BI = 224, 232
    T = 240
    WQ = 64
    AB = 96
    FI = 108
    t = S.T
    table_base(a, S.TAB, 'tab_k1')
    for i in range(16): a(f'v_mov_b32 v{X+i}, 0')
    a(f's_lshl_b32 s{t+8}, s2, 2'); a(f's_add_u32 s{t+8}, s{t+8}, s{S.WAVE}')
    a(f'v_bfe_u32 v{T}, v{L}, 4, 1'); a(f'v_lshlrev_b32 v{T}, 10, v{T}'); a(f'v_add_u32 v{T}, s{t+8}, v{T}')
    a(f'v_lshlrev_b32 v{T}, 10, v{T}'); a(f'v_and_b32 v{T+1}, 15, v{L}'); a(f'v_lshl_add_u32 v{T}, v{T+1}, 1, v{T}')
    a(f'v_lshrrev_b32 v{T+1}, 5, v{L}'); a(f'v_lshl_add_u32 v{VO}, v{T+1}, 7, v{T}')
    a(f'v_lshlrev_b32 v{VT}, 4, v{L}')
    srd(a, S.A, S.X, 0, 2048 * 1024)
    for b in range(2):
        for jj in range(8):
            a(f'buffer_load_short_d16_hi v{X+8*b+jj}, v{VO}, s[{S.A}:{S.A+3}], 0 offen offset:{512*b+256*(jj//4)+32*(jj%4)} {CFG["inmod"]}')
    hx = a.mark()
    table_load(a, S.TAB, VT, [f'v[{r}:{r+3}]' for r in range(C32, C32 + 40, 4)])
    htab = a.mark()
    srd(a, S.B, S.WR, 0, 2048 * 514); srd(a, S.C, S.WI, 0, 2048 * 514)
    a(f's_lshr_b32 s{t}, s{S.WAVE}, 1'); a(f's_lshl_b32 s{t+1}, s2, 1'); a(f's_add_u32 s{t}, s{t}, s{t+1}')
    a(f's_and_b32 s{t+1}, s{t}, 63'); a(f's_lshr_b32 s{t+2}, s{t}, 6')
    a(f's_lshl_b32 s{t+3}, s{t+2}, 8'); a(f's_add_u32 s{t+3}, s{t+3}, s{t+1}'); a(f's_mul_i32 s{t+3}, s{t+3}, 514')
    a(f's_and_b32 s{t+4}, s{S.WAVE}, 1'); a(f's_lshl_b32 s{t+5}, s{t+4}, 8'); a(f's_add_u32 s{t+3}, s{t+3}, s{t+5}')
    a(f'v_lshlrev_b32 v{WQ}, 2, v{L}'); a(f'v_add_u32 v{WQ}, s{t+3}, v{WQ}')
    for j in range(4):
        a(f's_mov_b32 s{t+5}, {j*64*514}')
        a(f'buffer_load_dword v{WQ+2+j}, v{WQ}, s[{S.B}:{S.B+3}], s{t+5} offen {CFG["inmod"]}')
        a(f'buffer_load_dword v{WQ+6+j}, v{WQ}, s[{S.C}:{S.C+3}], s{t+5} offen {CFG["inmod"]}')
    hw = a.mark()
    a(f's_and_b32 s{t+5}, s{t}, 1'); a(f's_lshl_b32 s{t+5}, s{t+5}, 8'); a(f's_lshl_b32 s{t+6}, s{t+2}, 5'); a(f's_add_u32 s{t+5}, s{t+5}, s{t+6}')
    a(f's_lshr_b32 s{t+6}, s{t+1}, 1'); a(f's_add_u32 s{t+5}, s{t+5}, s{t+6}'); a(f's_lshl_b32 s{t+5}, s{t+5}, 7')
    a(f's_lshl_b32 s{t+6}, s{t+4}, 20'); a(f's_add_u32 s{t+5}, s{t+5}, s{t+6}')
    a(f'v_lshrrev_b32 v{WQ+1}, 3, v{L}'); a(f'v_lshlrev_b32 v{WQ+1}, 16, v{WQ+1}'); a(f'v_and_b32 v{WQ}, 7, v{L}')
    a(f'v_lshl_add_u32 v{WQ+1}, v{WQ}, 4, v{WQ+1}'); a(f'v_add_u32 v{WQ+1}, s{t+5}, v{WQ+1}')
    ab_loads(a, AB)
    pre.issue(a, CFG['early'])
    finv_job(a, FI)
    a(f'v_cvt_f32_u32 v{T+4}, s{t+8}'); a(f'v_mul_f32 v{T+4}, 0x3a000000, v{T+4}')
    a(f'v_cos_f32 v{T+5}, v{T+4}'); a(f'v_sin_f32 v{T+6}, v{T+4}')
    a(f's_lshl_b32 s{t+9}, s{S.WAVE}, 12'); a(f's_add_u32 s{t+9}, s{t+9}, {LDS_EX}')
    stamp(a, 1, T)
    a.wait_vm(hx)
    stamp(a, 2, T)
    a.bg_start(pre.issue_groups(NRING), 12)
    layernorm(a, X, XA, T, True)
    a.wait_vm(htab)
    for b in range(2):
        c = '0' if b == 0 else f'v[{D1R}:{D1R+15}]'
        a(f'v_mfma_f32_32x32x16_bf16 v[{D1R}:{D1R+15}], v[{XA+4*b}:{XA+4*b+3}], v[{C32+4*b}:{C32+4*b+3}], {c}')
        c = '0' if b == 0 else f'v[{D1I}:{D1I+15}]'
        a(f'v_mfma_f32_32x32x16_bf16 v[{D1I}:{D1I+15}], v[{XA+4*b}:{XA+4*b+3}], v[{NS32+4*b}:{NS32+4*b+3}], {c}')
    a.wait_vm(hw)
    a(f's_mov_b32 s{t+10}, 0x05040100'); a(f's_mov_b32 s{t+11}, 0x07060302')
    for e in range(2):
        for j in range(4):
            a(f'v_perm_b32 v{WQ+10+4*e+j}, v{WQ+6+j}, v{WQ+2+j}, s{t+10+e}')
    a(f'v_lshlrev_b32 v{VE}, 5, v{L}'); a(f'v_add_u32 v{VE}, s{t+9}, v{VE}')
    a(f'ds_write_b128 v{VE}, v[{WQ+10}:{WQ+13}]'); a(f'ds_write_b128 v{VE}, v[{WQ+14}:{WQ+17}] offset:16')
    a(f'v_lshlrev_b32 v{VE}, 4, v{L}'); a(f'v_add_u32 v{VE}, s{t+9}, v{VE}')
    a(f'ds_read_b128 v[{WQ+20}:{WQ+23}], v{VE}'); a(f'ds_read_b128 v[{WQ+24}:{WQ+27}], v{VE} offset:1024')
    srd(a, S.D, S.WS, WS_WP, 32 * 512 * 128)
    a('s_waitcnt lgkmcnt(0)')
    a(f'buffer_store_dwordx4 v[{WQ+20}:{WQ+23}], v{WQ+1}, s[{S.D}:{S.D+3}], 0 offen sc1')
    a(f's_mov_b32 s{t+5}, {8*65536}')
    a(f'buffer_store_dwordx4 v[{WQ+24}:{WQ+27}], v{WQ+1}, s[{S.D}:{S.D+3}], s{t+5} offen sc1')
    ab_finish(a, AB)
    HP = XA
    layernorm(a, X, HP, T, False)
    a(f'v_bfe_u32 v{T}, v{L}, 4, 1'); a(f'v_mul_u32_u24 v{T}, 1056, v{T}'); a(f'v_and_b32 v{T+1}, 15, v{L}')
    a(f'v_lshl_add_u32 v{T}, v{T+1}, 1, v{T}'); a(f'v_lshrrev_b32 v{T+1}, 5, v{L}'); a(f'v_lshl_add_u32 v{T}, v{T+1}, 7, v{T}')
    a(f'v_add_u32 v{T}, s{t+9}, v{T}')
    for q in range(8):
        b, jq = q // 4, q % 4
        for e in range(2):
            jj = 2 * jq + e
            op = 'ds_write_b16_d16_hi' if e else 'ds_write_b16'
            a(f'{op} v{T}, v{HP+q} offset:{512*b+256*(jj//4)+32*(jj%4)}')
    a(f'ds_read_b128 v[{WQ+20}:{WQ+23}], v{VE}'); a(f'ds_read_b128 v[{WQ+24}:{WQ+27}], v{VE} offset:1056')
    srd(a, S.D, S.WS, WS_H, 2048 * 1024)
    a(f's_lshl_b32 s{t+5}, s{t+8}, 10'); a(f's_add_u32 s{t+6}, s{t+5}, {1024*1024}')
    a(f'v_lshlrev_b32 v{T+1}, 4, v{L}')
    for i in range(4):
        for j in range(4):
            r_, i_ = D1R + 4*i + j, D1I + 4*i + j
            tc, ts = TC + 4*(i % 2) + j, TS + 4*(i % 2) + j
            a(f'v_mul_f32 v{X+j}, v{r_}, v{tc}'); a(f'v_fmac_f32 v{X+j}, v{i_}, v{ts}')
            a(f'v_mul_f32 v{X+4+j}, v{i_}, v{tc}'); a(f'v_fma_f32 v{X+4+j}, -v{r_}, v{ts}, v{X+4+j}')
        a(f'v_cvt_pk_bf16_f32 v{BR+2*i}, v{X}, v{X+1}');   a(f'v_cvt_pk_bf16_f32 v{BR+2*i+1}, v{X+2}, v{X+3}')
        a(f'v_cvt_pk_bf16_f32 v{BI+2*i}, v{X+4}, v{X+5}'); a(f'v_cvt_pk_bf16_f32 v{BI+2*i+1}, v{X+6}, v{X+7}')
        if i == 0:
            a('s_waitcnt lgkmcnt(0)')
            a(f'buffer_store_dwordx4 v[{WQ+20}:{WQ+23}], v{T+1}, s[{S.D}:{S.D+3}], s{t+5} offen sc1')
            a(f'buffer_store_dwordx4 v[{WQ+24}:{WQ+27}], v{T+1}, s[{S.D}:{S.D+3}], s{t+6} offen sc1')
    a('s_nop 1')
    D2 = (D1R, D1I)
    for r in range(2):
        a(f'v_mfma_f32_32x32x16_bf16 v[{D2[r]}:{D2[r]+15}], v[{A2R}:{A2R+3}], v[{BR+4*r}:{BR+4*r+3}], 0')
    for r in range(2):
        a(f'v_mfma_f32_32x32x16_bf16 v[{D2[r]}:{D2[r]+15}], v[{A2I}:{A2I+3}], v[{BI+4*r}:{BI+4*r+3}], v[{D2[r]}:{D2[r]+15}]')
    a.bg_flush()
    a(f'v_and_b32 v{T}, 31, v0'); a(f'v_lshrrev_b32 v{T+1}, 5, v0'); a(f'v_lshrrev_b32 v{T+2}, 2, v{T+1}'); a(f'v_lshlrev_b32 v{T+2}, 10, v{T+2}')
    a(f'v_bfe_u32 v{T+3}, v{T+1}, 1, 1'); a(f'v_lshl_add_u32 v{T}, v{T+3}, 5, v{T}'); a(f'v_lshl_add_u32 v{T}, v{T}, 4, v{T+2}')
    a(f'v_and_b32 v{T+1}, 1, v{T+1}'); a(f'v_lshl_add_u32 v{T}, v{T+1}, 3, v{T}'); a(f'v_add_u32 v{T}, {LDS_EX}, v{T}')
    a(f'v_lshrrev_b32 v{T+1}, 3, v0'); a(f'v_lshlrev_b32 v{T+1}, 15, v{T+1}'); a(f'v_and_b32 v{T+2}, 7, v0')
    a(f'v_lshl_add_u32 v{T+1}, v{T+2}, 4, v{T+1}'); a(f's_lshl_b32 s{t+5}, s2, 7'); a(f'v_add_u32 v{T+1}, s{t+5}, v{T+1}')
    a('s_nop 3')
    a('s_mov_b64 exec, 1')
    a(f'v_mov_b32 v{D2[0]+1}, v{D2[0]+8}'); a(f'v_mov_b32 v{D2[1]+1}, v{D2[1]+8}')
    a('s_mov_b64 exec, -1')
    Z0, DF, Z1 = X, X + 8, XA
    for i in range(8):
        a(f'v_add_f32 v{Z0+i}, v{D2[0]+i}, v{D2[1]+i}'); a(f'v_sub_f32 v{DF+i}, v{D2[0]+i}, v{D2[1]+i}')
    for i in range(0, 8, 2):
        a(f'v_mul_f32 v{Z1+i}, v{DF+i}, v{T+5}'); a(f'v_fmac_f32 v{Z1+i}, v{DF+i+1}, v{T+6}')
        a(f'v_mul_f32 v{Z1+i+1}, v{DF+i+1}, v{T+5}'); a(f'v_fma_f32 v{Z1+i+1}, -v{DF+i}, v{T+6}, v{Z1+i+1}')
    for ip in range(2):
        a(f'ds_write_b128 v{VE}, v[{Z0+4*ip}:{Z0+4*ip+3}] offset:{ip*1024}')
        a(f'ds_write_b128 v{VE}, v[{Z1+4*ip}:{Z1+4*ip+3}] offset:{2048+ip*1024}')
    srd(a, S.D, S.WS, WS_ZB, 2 * 32 * 256 * 128)
    a('s_waitcnt lgkmcnt(0)')
    a('s_barrier')
    G0 = C32
    for par in range(2):
        for w in range(4):
            a(f'ds_read_b64 v[{G0+16*par+2*w}:{G0+16*par+2*w+1}], v{T} offset:{w*4096+par*2048}')
    a(f's_mov_b32 s{t+5}, {32*256*128}')
    for par in range(2):
        g = G0 + 16 * par; o = g + 8
        a(f's_waitcnt lgkmcnt({4*(1-par)})')
        a(f'v_cvt_pk_bf16_f32 v{o}, v{g}, v{g+2}');     a(f'v_cvt_pk_bf16_f32 v{o+1}, v{g+4}, v{g+6}')
        a(f'v_cvt_pk_bf16_f32 v{o+2}, v{g+1}, v{g+3}'); a(f'v_cvt_pk_bf16_f32 v{o+3}, v{g+5}, v{g+7}')
        so = f's{t+5}' if par else '0'
        a(f'buffer_store_dwordx4 v[{o}:{o+3}], v{T+1}, s[{S.D}:{S.D+3}], {so} offen sc1')
    a(f'v_mov_b32 v{T+2}, 0')
    a(f'global_load_dword v{T+3}, v{T+2}, s[{S.DBG}:{S.DBG+1}] sc1')
    stamp(a, 3, T + 4)
    a('s_waitcnt vmcnt(0)')
    lp, ok = a.label('nonce'), a.label('nonce_ok')
    a(f's_mov_b32 s{t}, 0')
    a(f'{lp}:')
    a(f'v_readfirstlane_b32 s{S.NONCE}, v{T+3}')
    a('s_nop 3')
    a(f's_cmp_lg_u32 s{S.NONCE}, 0'); a(f's_cbranch_scc1 {ok}')
    a.lines.append(f'global_load_dword v{T+3}, v{T+2}, s[{S.DBG}:{S.DBG+1}] sc1')
    a('s_waitcnt vmcnt(0)')
    a(f's_add_u32 s{t}, s{t}, 1'); a(f's_cmp_lt_u32 s{t}, {CFG["spin"]}'); a(f's_cbranch_scc1 {lp}')
    a(f'{ok}:')
    a('s_barrier')
    publish(a, [f's_lshl_b32 s{t}, s2, 7', f's_add_u32 s{t}, s{t}, {WS_F1}'], t, T)
    stamp(a, 4, T)

def store_tile_rows(a, O, srd_, row0_lines, s_row0, stride_shift):
    L, T, t = V.LANE, V.T, S.T
    a(f's_lshr_b32 s{t}, s{S.WAVE}, 1'); a(f's_lshl_b32 s{t}, s{t}, 5')
    a(f'v_and_b32 v{T}, 31, v{L}'); a(f'v_add_u32 v{T}, s{t}, v{T}'); a(f'v_mul_u32_u24 v{T}, 144, v{T}')
    a(f's_and_b32 s{t}, s{S.WAVE}, 1'); a(f's_lshl_b32 s{t}, s{t}, 6'); a(f's_add_u32 s{t}, s{t}, {LDS_EX}')
    a(f'v_lshrrev_b32 v{T+1}, 5, v{L}'); a(f'v_lshl_add_u32 v{T}, v{T+1}, 4, v{T}'); a(f'v_add_u32 v{T}, s{t}, v{T}')
    a(f'ds_write_b128 v{T}, v[{O}:{O+3}]'); a(f'ds_write_b128 v{T}, v[{O+4}:{O+7}] offset:32')
    a(f'v_lshrrev_b32 v{T+1}, 3, v{L}'); a(f's_lshl_b32 s{t}, s{S.WAVE}, 4'); a(f'v_add_u32 v{T+1}, s{t}, v{T+1}')
    a(f'v_and_b32 v{T+2}, 7, v{L}'); a(f'v_lshlrev_b32 v{T+2}, 4, v{T+2}')
    a(f'v_mul_u32_u24 v{T+3}, 144, v{T+1}'); a(f'v_add_u32 v{T+3}, v{T+3}, v{T+2}'); a(f'v_add_u32 v{T+3}, {LDS_EX}, v{T+3}')
    for l in row0_lines: a(l)
    a(f'v_lshl_add_u32 v{T+1}, v{T+1}, {stride_shift}, v{T+2}'); a(f'v_add_u32 v{T+1}, s{s_row0}, v{T+1}')
    a.nobg('s_waitcnt lgkmcnt(0)')
    a.nobg('s_barrier')
    a(f'ds_read_b128 v[{O}:{O+3}], v{T+3}'); a(f'ds_read_b128 v[{O+4}:{O+7}], v{T+3} offset:{8*144}')
    a(f's_mov_b32 s{t}, {8 << stride_shift}')
    a.nobg('s_waitcnt lgkmcnt(0)')
    a(f'buffer_store_dwordx4 v[{O}:{O+3}], v{T+1}, s[{srd_}:{srd_+3}], 0 offen sc1')
    a(f'buffer_store_dwordx4 v[{O+4}:{O+7}], v{T+1}, s[{srd_}:{srd_+3}], s{t} offen sc1')

def w2_setup(a):
    t = S.T
    srd(a, S.B, S.W2, 0, 1792 * 4096)
    a(f's_lshl_b32 s{t+1}, s{S.ST}, 7')
    dma_offsets(a, V.Q0, V.Q1, 4096, t + 1)
    a(f's_mul_i32 s{S.SOB}, s{S.WAVE}, {16*4096}')

def gemm1(a):
    L, T, t = V.LANE, V.T, S.T
    a('s_waitcnt vmcnt(0)')
    srd(a, S.A, S.WS, WS_H, 2048 * 1024)
    a(f's_lshl_b32 s{t+1}, s{S.DT}, 7')
    dma_offsets(a, V.P0, V.P1, 1024, t + 1)
    a(f's_mul_i32 s{S.SOA}, s{S.WAVE}, {16*1024}')
    V_B1 = 60
    a(f's_lshr_b32 s{t}, s{S.WAVE}, 1'); a(f's_lshl_b32 s{t}, s{t}, 5'); a(f's_lshl_b32 s{t+1}, s{S.FT}, 6'); a(f's_add_u32 s{t}, s{t}, s{t+1}')
    a(f'v_and_b32 v{T}, 31, v{L}'); a(f'v_add_u32 v{T}, s{t}, v{T}'); a(f'v_lshlrev_b32 v{T}, 1, v{T}')
    a(f'global_load_ushort v{V_B1}, v{T}, s[{S.B1}:{S.B1+1}]')
    pf = []
    if CFG.get('pf2', 1):
        srd(a, S.C, S.W2, 0, 1792 * 4096)
        a(f's_lshl_b32 s{t}, s{S.J}, 2'); a(f's_add_u32 s{t}, s{t}, s{S.WAVE}'); a(f's_lshl_b32 s{t}, s{t}, 4')
        a(f'v_lshrrev_b32 v{T}, 3, v{L}'); a(f'v_add_u32 v{T}, s{t}, v{T}'); a(f'v_lshlrev_b32 v{T}, 12, v{T}')
        a(f'v_and_b32 v{T+1}, 7, v{L}'); a(f'v_lshl_add_u32 v{T}, v{T+1}, 7, v{T}')
        a(f's_lshr_b32 s{t}, s{S.XCD}, 1'); a(f's_lshl_b32 s{t}, s{t}, 10'); a(f'v_add_u32 v61, s{t}, v{T}')
        a(f'v_add_u32 v62, {8*4096}, v61')
        pf = [[f'buffer_load_dword v63, v61, s[{S.C}:{S.C+3}], 0 offen {CFG["wmod"]}'],
              [f'buffer_load_dword v63, v62, s[{S.C}:{S.C+3}], 0 offen {CFG["wmod"]}']]
    steps = [dict(items=[(0, V.P0, V.P1, S.A, S.SOA, 1024, 'sc1')], q=u) for u in range(32)]
    stream_loop(a, steps, CFG.get('depth1', 12), bg_extra=pf)
    stamp(a, 7, T)
    w2_setup(a)
    pre2 = Preload(28, S.B, 4096, CFG['wmod2'], range(6, NRING))
    pre2.issue(a, 4)
    reduce_partials(a)
    a.bg_start(pre2.issue_groups(NRING), 10)
    VD = V.VD
    a(f'v_lshlrev_b32 v{V_B1}, 16, v{V_B1}')
    c0 = -2.0 * 0.7978845608028654 * 1.4426950408889634
    a(f's_mov_b32 s{t+2}, {fb(c0)}'); a(f's_mov_b32 s{t+3}, {fb(c0 * 0.044715)}')
    a(f'v_mov_b32 v61, s{t+2}')
    for q in range(8):
        d0, d1 = VD + 2*q, VD + 2*q + 1
        a(f'v_cvt_pk_bf16_f32 v{T}, v{d0}, v{d1}')
        a(f'v_lshlrev_b32 v{d0}, 16, v{T}'); a(f'v_and_b32 v{d1}, 0xffff0000, v{T}')
        a(f'v_add_f32 v{d0}, v{d0}, v{V_B1}'); a(f'v_add_f32 v{d1}, v{d1}, v{V_B1}')
        a(f'v_cvt_pk_bf16_f32 v{T}, v{d0}, v{d1}')
        a(f'v_lshlrev_b32 v{d0}, 16, v{T}'); a(f'v_and_b32 v{d1}, 0xffff0000, v{T}')
        a(f'v_mul_f32 v{T+1}, v{d0}, v{d0}'); a(f'v_mul_f32 v{T+2}, v{d1}, v{d1}')
        a(f'v_fma_f32 v{T+1}, v{T+1}, s{t+3}, v61'); a(f'v_fma_f32 v{T+2}, v{T+2}, s{t+3}, v61')
        a(f'v_mul_f32 v{T+1}, v{T+1}, v{d0}'); a(f'v_mul_f32 v{T+2}, v{T+2}, v{d1}')
        a(f'v_exp_f32 v{T+1}, v{T+1}'); a(f'v_exp_f32 v{T+2}, v{T+2}')
        a('s_nop 0')
        a(f'v_add_f32 v{T+1}, 1.0, v{T+1}'); a(f'v_add_f32 v{T+2}, 1.0, v{T+2}')
        a(f'v_rcp_f32 v{T+1}, v{T+1}'); a(f'v_rcp_f32 v{T+2}, v{T+2}')
        a('s_nop 0')
        a(f'v_mul_f32 v{d0}, v{d0}, v{T+1}'); a(f'v_mul_f32 v{d1}, v{d1}, v{T+2}')
    a('s_nop 1')
    for p in range(2):
        for j in range(4):
            a(f'v_permlane32_swap_b32 v{VD+8*p+j}, v{VD+8*p+4+j}')
    O = 52
    for p in range(2):
        for jj in range(4):
            a(f'v_cvt_pk_bf16_f32 v{O+4*p+jj}, v{VD+8*p+2*jj}, v{VD+8*p+2*jj+1}')
    a.bg_flush()
    srd(a, S.D, S.WS, WS_GT, 1792 * 1024)
    store_tile_rows(a, O, S.D, [f's_lshl_b32 s{t+4}, s{S.FT}, 16', f's_lshl_b32 s{t+5}, s{S.DT}, 7', f's_add_u32 s{t+4}, s{t+4}, s{t+5}'], t + 4, 10)
    hst = a.mark()
    pre2.free += list(range(6))
    pre2.issue(a, 6)
    a.wait_vm(hst)
    a('s_barrier')
    publish(a, [f's_lshl_b32 s{t}, s{S.DT}, 5', f's_add_u32 s{t}, s{t}, s{S.FT}', f's_lshl_b32 s{t}, s{t}, 7', f's_add_u32 s{t}, s{t}, {WS_F2}'], t, T)
    stamp(a, 8, T)
    pre2.drain(a)

class F:
    L = 1; VT = 2; RZ0 = 3; RW = 5; VY = 6; T = 8
    C, S, NS = 24, 32, 40
    TC, TS = 48, 64
    UC, US = 80, 96
    AR, AI = 112, 120
    DR, DI = 128, 144
    ER, EI = 160, 176
    W = 192
    X2 = 208

def cplx_stage(a, form, conj):
    s_for_re = F.NS if conj else F.S
    s_for_im = F.S if conj else F.NS
    seq = []
    for b in range(2): seq += [(F.DR, F.AR + 4*b, F.C + 4*b), (F.DI, F.AI + 4*b, F.C + 4*b)]
    for b in range(2): seq += [(F.DR, F.AI + 4*b, s_for_re + 4*b), (F.DI, F.AR + 4*b, s_for_im + 4*b)]
    seen = set()
    for (d, x, c) in seq:
        cc = f'v[{d}:{d+15}]' if d in seen else '0'
        seen.add(d)
        if form == 'A': a(f'v_mfma_f32_32x32x16_bf16 v[{d}:{d+15}], v[{x}:{x+3}], v[{c}:{c+3}], {cc}')
        else:           a(f'v_mfma_f32_32x32x16_bf16 v[{d}:{d+15}], v[{c}:{c+3}], v[{x}:{x+3}], {cc}')
    a('s_nop 7'); a('s_nop 3')

def pack4(a, i):
    T = F.T
    a(f'v_cvt_pk_bf16_f32 v{F.AR+2*i}, v{T}, v{T+1}');     a(f'v_cvt_pk_bf16_f32 v{F.AR+2*i+1}, v{T+2}, v{T+3}')
    a(f'v_cvt_pk_bf16_f32 v{F.AI+2*i}, v{T+4}, v{T+5}');   a(f'v_cvt_pk_bf16_f32 v{F.AI+2*i+1}, v{T+6}, v{T+7}')

def cmul_pack(a, cr, ci, conj):
    T = F.T
    for i in range(4):
        for j in range(0, 4, 2):
            n = 4*i + j
            r_, i_, c, s = F.DR + n, F.DI + n, cr + n, ci + n
            P = lambda x: f'v[{x}:{x+1}]'
            a(f'v_pk_mul_f32 {P(T+j)}, {P(r_)}, {P(c)}'); a(f'v_pk_mul_f32 {P(T+4+j)}, {P(i_)}, {P(c)}')
            if conj:
                a(f'v_pk_fma_f32 {P(T+j)}, {P(i_)}, {P(s)}, {P(T+j)} neg_lo:[1,0,0] neg_hi:[1,0,0]')
                a(f'v_pk_fma_f32 {P(T+4+j)}, {P(r_)}, {P(s)}, {P(T+4+j)}')
            else:
                a(f'v_pk_fma_f32 {P(T+j)}, {P(i_)}, {P(s)}, {P(T+j)}')
                a(f'v_pk_fma_f32 {P(T+4+j)}, {P(r_)}, {P(s)}, {P(T+4+j)} neg_lo:[1,0,0] neg_hi:[1,0,0]')
        pack4(a, i)
    a('s_nop 1')

def filter_generic(a):
    T = F.T
    P = lambda x: f'v[{x}:{x+1}]'
    for i in range(4):
        for j in range(0, 4, 2):
            n = 4*i + j
            r_, i_, w = F.DR + n, F.DI + n, F.W + n
            a(f'v_lshlrev_b32 v{T+8}, 16, v{w}'); a(f'v_lshlrev_b32 v{T+9}, 16, v{w+1}')
            a(f'v_and_b32 v{T+10}, 0xffff0000, v{w}'); a(f'v_and_b32 v{T+11}, 0xffff0000, v{w+1}')
            a(f'v_pk_mul_f32 {P(T+j)}, {P(r_)}, {P(T+8)}'); a(f'v_pk_mul_f32 {P(T+4+j)}, {P(i_)}, {P(T+8)}')
            a(f'v_pk_fma_f32 {P(T+j)}, {P(i_)}, {P(T+10)}, {P(T+j)} neg_lo:[1,0,0] neg_hi:[1,0,0]')
            a(f'v_pk_fma_f32 {P(T+4+j)}, {P(r_)}, {P(T+10)}, {P(T+4+j)}')
        pack4(a, i)
    a('s_nop 1')

def filter_special(a, p, SAL):
    T = F.T; L = F.L
    MR = F.X2; BE = F.X2 + 32
    a(f'v_lshlrev_b32 v{T+10}, 4, v{L}'); a(f'v_add_u32 v{T+10}, {p*4096}, v{T+10}')
    for i in range(4):
        a(f'global_load_dwordx4 v[{F.W+4*i}:{F.W+4*i+3}], v{T+10}, s[{SAL}:{SAL+1}] offset:{i*1024} sc1')
    a(f'v_add_u32 v{T+10}, {WS_BE-WS_AL}, v{T+10}')
    for i in range(4):
        a(f'global_load_dwordx4 v[{BE+4*i}:{BE+4*i+3}], v{T+10}, s[{SAL}:{SAL+1}] offset:{i*1024} sc1')
    a(f'v_and_b32 v{T+11}, 31, v{L}'); a(f'v_lshrrev_b32 v{T+12}, 5, v{L}')
    a(f'v_lshl_add_u32 v{T+11}, v{T+12}, 7, v{T+11}')
    a(f'v_lshlrev_b32 v{T+12}, 3, v{T+11}'); a(f'v_add_u32 v{T+12}, {LDS_X}, v{T+12}')
    for i in range(4):
        for j in range(4):
            a(f'ds_write2_b32 v{T+12}, v{F.DR+4*i+j}, v{F.DI+4*i+j} offset0:{64*j} offset1:{64*j+1}')
        if i < 3: a(f'v_add_u32 v{T+12}, 2048, v{T+12}')
    top = 1024 if p == 0 else 1023
    if p == 0:
        a('s_mov_b64 exec, 1')
        a(f'v_mov_b32 v{T+12}, {LDS_X + 1024*8}')
        a(f'ds_write2_b32 v{T+12}, v{F.DR}, v{F.DI} offset0:0 offset1:1')
        a('s_mov_b64 exec, -1')
    a(f'v_sub_u32 v{T+12}, {top - 96}, v{T+11}')
    a(f'v_lshlrev_b32 v{T+12}, 3, v{T+12}'); a(f'v_add_u32 v{T+12}, {LDS_X}, v{T+12}')
    a('s_waitcnt lgkmcnt(0)')
    for i in range(4):
        for j in range(4):
            n = 4*i + j
            a(f'ds_read_b64 v[{MR+2*n}:{MR+2*n+1}], v{T+12} offset:{(3-j)*256}')
        if i < 3: a(f'v_subrev_u32 v{T+12}, 2048, v{T+12}')
    a('s_waitcnt vmcnt(0) lgkmcnt(0)')
    for i in range(4):
        for j in range(4):
            n = 4*i + j
            r_, i_, w, be, mr, mi = F.DR + n, F.DI + n, F.W + n, BE + n, MR + 2*n, MR + 2*n + 1
            a(f'v_lshlrev_b32 v{T+8}, 16, v{w}'); a(f'v_and_b32 v{T+9}, 0xffff0000, v{w}')
            a(f'v_mul_f32 v{T+j}, v{r_}, v{T+8}'); a(f'v_mul_f32 v{T+4+j}, v{i_}, v{T+8}')
            a(f'v_fma_f32 v{T+j}, -v{i_}, v{T+9}, v{T+j}'); a(f'v_fmac_f32 v{T+4+j}, v{r_}, v{T+9}')
            a(f'v_lshlrev_b32 v{T+8}, 16, v{be}'); a(f'v_and_b32 v{T+9}, 0xffff0000, v{be}')
            a(f'v_fmac_f32 v{T+j}, v{mr}, v{T+8}'); a(f'v_fmac_f32 v{T+j}, v{mi}, v{T+9}')
            a(f'v_fmac_f32 v{T+4+j}, v{mr}, v{T+9}'); a(f'v_fma_f32 v{T+4+j}, -v{mi}, v{T+8}, v{T+4+j}')
        pack4(a, i)
    a('s_nop 1')

def fft_role(a):
    L, T, t = F.L, F.T, S.T
    SZ, SW, SY = S.A, S.B, S.C
    KAP, PASS, SAL = t + 8, t + 9, t + 10
    a('s_waitcnt vmcnt(0)')
    table_base(a, S.TAB, 'tab_fft')
    a(f'v_lshlrev_b32 v{F.VT}, 4, v{L}')
    srd(a, SZ, S.WS, WS_ZB, 2 * 32 * 256 * 128)
    srd(a, SW, S.WS, WS_WP, 32 * 512 * 128)
    srd(a, SY, S.WS, WS_YT, 512 * 4096)
    a(f'v_lshrrev_b32 v{T}, 3, v{L}'); a(f'v_and_b32 v{T+1}, 7, v{L}')
    a(f'v_xor_b32 v{T+2}, v{T+1}, v{T}')
    a(f'v_lshrrev_b32 v{T+3}, 1, v{T}'); a(f'v_xor_b32 v{T+3}, v{T+1}, v{T+3}')
    a(f'v_lshlrev_b32 v{T}, 7, v{T}')
    a(f's_lshr_b32 s{t}, s{S.WAVE}, 1'); a(f's_lshl_b32 s{t}, s{t}, 5'); a(f's_add_u32 s{t}, s{t}, s{S.GRP}'); a(f's_lshl_b32 s{t}, s{t}, 15')
    a(f's_and_b32 s{t+1}, s{S.WAVE}, 1'); a(f's_lshl_b32 s{t+1}, s{t+1}, 14'); a(f's_add_u32 s{t}, s{t}, s{t+1}')
    a(f's_lshl_b32 s{t+2}, s{S.WAVE}, 14')
    for n in range(16):
        a(f'v_xor_b32 v{T+4}, {n & 7}, v{T+2}'); a(f'v_lshl_add_u32 v{T+4}, v{T+4}, 4, v{T}')
        a(f's_add_u32 m0, s{t+2}, {LDS_Z + n*1024}'); a(f's_add_u32 s{t+3}, s{t}, {n*1024}')
        a(f'buffer_load_dwordx4 v{T+4}, s[{SZ}:{SZ+3}], s{t+3} offen sc1 lds')
    a(f's_lshl_b32 s{t}, s{S.GRP}, 16'); a(f's_add_u32 s{t}, s{t}, s{t+2}')
    for n in range(16):
        a(f'v_xor_b32 v{T+4}, {4*(n&1)}, v{T+3}'); a(f'v_lshl_add_u32 v{T+4}, v{T+4}, 4, v{T}')
        a(f's_add_u32 m0, s{t+2}, {LDS_W + n*1024}'); a(f's_add_u32 s{t+3}, s{t}, {n*1024}')
        a(f'buffer_load_dwordx4 v{T+4}, s[{SW}:{SW+3}], s{t+3} offen sc1 lds')
    table_load(a, S.TAB, F.VT, [f'v[{r}:{r+3}]' for r in range(F.C, F.C + 88, 4)])
    a(f'v_lshrrev_b32 v{T}, 5, v{L}'); a(f'v_bfe_u32 v{T+1}, v{L}, 2, 2'); a(f'v_lshl_add_u32 v{T}, v{T}, 2, v{T+1}')
    a(f'v_bfe_u32 v{T+1}, v{L}, 4, 1'); a(f'v_and_b32 v{T+2}, 3, v{L}'); a(f'v_lshl_add_u32 v{T+1}, v{T+1}, 2, v{T+2}')
    a(f'v_xor_b32 v{T+2}, v{T}, v{T+1}'); a(f'v_xor_b32 v{T+2}, s{S.WAVE}, v{T+2}'); a(f'v_lshlrev_b32 v{T+2}, 4, v{T+2}')
    a(f'v_lshl_add_u32 v{T}, v{T}, 3, v{T+1}'); a(f'v_lshl_add_u32 v{F.RZ0}, v{T}, 7, v{T+2}')
    a(f'v_bfe_u32 v{T}, v{L}, 1, 3'); a(f'v_xor_b32 v{T}, s{S.WAVE}, v{T}'); a(f'v_lshlrev_b32 v{T}, 4, v{T}')
    a(f'v_lshl_add_u32 v{F.RW}, v{L}, 7, v{T}'); a(f'v_add_u32 v{F.RW}, {LDS_W}, v{F.RW}')
    a(f's_lshl_b32 s{KAP}, s{S.GRP}, 3'); a(f's_add_u32 s{KAP}, s{KAP}, s{S.WAVE}')
    a(f's_lshl_b32 s{t}, s{KAP}, 13')
    a(f'v_and_b32 v{T}, 15, v{L}'); a(f'v_lshlrev_b32 v{T}, 6, v{T}')
    a(f'v_bfe_u32 v{T+1}, v{L}, 4, 1'); a(f'v_lshl_add_u32 v{T}, v{T+1}, 5, v{T}')
    a(f'v_lshrrev_b32 v{T+1}, 5, v{L}'); a(f'v_lshl_add_u32 v{T}, v{T+1}, 4, v{T}')
    a(f'v_add_u32 v{F.VY}, s{t}, v{T}')
    a(f's_add_u32 s{SAL}, s{S.WS}, {WS_AL}'); a(f's_addc_u32 s{SAL+1}, s{S.WS+1}, 0')
    a(f's_mov_b32 s{PASS}, 0')
    a('s_waitcnt vmcnt(0)')
    a('s_barrier')
    stamp(a, 7, T)
    col = a.label('fftcol')
    a(f'{col}:')
    for p in range(2):
        for c in range(2):
            for b in range(2):
                for q in range(2):
                    r = (F.AI if c else F.AR) + 4*b + 2*q
                    a(f'ds_read_b64_tr_b16 v[{r}:{r+1}], v{F.RZ0} offset:{p*32768 + (16*b+8*q)*8*128 + 8*c}')
        for i in range(4):
            a(f'ds_read_b128 v[{F.W+4*i}:{F.W+4*i+3}], v{F.RW} offset:{p*32768 + i*8192}')
        a('s_waitcnt lgkmcnt(4)')
        cplx_stage(a, 'A', False)
        cmul_pack(a, F.TC, F.TS, False)
        cplx_stage(a, 'B', False)
        a('s_waitcnt lgkmcnt(0)')
        sp, jn = a.label('spec'), a.label('join')
        a(f's_cmp_eq_u32 s{KAP}, 0'); a(f's_cbranch_scc1 {sp}')
        filter_generic(a)
        a(f's_branch {jn}')
        a(f'{sp}:')
        filter_special(a, p, SAL)
        a(f'{jn}:')
        cplx_stage(a, 'A', True)
        cmul_pack(a, F.TC, F.TS, True)
        cplx_stage(a, 'A', True)
        if p == 0:
            for n in range(16):
                a(f'v_mov_b32 v{F.ER+n}, v{F.DR+n}'); a(f'v_mov_b32 v{F.EI+n}, v{F.DI+n}')
    P = lambda x: f'v[{x}:{x+1}]'
    for n in range(0, 16, 2):
        r_, i_, c, s = F.DR + n, F.DI + n, F.UC + n, F.US + n
        a(f'v_pk_mul_f32 {P(T)}, {P(r_)}, {P(c)}'); a(f'v_pk_mul_f32 {P(T+2)}, {P(i_)}, {P(c)}')
        a(f'v_pk_fma_f32 {P(T)}, {P(i_)}, {P(s)}, {P(T)} neg_lo:[1,0,0] neg_hi:[1,0,0]')
        a(f'v_pk_fma_f32 {P(T+2)}, {P(r_)}, {P(s)}, {P(T+2)}')
        a(f'v_pk_add_f32 {P(r_)}, {P(F.ER+n)}, {P(T)} neg_lo:[0,1] neg_hi:[0,1]')
        a(f'v_pk_add_f32 {P(i_)}, {P(F.EI+n)}, {P(T+2)} neg_lo:[0,1] neg_hi:[0,1]')
        a(f'v_pk_add_f32 {P(F.ER+n)}, {P(F.ER+n)}, {P(T)}'); a(f'v_pk_add_f32 {P(F.EI+n)}, {P(F.EI+n)}, {P(T+2)}')
    outs = [(F.ER, 0, 0), (F.DR, 0, 2048), (F.EI, 1, 0), (F.DI, 1, 2048)]
    a(f's_movk_i32 s{t}, 0x1000')
    for n_, (src, c, hi) in enumerate(outs):
        a('s_nop 1')
        for pp in range(2):
            for j in range(4): a(f'v_permlane32_swap_b32 v{src+8*pp+j}, v{src+8*pp+4+j}')
        o = F.AR + 8 * (n_ % 2)
        for pp in range(2):
            for jj in range(4): a(f'v_cvt_pk_bf16_f32 v{o+4*pp+jj}, v{src+8*pp+2*jj}, v{src+8*pp+2*jj+1}')
        a('s_nop 1')
        for k in range(4): a(f'v_permlane16_swap_b32 v{o+k}, v{o+4+k}')
        so = f's{t}' if c else '0'
        a.lines.append(f'buffer_store_dwordx4 v[{o}:{o+3}], v{F.VY}, s[{SY}:{SY+3}], {so} offen offset:{hi} sc1')
        a.lines.append(f'buffer_store_dwordx4 v[{o+4}:{o+7}], v{F.VY}, s[{SY}:{SY+3}], {so} offen offset:{hi + 1024} sc1')
    a(f'v_xor_b32 v{F.RZ0}, 64, v{F.RZ0}'); a(f'v_xor_b32 v{F.RW}, 64, v{F.RW}')
    a(f'v_add_u32 v{F.VY}, {4*8192}, v{F.VY}'); a(f's_add_u32 s{KAP}, s{KAP}, 4')
    a(f's_add_u32 s{PASS}, s{PASS}, 1'); a(f's_cmp_lt_u32 s{PASS}, 2'); a(f's_cbranch_scc1 {col}')
    a('s_waitcnt vmcnt(0)')
    a('s_barrier')
    publish(a, [f's_lshl_b32 s{t}, s{S.GRP}, 7', f's_add_u32 s{t}, s{t}, {WS_F3}'], t, T)
    stamp(a, 8, T)

def gemm2(a):
    L, T, t = V.LANE, V.T, S.T
    a(f'v_and_b32 v{L}, 63, v0')
    read_addresses(a)
    srd(a, S.A, S.WS, WS_GT, 2304 * 1024)
    a(f's_lshl_b32 s{t+1}, s{S.DT}, 7')
    dma_offsets(a, V.P0, V.P1, 1024, t + 1)
    a(f's_mul_i32 s{S.SOA}, s{S.WAVE}, {16*1024}')
    srd(a, S.C, S.WS, WS_YT, 512 * 4096)
    a(f's_lshl_b32 s{t+1}, s{S.ST}, 7')
    dma_offsets(a, V.Q0, V.Q1, 4096, t + 1)
    a(f's_mul_i32 s{S.SOB}, s{S.WAVE}, {16*4096}')
    V_XO, V_X, V_B2 = 50, 52, 60
    a(f's_lshr_b32 s{t}, s{S.WAVE}, 1'); a(f's_lshl_b32 s{t}, s{t}, 5'); a(f's_lshl_b32 s{t+1}, s{S.ST}, 6'); a(f's_add_u32 s{t}, s{t}, s{t+1}')
    a(f'v_and_b32 v{T}, 31, v{L}'); a(f'v_add_u32 v{T}, s{t}, v{T}'); a(f'v_lshlrev_b32 v{T+1}, 1, v{T}')
    a('s_waitcnt vmcnt(0)')
    a(f'global_load_ushort v{V_B2}, v{T+1}, s[{S.B2}:{S.B2+1}]')
    a(f's_and_b32 s{t}, s{S.WAVE}, 1'); a(f's_lshl_b32 s{t}, s{t}, 6'); a(f's_lshl_b32 s{t+1}, s{S.DT}, 7'); a(f's_add_u32 s{t}, s{t}, s{t+1}')
    a(f'v_lshrrev_b32 v{T+1}, 5, v{L}'); a(f'v_lshlrev_b32 v{T+1}, 4, v{T+1}')
    a(f'v_lshl_add_u32 v{V_XO}, v{T}, 10, v{T+1}'); a(f'v_add_u32 v{V_XO}, s{t}, v{V_XO}')
    a(f'global_load_dwordx4 v[{V_X}:{V_X+3}], v{V_XO}, s[{S.X}:{S.X+1}]')
    a(f'global_load_dwordx4 v[{V_X+4}:{V_X+7}], v{V_XO}, s[{S.X}:{S.X+1}] offset:32')
    poll(a, [([f's_lshl_b32 s{t}, s{S.DT}, 12', f's_add_u32 s{t}, s{t}, {WS_F2}'], 28), ([f's_mov_b32 s{t}, {WS_F3}'], 32)], 128)
    stamp(a, 9, T)
    steps = []
    for u in range(36):
        it = [(0, V.P0, V.P1, S.A, S.SOA, 1024, 'sc1')]
        if u >= 28: it.append((1, V.Q0, V.Q1, S.C, S.SOB, 4096, 'sc1'))
        steps.append(dict(items=it, q=u if u < 28 else None))
    stream_loop(a, steps, CFG.get('depth3', 12))
    stamp(a, 10, T)
    reduce_partials(a)
    VD = V.VD
    a(f'v_lshlrev_b32 v{V_B2}, 16, v{V_B2}')
    for i in range(16): a(f'v_add_f32 v{VD+i}, v{VD+i}, v{V_B2}')
    a('s_nop 1')
    for p in range(2):
        for j in range(4): a(f'v_permlane32_swap_b32 v{VD+8*p+j}, v{VD+8*p+4+j}')
    for p in range(2):
        for jj in range(4):
            xr = V_X + 4*p + jj
            d0 = VD + 8*p + 2*jj; d1 = d0 + 1
            a(f'v_lshlrev_b32 v{T}, 16, v{xr}'); a(f'v_and_b32 v{T+1}, 0xffff0000, v{xr}')
            a(f'v_add_f32 v{d0}, v{d0}, v{T}'); a(f'v_add_f32 v{d1}, v{d1}, v{T+1}')
            a(f'v_cvt_pk_bf16_f32 v{xr}, v{d0}, v{d1}')
    a(f'global_store_dwordx4 v{V_XO}, v[{V_X}:{V_X+3}], s[{S.OUT}:{S.OUT+1}]')
    a(f'global_store_dwordx4 v{V_XO}, v[{V_X+4}:{V_X+7}], s[{S.OUT}:{S.OUT+1}] offset:32')
    if CFG['stamps']:
        a('s_waitcnt vmcnt(0)')
        stamp(a, 11, T)

def mega(a, name):
    kernel_begin(a, name)
    end, fft, p3 = a.label('end'), a.label('fft'), a.label('p3')
    L, T, t = V.LANE, V.T, S.T
    a('s_cmp_ge_u32 s2, 256'); a(f's_cbranch_scc1 {end}')
    a('s_load_dwordx16 s[4:19], s[0:1], 0')
    a('s_load_dwordx4 s[20:23], s[0:1], 64')
    a('s_load_dwordx2 s[24:25], s[0:1], 80')
    a('v_lshrrev_b32 v1, 6, v0')
    a(f's_and_b32 s{S.XCD}, s2, 7'); a(f's_lshr_b32 s{S.J}, s2, 3')
    a(f'v_readfirstlane_b32 s{S.WAVE}, v1')
    a(f'v_and_b32 v{L}, 63, v0')
    a(f's_and_b32 s{t}, s{S.XCD}, 1'); a(f's_lshl_b32 s{t}, s{t}, 2'); a(f's_and_b32 s{t+1}, s{S.J}, 3'); a(f's_add_u32 s{S.DT}, s{t}, s{t+1}')
    a(f's_lshr_b32 s{t}, s{S.XCD}, 1'); a(f's_lshr_b32 s{t+2}, s{S.J}, 2')
    a(f's_lshl_b32 s{t+3}, s{t}, 3'); a(f's_add_u32 s{S.ST}, s{t+3}, s{t+2}')
    a(f's_mul_i32 s{t+3}, s{t}, 7'); a(f's_add_u32 s{S.FT}, s{t+3}, s{t+2}')
    a(f's_lshl_b32 s{t+3}, s{S.XCD}, 2'); a(f's_add_u32 s{S.GRP}, s{t+3}, s{t+1}')
    a(f's_mul_i32 s{S.RING}, s{S.WAVE}, {RINGB}')
    a('s_waitcnt lgkmcnt(0)')
    stamp(a, 0, T)
    nn = a.label('nn')
    a(f's_or_b32 s{t}, s2, s{S.WAVE}'); a(f's_cmp_lg_u32 s{t}, 0'); a(f's_cbranch_scc1 {nn}')
    a(f's_memrealtime s[{t}:{t+1}]'); a('s_waitcnt lgkmcnt(0)'); a(f's_or_b32 s{t}, s{t}, 1')
    a(f'v_mov_b32 v{T}, s{t}'); a(f'v_mov_b32 v{T+1}, 0')
    a('s_mov_b64 exec, 1')
    a.lines.append(f'global_store_dword v{T+1}, v{T}, s[{S.DBG}:{S.DBG+1}] sc1')
    a('s_mov_b64 exec, -1')
    a(f'{nn}:')
    STR64 = t + 14
    read_addresses(a)
    a(f's_cmp_ge_u32 s{S.J}, 28')
    a(f's_cselect_b32 s{S.B}, s{S.W2}, s{S.W1}'); a(f's_cselect_b32 s{S.B+1}, s{S.W2+1}, s{S.W1+1}')
    a(f's_mov_b32 s{S.B+2}, {2048*3584}'); a(f's_mov_b32 s{S.B+3}, 0x20000')
    a(f's_cselect_b32 s{t+1}, s{S.ST}, s{S.FT}'); a(f's_movk_i32 s{t+2}, 3584'); a(f's_cselect_b32 s{t+2}, 4096, s{t+2}')
    a(f's_lshl_b32 s{t+1}, s{t+1}, 7')
    a(f's_lshl_b32 s{STR64}, s{t+2}, 6')
    a(f'v_lshrrev_b32 v{T}, 3, v{L}'); a(f'v_and_b32 v{T+1}, 7, v{L}'); a(f'v_lshlrev_b32 v{T+2}, 1, v{T}'); a(f'v_and_b32 v{T+2}, 4, v{T+2}')
    a(f'v_xor_b32 v{T+1}, v{T+1}, v{T+2}'); a(f'v_lshlrev_b32 v{T+1}, 4, v{T+1}')
    a(f'v_mad_u32_u24 v{V.Q0}, v{T}, s{t+2}, v{T+1}'); a(f'v_add_u32 v{V.Q0}, s{t+1}, v{V.Q0}')
    a(f's_lshl_b32 s{t+3}, s{t+2}, 3'); a(f's_sub_u32 s{t+3}, s{t+3}, 1024'); a(f'v_add_u32 v{V.Q1}, s{t+3}, v{V.Q0}')
    a(f's_mul_i32 s{S.SOB}, s{S.WAVE}, s{t+2}'); a(f's_lshl_b32 s{S.SOB}, s{S.SOB}, 4')
    pre = Preload(32, PRE_SRD, f's{STR64}', CFG['wmod'], range(NRING))
    for j in range(4): a(f's_mov_b32 s{PRE_SRD+j}, s{S.B+j}')
    phase1(a, pre)
    pre.drain(a)
    stamp(a, 5, T)
    poll(a, [([f's_mov_b32 s{t}, {WS_F1}'], 256)], 128)
    stamp(a, 6, T)
    a(f's_cmp_ge_u32 s{S.J}, 28'); a(f's_cbranch_scc1 {fft}')
    gemm1(a)
    a(f's_branch {p3}')
    a(f'{fft}:')
    fft_role(a)
    a(f'{p3}:')
    gemm2(a)
    a(f'{end}:')
    a('s_endpgm')

PRE_SRD = 76

def tables(a):
    tb.emit(a, 'tab_k1', tb.f32mat('c') + tb.f32mat('ns') + tb.t512() + tb.a2())
    tb.emit(a, 'tab_fft', tb.f32mat('c') + tb.f32mat('s') + tb.f32mat('ns') + tb.t1024() + tb.t2048())

KNAME = 'parallel_sum__spectral_gfnet__mixer_token_mlp__prompt_kernel'
def make(path, **cfg):
    CFG.update(dict(stamps=0, early=12, inmod='nt', wmod='nt', wmod2='', spin=1 << 18, pf2=1, depth1=12, depth3=12))
    CFG.update(cfg)
    a = Em()
    a(HEADER + f'; @launch grid=(256,1,1) block=(256,1,1) lds={LDS_TOTAL}\n' + '.amdgcn_target "amdgcn-amd-amdhsa--gfx950"\n.text')
    mega(a, KNAME)
    tables(a)
    a('.section .rodata,"a"\n.p2align 6')
    a(descriptor(KNAME, 256, 256))
    open(path, 'w').write(a.text())
    build(path, [(KNAME, (256, 1, 1), (256, 1, 1), LDS_TOTAL)])

if __name__ == '__main__':
    o = dict(x.split('=') for x in sys.argv[2:])
    cfg = {k: (int(v) if v.lstrip('-').isdigit() else v.replace('_', ' ')) for k, v in o.items()}
    make(sys.argv[1], **cfg)
```

```python
import sys, struct
from asm2 import *
import tables as tb

WS_BASE = 0
WS_H    = WS_BASE + 0x000000
WS_GT   = WS_BASE + 0x200000
WS_FINV = WS_GT + 1792 * 1024
WS_ZB   = WS_BASE + 0x480000
WS_WP   = WS_BASE + 0x680000
WS_AL   = WS_BASE + 0x880000
WS_BE   = WS_BASE + 0x882000
WS_F1   = WS_BASE + 0x890000
WS_F2   = WS_BASE + 0x898000
WS_F3   = WS_BASE + 0x8A0000
WS_YT   = WS_BASE + 0x900000
WS_STAMP = 0x10000000 - (16 << 20)
NSLOT = 16

NRING = 18
RINGB = NRING * 2048
LDS_EX = 4 * RINGB
LDS_TOTAL = LDS_EX + 16384
LDS_Z, LDS_W, LDS_X = 0, 65536, 131072

class S:
    WAVE = 3
    X, WR, WI, BX, W1, B1, W2, B2, OUT, DBG, WS = 4, 6, 8, 10, 12, 14, 16, 18, 20, 22, 24
    NONCE, XCD, J, RING = 26, 27, 28, 29
    DT, FT, ST, GRP = 30, 31, 32, 33
    A, B, C, D = 36, 40, 44, 48
    SOA, SOB = 52, 53
    TAB = 54
    T = 56
    STMP = 72

CFG = dict(stamps=0, early=12, inmod='nt', wmod='nt', spin=1 << 18)

def fb(x): return '0x%08x' % struct.unpack('<I', struct.pack('<f', x))[0]

def srd(a, s, base, off, size):
    with a.atomic():
        if off:
            a(f's_add_u32 s{s}, s{base}, {off}'); a(f's_addc_u32 s{s+1}, s{base+1}, 0')
        else:
            a(f's_mov_b32 s{s}, s{base}'); a(f's_mov_b32 s{s+1}, s{base+1}')
        a(f's_mov_b32 s{s+2}, {size}'); a(f's_mov_b32 s{s+3}, 0x20000')

def stamp(a, slot, vt):
    if not CFG['stamps']: return
    st = S.STMP
    skip = a.label('stamp')
    old = a.in_bg; a.in_bg = True
    a(f's_memrealtime s[{st}:{st+1}]')
    a(f'v_cmp_eq_u32 vcc, 0, v0')
    a(f's_and_saveexec_b64 s[{st+2}:{st+3}], vcc')
    a(f's_waitcnt lgkmcnt(0)')
    a(f's_cbranch_execz {skip}')
    a(f'v_mov_b32 v{vt}, s{st}'); a(f'v_mov_b32 v{vt+1}, s{st+1}')
    a(f's_mul_i32 s{st}, s2, {NSLOT*8}'); a(f's_add_u32 s{st}, s{st}, {WS_STAMP + slot*8}')
    a(f'v_mov_b32 v{vt+2}, s{st}')
    a.lines.append(f'global_store_dwordx2 v{vt+2}, v[{vt}:{vt+1}], s[{S.WS}:{S.WS+1}]')
    a(f'{skip}:')
    a(f's_mov_b64 exec, s[{st+2}:{st+3}]')
    a.in_bg = old
    a.nobg('s_waitcnt vmcnt(0)') if CFG['stamps'] == 2 else None

def table_base(a, s, label):
    l = a.label('pc')
    a(f's_getpc_b64 s[{s}:{s+1}]'); a(f'{l}:')
    a(f's_add_u32 s{s}, s{s}, {label}-{l}'); a(f's_addc_u32 s{s+1}, s{s+1}, 0')

def table_load(a, s, voff, dsts, g0=0):
    cur = 0
    for n, dst in enumerate(dsts):
        g = g0 + n
        while g * 1024 - cur >= 4096:
            a(f'v_add_u32 v{voff}, 4096, v{voff}'); cur += 4096
        a(f'global_load_dwordx4 {dst}, v{voff}, s[{s}:{s+1}] offset:{g*1024-cur}')

def publish(a, off_expr_lines, s_off, vt):
    skip = a.label('pub')
    a(f's_cmp_lg_u32 s{S.WAVE}, 0'); a(f's_cbranch_scc1 {skip}')
    for l in off_expr_lines: a(l)
    a('s_mov_b64 exec, 1')
    a(f'v_mov_b32 v{vt}, s{S.NONCE}'); a(f'v_mov_b32 v{vt+1}, s{s_off}')
    a.lines.append(f'global_store_dword v{vt+1}, v{vt}, s[{S.WS}:{S.WS+1}] sc1')
    a('s_mov_b64 exec, -1')
    a(f'{skip}:')

def poll(a, groups, vt):
    skip, loop, ok = a.label('poll_skip'), a.label('poll'), a.label('poll_ok')
    T = S.T
    a(f's_cmp_lg_u32 s{S.WAVE}, 0'); a(f's_cbranch_scc1 {skip}')
    loads = []
    nv = 0
    for (lines, count) in groups:
        for l in lines: a(l)
        for c0 in range(0, count, 64):
            n = min(64, count - c0)
            va = vt + 2 * nv
            a(f'v_and_b32 v{va}, 63, v0')
            if n < 64: a(f'v_min_u32 v{va}, {n-1}, v{va}')
            a(f'v_lshlrev_b32 v{va}, 7, v{va}')
            a(f'v_add_u32 v{va}, s{T}, v{va}')
            if c0: a(f'v_add_u32 v{va}, {c0*128}, v{va}')
            loads.append(va); nv += 1
    a(f's_mov_b32 s{T+1}, 0')
    a(f'{loop}:')
    for va in loads:
        a.lines.append(f'global_load_dword v{va+1}, v{va}, s[{S.WS}:{S.WS+1}] sc1')
    a('s_waitcnt vmcnt(0)')
    first = True
    for va in loads:
        a(f'v_xor_b32 v{va+1}, s{S.NONCE}, v{va+1}')
        if not first: a(f'v_or_b32 v{loads[0]+1}, v{loads[0]+1}, v{va+1}')
        first = False
    a(f'v_cmp_eq_u32 vcc, 0, v{loads[0]+1}')
    a('s_nop 4')
    a('s_cmp_eq_u64 vcc, -1'); a(f's_cbranch_scc1 {ok}')
    a(f's_add_u32 s{T+1}, s{T+1}, 1'); a(f's_cmp_lt_u32 s{T+1}, {CFG["spin"]}'); a(f's_cbranch_scc1 {loop}')
    a(f'{ok}:')
    a(f'{skip}:')
    a('s_barrier')

class V:
    LANE = 1
    P0, P1, Q0, Q1 = 2, 3, 4, 5
    RA0, RA1, RB0, RB1 = 6, 7, 8, 9
    FR = 12
    FQ = 28
    T = 44
    ACC = 64
    VD = 128

def dma_offsets(a, dst0, dst1, stride, s_col):
    L, T = V.LANE, V.T
    a(f'v_lshrrev_b32 v{T}, 3, v{L}'); a(f'v_and_b32 v{T+1}, 7, v{L}')
    a(f'v_lshlrev_b32 v{T+2}, 1, v{T}'); a(f'v_and_b32 v{T+2}, 4, v{T+2}')
    a(f'v_xor_b32 v{T+1}, v{T+1}, v{T+2}'); a(f'v_lshlrev_b32 v{T+1}, 4, v{T+1}')
    a(f's_mov_b32 s{S.T}, {stride}')
    a(f'v_mad_u32_u24 v{dst0}, v{T}, s{S.T}, v{T+1}')
    a(f'v_add_u32 v{dst0}, s{s_col}, v{dst0}')
    a(f'v_add_u32 v{dst1}, {8*stride-1024}, v{dst0}')

def read_addresses(a):
    L, T = V.LANE, V.T
    a(f'v_lshrrev_b32 v{T}, 5, v{L}'); a(f'v_lshlrev_b32 v{T}, 3, v{T}')
    a(f'v_bfe_u32 v{T+1}, v{L}, 2, 2'); a(f'v_add_u32 v{T}, v{T}, v{T+1}'); a(f'v_lshlrev_b32 v{T}, 7, v{T}')
    a(f'v_bfe_u32 v{T+2}, v{L}, 4, 1'); a(f'v_lshlrev_b32 v{T+2}, 5, v{T+2}')
    a(f'v_and_b32 v{T+3}, 3, v{L}'); a(f'v_lshl_add_u32 v{T+2}, v{T+3}, 3, v{T+2}')
    a(f'v_lshlrev_b32 v{T+1}, 5, v{T+1}'); a(f'v_and_b32 v{T+1}, 64, v{T+1}'); a(f'v_or_b32 v{T+2}, v{T+2}, v{T+1}')
    a(f'v_add3_u32 v{T}, v{T}, v{T+2}, s{S.RING}')
    a(f's_lshl_b32 s{S.T}, s{S.WAVE}, 6'); a(f's_and_b32 s{S.T}, s{S.T}, 64')
    a(f'v_xor_b32 v{V.RA0}, s{S.T}, v{T}'); a(f'v_xor_b32 v{V.RA1}, 64, v{V.RA0}')
    a(f's_lshl_b32 s{S.T}, s{S.WAVE}, 5'); a(f's_and_b32 s{S.T}, s{S.T}, 64')
    a(f'v_xor_b32 v{V.RB0}, s{S.T}, v{T}'); a(f'v_xor_b32 v{V.RB1}, 64, v{V.RB0}')

def dma_groups(slot, v0, v1, srd_, so, stride, mods):
    g0 = [f's_add_u32 m0, s{S.RING}, {slot*2048}', 's_nop 0',
          f'buffer_load_dwordx4 v{v0}, s[{srd_}:{srd_+3}], s{so} offen {mods} lds']
    g1 = [f'buffer_load_dwordx4 v{v1}, s[{srd_}:{srd_+3}], s{so} offen offset:1024 {mods} lds',
          f's_add_u32 s{so}, s{so}, {stride if isinstance(stride, str) else 64*stride}']
    return g0, g1

def tile_reads(a, slot, side, dst):
    for t in range(2):
        ra = (V.RA0, V.RA1, V.RB0, V.RB1)[side * 2 + t]
        for q in range(2):
            a(f'ds_read_b64_tr_b16 {dst(t, q)}, v{ra} offset:{slot*2048 + q*512}')

def vpair(base): return lambda t, q: f'v[{base+4*t+2*q}:{base+4*t+2*q+1}]'
def apair(base): return lambda t, q: f'a[{base+4*t+2*q}:{base+4*t+2*q+1}]'

class Preload:
    def __init__(self, nsteps, srd_, stride, mods, slots):
        self.n, self.srd, self.stride, self.mods, self.slots = nsteps, srd_, stride, mods, list(slots)
        self.issued = 0; self.done = 0; self.h = {}; self.slot = {}; self.free = list(slots)
    def issue_groups(self, k):
        out = []
        for _ in range(k):
            if self.issued >= self.n or not self.free: break
            u = self.issued; self.issued += 1
            sl = self.free.pop(0); self.slot[u] = sl
            g0, g1 = dma_groups(sl, V.Q0, V.Q1, self.srd, S.SOB, self.stride, self.mods)
            def mk(u, g1):
                def f(a):
                    for l in g1: a(l)
                    self.h[u] = a.mark()
                return f
            out += [g0, mk(u, g1)]
        return out
    def issue(self, a, k):
        for g in self.issue_groups(k):
            g(a) if callable(g) else [a(l) for l in g]
    def drain(self, a, upto=None, more_slots=()):
        self.free += list(more_slots)
        upto = self.n if upto is None else upto
        self.issue(a, len(self.free))
        pend = None
        while self.done < upto:
            u = self.done
            a.wait_vm(self.h[u])
            tile_reads(a, self.slot[u], 1, apair(8 * u))
            if pend is not None:
                a('s_waitcnt lgkmcnt(4)')
                self.free.append(self.slot[pend]); self.issue(a, 1)
            pend = u
            self.done += 1
        a('s_waitcnt lgkmcnt(0)')
        if pend is not None: self.free.append(self.slot[pend])

def mfma_step(fs, qreg):
    f = V.FR + 8 * fs
    out = []
    for nt in range(2):
        for mt in range(2):
            acc = V.ACC + (nt * 2 + mt) * 16
            out.append(f'v_mfma_f32_32x32x16_bf16 v[{acc}:{acc+15}], v[{f+4*mt}:{f+4*mt+3}], {qreg(nt)}, v[{acc}:{acc+15}]')
    return out

def stream_loop(a, steps, depth, bg_extra=()):
    items = []
    for u, st in enumerate(steps):
        for it in st['items']: items.append((u, it))
    nxt = 0; free = list(range(NRING)); slot = {}; h = {}
    def issue_one():
        nonlocal nxt
        u, it = items[nxt]; key = (u, it[0]); nxt += 1
        sl = free.pop(0); slot[key] = sl
        pre = it[7] if len(it) > 7 else []
        for l in pre: a(l)
        g0, g1 = dma_groups(sl, it[1], it[2], it[3], it[4], it[5], it[6])
        for l in g0 + g1: a(l)
        h[key] = a.mark()
    def reads(u):
        fs = u % 2
        for it in steps[u]['items']:
            key = (u, it[0])
            if it[0] == 0: tile_reads(a, slot[key], 0, vpair(V.FR + 8 * fs))
            else: tile_reads(a, slot[key], 1, vpair(V.FQ + 8 * fs))
    def last_handle(u): return max(h[(u, it[0])] for it in steps[u]['items'])
    for i in range(64): a(f'v_mov_b32 v{V.ACC+i}, 0')
    inflight = lambda: NRING - len(free)
    while nxt < len(items) and inflight() < depth: issue_one()
    for g in bg_extra:
        g(a) if callable(g) else [a(l) for l in g]
    a.wait_vm(last_handle(0))
    reads(0)
    n = len(steps)
    for u in range(n):
        fs = u % 2
        q = steps[u]['q']
        qreg = (lambda nt, q=q: f'a[{8*q+4*nt}:{8*q+4*nt+3}]') if q is not None else (lambda nt, fs=fs: f'v[{V.FQ+8*fs+4*nt}:{V.FQ+8*fs+4*nt+3}]')
        m = mfma_step(fs, qreg)
        a('s_waitcnt lgkmcnt(0)')
        a(m[0])
        for it in steps[u]['items']: free.append(slot[(u, it[0])])
        while nxt < len(items) and inflight() < depth and free: issue_one()
        a(m[1])
        if u + 1 < n:
            a.wait_vm(last_handle(u + 1))
            reads(u + 1)
        a(m[2]); a(m[3])

def reduce_partials(a, bg=None):
    L, T = V.LANE, V.T
    a(f'v_lshlrev_b32 v{T}, 4, v{L}')
    a(f'v_add_u32 v{T+1}, s{S.RING}, v{T}')
    for t in range(1, 4):
        a(f's_xor_b32 s{S.T}, s{S.WAVE}, {t}'); a(f's_mul_i32 s{S.T}, s{S.T}, {RINGB}')
        a(f'v_add_u32 v{T+1+t}, s{S.T}, v{T}')
    a('s_nop 7')
    for t in range(1, 4):
        for i in range(4):
            r = V.ACC + t*16 + i*4
            a(f'ds_write_b128 v{T+1}, v[{r}:{r+3}] offset:{(t-1)*4096+i*1024}')
    a('s_waitcnt lgkmcnt(0)')
    a('s_barrier')
    for t in range(1, 4):
        for i in range(4):
            r = V.ACC + t*16 + i*4
            a(f'ds_read_b128 v[{r}:{r+3}], v{T+1+t} offset:{(t-1)*4096+i*1024}')
    a('s_waitcnt lgkmcnt(8)')
    for i in range(16): a(f'v_add_f32 v{V.VD+i}, v{V.ACC+i}, v{V.ACC+16+i}')
    a('s_waitcnt lgkmcnt(4)')
    for i in range(16): a(f'v_add_f32 v{V.VD+i}, v{V.VD+i}, v{V.ACC+32+i}')
    a('s_waitcnt lgkmcnt(0)')
    for i in range(16): a(f'v_add_f32 v{V.VD+i}, v{V.VD+i}, v{V.ACC+48+i}')

def row_sum(a, v, t):
    for n in (8, 4, 2, 1):
        a('s_nop 1')
        a(f'v_add_f32_dpp v{v}, v{v}, v{v} row_ror:{n} row_mask:0xf bank_mask:0xf')
    a(f'v_mov_b32 v{t}, v{v}')
    a('s_nop 1')
    a(f'v_permlane32_swap_b32 v{v}, v{t}')
    a('s_nop 0')
    a(f'v_add_f32 v{v}, v{v}, v{t}')

def rbf(a, d, s):
    a(f'v_cvt_pk_bf16_f32 v{d}, v{s}, v{s}')
    a(f'v_lshlrev_b32 v{d}, 16, v{d}')

def layernorm(a, X, P, T, unpack):
    t0, t1, t2, t3 = T, T + 1, T + 2, T + 3
    a(f'v_add_f32 v{t0}, v{X}, v{X+1}'); a(f'v_add_f32 v{t1}, v{X+2}, v{X+3}')
    for i in range(4, 16, 2):
        a(f'v_add_f32 v{t0}, v{t0}, v{X+i}'); a(f'v_add_f32 v{t1}, v{t1}, v{X+i+1}')
    a(f'v_add_f32 v{t0}, v{t0}, v{t1}')
    row_sum(a, t0, t1)
    a(f'v_mul_f32 v{t0}, 0x3b000000, v{t0}')
    rbf(a, t2, t0)
    a(f'v_sub_f32 v{t3}, v{t0}, v{t2}')
    for i in range(16):
        a(f'v_sub_f32 v{X+i}, v{X+i}, v{t2}')
    a(f'v_mul_f32 v{t0}, v{X}, v{X}'); a(f'v_mul_f32 v{t1}, v{X+1}, v{X+1}')
    for i in range(2, 16, 2):
        a(f'v_fmac_f32 v{t0}, v{X+i}, v{X+i}'); a(f'v_fmac_f32 v{t1}, v{X+i+1}, v{X+i+1}')
    a(f'v_add_f32 v{t0}, v{t0}, v{t1}')
    row_sum(a, t0, t1)
    a(f'v_mul_f32 v{t0}, 0x3b000000, v{t0}')
    a(f'v_fma_f32 v{t0}, -v{t3}, v{t3}, v{t0}')
    a(f'v_max_f32 v{t0}, 0, v{t0}')
    rbf(a, t0, t0)
    a(f'v_add_f32 v{t0}, 0x3727c5ac, v{t0}')
    rbf(a, t0, t0)
    a(f'v_sqrt_f32 v{t0}, v{t0}')
    a('s_nop 0')
    rbf(a, t0, t0)
    a(f'v_rcp_f32 v{t0}, v{t0}')
    for q in range(8):
        a(f'v_cvt_pk_bf16_f32 v{P+q}, v{X+2*q}, v{X+2*q+1}')
    for q in range(8):
        a(f'v_lshlrev_b32 v{X+2*q}, 16, v{P+q}')
        a(f'v_and_b32 v{X+2*q+1}, 0xffff0000, v{P+q}')
    for i in range(16):
        a(f'v_mul_f32 v{X+i}, v{X+i}, v{t0}')
    for q in range(8):
        a(f'v_cvt_pk_bf16_f32 v{P+q}, v{X+2*q}, v{X+2*q+1}')
    if unpack:
        for q in range(8):
            a(f'v_lshlrev_b32 v{X+2*q}, 16, v{P+q}')
            a(f'v_and_b32 v{X+2*q+1}, 0xffff0000, v{P+q}')

def finv_job(a, R):
    skip = a.label('finv')
    a(f's_cmp_lg_u32 s{S.WAVE}, 3'); a(f's_cbranch_scc1 {skip}')
    srd(a, S.D, S.WS, WS_FINV, 512 * 1024)
    L = V.LANE
    for e in range(2):
        t = S.T
        a(f's_mov_b32 s{t}, s2')
        a(f's_mov_b32 s{t+1}, {128*e}')
        a(f's_mov_b32 s{t+2}, 0x36000000')
        a('s_cmp_eq_u32 s2, 0')
        a(f's_cselect_b32 s{t+2}, 0x35800000, s{t+2}')
        if e == 1:
            a(f's_cselect_b32 s{t}, 0x100, s{t}')
            a(f's_cselect_b32 s{t+1}, 0, s{t+1}')
        a(f'v_lshlrev_b32 v{R}, 3, v{L}')
        a(f'v_mul_u32_u24 v{R}, s{t}, v{R}'); a(f'v_add_u32 v{R}, s{t+1}, v{R}')
        for k in range(8):
            r = R + 2 + k
            a(f'v_and_b32 v{r}, 511, v{R}'); a(f'v_cvt_f32_u32 v{r}, v{r}'); a(f'v_mul_f32 v{r}, 0x3b000000, v{r}')
            a(f'v_cos_f32 v{r}, v{r}'); a(f'v_add_u32 v{R}, s{t}, v{R}'); a(f'v_mul_f32 v{r}, s{t+2}, v{r}')
        o = R + 12 + 4*e
        for q in range(4): a(f'v_cvt_pk_bf16_f32 v{o+q}, v{R+2+2*q}, v{R+3+2*q}')
        a(f's_lshl_b32 s{t+3}, s2, 11'); a(f's_add_u32 s{t+3}, s{t+3}, {1024*e}')
        a(f'v_lshlrev_b32 v{R+1}, 4, v{L}')
        a.lines.append(f'buffer_store_dwordx4 v[{o}:{o+3}], v{R+1}, s[{S.D}:{S.D+3}], s{t+3} offen sc1')
    a(f'{skip}:')

def ab_loads(a, R):
    skip = a.label('abl')
    a(f's_cmp_lg_u32 s{S.WAVE}, 2'); a(f's_cbranch_scc1 {skip}')
    L = V.LANE
    a(f's_lshl_b32 s{S.T}, s2, 3')
    a(f'v_and_b32 v{R}, 7, v{L}'); a(f'v_add_u32 v{R}, s{S.T}, v{R}')
    a(f'v_sub_u32 v{R+1}, 0x800, v{R}'); a(f'v_and_b32 v{R+1}, 0x7ff, v{R+1}')
    a(f's_movk_i32 s{S.T}, 514')
    a(f'v_mul_lo_u32 v{R+2}, v{R}, s{S.T}'); a(f'v_mul_lo_u32 v{R+3}, v{R+1}, s{S.T}')
    for n, (v, s, off) in enumerate([(2, S.B, 0), (3, S.B, 0), (2, S.B, 512), (3, S.B, 512), (2, S.C, 0), (3, S.C, 0), (2, S.C, 512), (3, S.C, 512)]):
        a.lines.append(f'buffer_load_ushort v{R+4+n}, v{R+v}, s[{s}:{s+3}], 0 offen offset:{off}')
    a(f'{skip}:')

def ab_finish(a, R):
    with a.atomic(): ab_finish_(a, R)
def ab_finish_(a, R):
    skip = a.label('abf')
    a(f's_cmp_lg_u32 s{S.WAVE}, 2'); a(f's_cbranch_scc1 {skip}')
    for n in range(8): a(f'v_lshlrev_b32 v{R+4+n}, 16, v{R+4+n}')
    a(f'v_add_f32 v{R+2}, v{R+4}, v{R+5}'); a(f'v_add_f32 v{R+3}, v{R+6}, v{R+7}')
    a(f'v_sub_f32 v{R+4}, v{R+8}, v{R+9}'); a(f'v_sub_f32 v{R+5}, v{R+10}, v{R+11}')
    a(f'v_add_f32 v{R+6}, v{R+2}, v{R+3}'); a(f'v_add_f32 v{R+7}, v{R+4}, v{R+5}')
    a(f'v_sub_f32 v{R+8}, v{R+2}, v{R+3}'); a(f'v_sub_f32 v{R+9}, v{R+4}, v{R+5}')
    for n in range(4): a(f'v_mul_f32 v{R+6+n}, 0x3e800000, v{R+6+n}')
    a(f'v_cvt_pk_bf16_f32 v{R+2}, v{R+6}, v{R+7}'); a(f'v_cvt_pk_bf16_f32 v{R+3}, v{R+8}, v{R+9}')
    a(f'v_and_b32 v{R+4}, 1, v{R}'); a(f'v_lshlrev_b32 v{R+4}, 8, v{R+4}')
    a(f'v_lshrrev_b32 v{R+5}, 8, v{R}'); a(f'v_lshl_add_u32 v{R+4}, v{R+5}, 5, v{R+4}')
    a(f'v_bfe_u32 v{R+5}, v{R}, 1, 5'); a(f'v_add_u32 v{R+4}, v{R+4}, v{R+5}')
    a(f'v_bfe_u32 v{R+5}, v{R}, 6, 2'); a(f'v_lshlrev_b32 v{R+5}, 2, v{R+5}'); a(f'v_lshl_add_u32 v{R+4}, v{R+4}, 4, v{R+5}')
    srd(a, S.D, S.WS, WS_AL, 0x4000)
    a('s_mov_b64 exec, 0xff')
    a.lines.append(f'buffer_store_dword v{R+2}, v{R+4}, s[{S.D}:{S.D+3}], 0 offen sc1')
    a(f'v_add_u32 v{R+4}, {WS_BE-WS_AL}, v{R+4}')
    a.lines.append(f'buffer_store_dword v{R+3}, v{R+4}, s[{S.D}:{S.D+3}], 0 offen sc1')
    a('s_mov_b64 exec, -1')
    a(f'{skip}:')

def phase1(a, pre):
    L = V.LANE
    VO, VT, VE = 10, 11, 44
    X, XA = 128, 144
    C32, NS32, TC, TS, A2R, A2I = 152, 160, 168, 176, 184, 188
    D1R, D1I = 192, 208
    BR, BI = 224, 232
    T = 240
    WQ = 64
    AB = 96
    FI = 108
    t = S.T
    table_base(a, S.TAB, 'tab_k1')
    for i in range(16): a(f'v_mov_b32 v{X+i}, 0')
    a(f's_lshl_b32 s{t+8}, s2, 2'); a(f's_add_u32 s{t+8}, s{t+8}, s{S.WAVE}')
    a(f'v_bfe_u32 v{T}, v{L}, 4, 1'); a(f'v_lshlrev_b32 v{T}, 10, v{T}'); a(f'v_add_u32 v{T}, s{t+8}, v{T}')
    a(f'v_lshlrev_b32 v{T}, 10, v{T}'); a(f'v_and_b32 v{T+1}, 15, v{L}'); a(f'v_lshl_add_u32 v{T}, v{T+1}, 1, v{T}')
    a(f'v_lshrrev_b32 v{T+1}, 5, v{L}'); a(f'v_lshl_add_u32 v{VO}, v{T+1}, 7, v{T}')
    a(f'v_lshlrev_b32 v{VT}, 4, v{L}')
    srd(a, S.A, S.X, 0, 2048 * 1024)
    for b in range(2):
        for jj in range(8):
            a(f'buffer_load_short_d16_hi v{X+8*b+jj}, v{VO}, s[{S.A}:{S.A+3}], 0 offen offset:{512*b+256*(jj//4)+32*(jj%4)} {CFG["inmod"]}')
    hx = a.mark()
    table_load(a, S.TAB, VT, [f'v[{r}:{r+3}]' for r in range(C32, C32 + 40, 4)])
    htab = a.mark()
    srd(a, S.B, S.WR, 0, 2048 * 514); srd(a, S.C, S.WI, 0, 2048 * 514)
    a(f's_lshr_b32 s{t}, s{S.WAVE}, 1'); a(f's_lshl_b32 s{t+1}, s2, 1'); a(f's_add_u32 s{t}, s{t}, s{t+1}')
    a(f's_and_b32 s{t+1}, s{t}, 63'); a(f's_lshr_b32 s{t+2}, s{t}, 6')
    a(f's_lshl_b32 s{t+3}, s{t+2}, 8'); a(f's_add_u32 s{t+3}, s{t+3}, s{t+1}'); a(f's_mul_i32 s{t+3}, s{t+3}, 514')
    a(f's_and_b32 s{t+4}, s{S.WAVE}, 1'); a(f's_lshl_b32 s{t+5}, s{t+4}, 8'); a(f's_add_u32 s{t+3}, s{t+3}, s{t+5}')
    a(f'v_lshlrev_b32 v{WQ}, 2, v{L}'); a(f'v_add_u32 v{WQ}, s{t+3}, v{WQ}')
    for j in range(4):
        a(f's_mov_b32 s{t+5}, {j*64*514}')
        a(f'buffer_load_dword v{WQ+2+j}, v{WQ}, s[{S.B}:{S.B+3}], s{t+5} offen {CFG["inmod"]}')
        a(f'buffer_load_dword v{WQ+6+j}, v{WQ}, s[{S.C}:{S.C+3}], s{t+5} offen {CFG["inmod"]}')
    hw = a.mark()
    a(f's_and_b32 s{t+5}, s{t}, 1'); a(f's_lshl_b32 s{t+5}, s{t+5}, 8'); a(f's_lshl_b32 s{t+6}, s{t+2}, 5'); a(f's_add_u32 s{t+5}, s{t+5}, s{t+6}')
    a(f's_lshr_b32 s{t+6}, s{t+1}, 1'); a(f's_add_u32 s{t+5}, s{t+5}, s{t+6}'); a(f's_lshl_b32 s{t+5}, s{t+5}, 7')
    a(f's_lshl_b32 s{t+6}, s{t+4}, 20'); a(f's_add_u32 s{t+5}, s{t+5}, s{t+6}')
    a(f'v_lshrrev_b32 v{WQ+1}, 3, v{L}'); a(f'v_lshlrev_b32 v{WQ+1}, 16, v{WQ+1}'); a(f'v_and_b32 v{WQ}, 7, v{L}')
    a(f'v_lshl_add_u32 v{WQ+1}, v{WQ}, 4, v{WQ+1}'); a(f'v_add_u32 v{WQ+1}, s{t+5}, v{WQ+1}')
    ab_loads(a, AB)
    pre.issue(a, CFG['early'])
    finv_job(a, FI)
    a(f'v_cvt_f32_u32 v{T+4}, s{t+8}'); a(f'v_mul_f32 v{T+4}, 0x3a000000, v{T+4}')
    a(f'v_cos_f32 v{T+5}, v{T+4}'); a(f'v_sin_f32 v{T+6}, v{T+4}')
    a(f's_lshl_b32 s{t+9}, s{S.WAVE}, 12'); a(f's_add_u32 s{t+9}, s{t+9}, {LDS_EX}')
    stamp(a, 1, T)
    a.wait_vm(hx)
    stamp(a, 2, T)
    a.bg_start(pre.issue_groups(NRING), 12)
    layernorm(a, X, XA, T, True)
    a.wait_vm(htab)
    for b in range(2):
        c = '0' if b == 0 else f'v[{D1R}:{D1R+15}]'
        a(f'v_mfma_f32_32x32x16_bf16 v[{D1R}:{D1R+15}], v[{XA+4*b}:{XA+4*b+3}], v[{C32+4*b}:{C32+4*b+3}], {c}')
        c = '0' if b == 0 else f'v[{D1I}:{D1I+15}]'
        a(f'v_mfma_f32_32x32x16_bf16 v[{D1I}:{D1I+15}], v[{XA+4*b}:{XA+4*b+3}], v[{NS32+4*b}:{NS32+4*b+3}], {c}')
    a.wait_vm(hw)
    a(f's_mov_b32 s{t+10}, 0x05040100'); a(f's_mov_b32 s{t+11}, 0x07060302')
    for e in range(2):
        for j in range(4):
            a(f'v_perm_b32 v{WQ+10+4*e+j}, v{WQ+6+j}, v{WQ+2+j}, s{t+10+e}')
    a(f'v_lshlrev_b32 v{VE}, 5, v{L}'); a(f'v_add_u32 v{VE}, s{t+9}, v{VE}')
    a(f'ds_write_b128 v{VE}, v[{WQ+10}:{WQ+13}]'); a(f'ds_write_b128 v{VE}, v[{WQ+14}:{WQ+17}] offset:16')
    a(f'v_lshlrev_b32 v{VE}, 4, v{L}'); a(f'v_add_u32 v{VE}, s{t+9}, v{VE}')
    a(f'ds_read_b128 v[{WQ+20}:{WQ+23}], v{VE}'); a(f'ds_read_b128 v[{WQ+24}:{WQ+27}], v{VE} offset:1024')
    srd(a, S.D, S.WS, WS_WP, 32 * 512 * 128)
    a('s_waitcnt lgkmcnt(0)')
    a(f'buffer_store_dwordx4 v[{WQ+20}:{WQ+23}], v{WQ+1}, s[{S.D}:{S.D+3}], 0 offen sc1')
    a(f's_mov_b32 s{t+5}, {8*65536}')
    a(f'buffer_store_dwordx4 v[{WQ+24}:{WQ+27}], v{WQ+1}, s[{S.D}:{S.D+3}], s{t+5} offen sc1')
    ab_finish(a, AB)
    HP = XA
    layernorm(a, X, HP, T, False)
    a(f'v_bfe_u32 v{T}, v{L}, 4, 1'); a(f'v_mul_u32_u24 v{T}, 1056, v{T}'); a(f'v_and_b32 v{T+1}, 15, v{L}')
    a(f'v_lshl_add_u32 v{T}, v{T+1}, 1, v{T}'); a(f'v_lshrrev_b32 v{T+1}, 5, v{L}'); a(f'v_lshl_add_u32 v{T}, v{T+1}, 7, v{T}')
    a(f'v_add_u32 v{T}, s{t+9}, v{T}')
    for q in range(8):
        b, jq = q // 4, q % 4
        for e in range(2):
            jj = 2 * jq + e
            op = 'ds_write_b16_d16_hi' if e else 'ds_write_b16'
            a(f'{op} v{T}, v{HP+q} offset:{512*b+256*(jj//4)+32*(jj%4)}')
    a(f'ds_read_b128 v[{WQ+20}:{WQ+23}], v{VE}'); a(f'ds_read_b128 v[{WQ+24}:{WQ+27}], v{VE} offset:1056')
    srd(a, S.D, S.WS, WS_H, 2048 * 1024)
    a(f's_lshl_b32 s{t+5}, s{t+8}, 10'); a(f's_add_u32 s{t+6}, s{t+5}, {1024*1024}')
    a(f'v_lshlrev_b32 v{T+1}, 4, v{L}')
    for i in range(4):
        for j in range(4):
            r_, i_ = D1R + 4*i + j, D1I + 4*i + j
            tc, ts = TC + 4*(i % 2) + j, TS + 4*(i % 2) + j
            a(f'v_mul_f32 v{X+j}, v{r_}, v{tc}'); a(f'v_fmac_f32 v{X+j}, v{i_}, v{ts}')
            a(f'v_mul_f32 v{X+4+j}, v{i_}, v{tc}'); a(f'v_fma_f32 v{X+4+j}, -v{r_}, v{ts}, v{X+4+j}')
        a(f'v_cvt_pk_bf16_f32 v{BR+2*i}, v{X}, v{X+1}');   a(f'v_cvt_pk_bf16_f32 v{BR+2*i+1}, v{X+2}, v{X+3}')
        a(f'v_cvt_pk_bf16_f32 v{BI+2*i}, v{X+4}, v{X+5}'); a(f'v_cvt_pk_bf16_f32 v{BI+2*i+1}, v{X+6}, v{X+7}')
        if i == 0:
            a('s_waitcnt lgkmcnt(0)')
            a(f'buffer_store_dwordx4 v[{WQ+20}:{WQ+23}], v{T+1}, s[{S.D}:{S.D+3}], s{t+5} offen sc1')
            a(f'buffer_store_dwordx4 v[{WQ+24}:{WQ+27}], v{T+1}, s[{S.D}:{S.D+3}], s{t+6} offen sc1')
    a('s_nop 1')
    D2 = (D1R, D1I)
    for r in range(2):
        a(f'v_mfma_f32_32x32x16_bf16 v[{D2[r]}:{D2[r]+15}], v[{A2R}:{A2R+3}], v[{BR+4*r}:{BR+4*r+3}], 0')
    for r in range(2):
        a(f'v_mfma_f32_32x32x16_bf16 v[{D2[r]}:{D2[r]+15}], v[{A2I}:{A2I+3}], v[{BI+4*r}:{BI+4*r+3}], v[{D2[r]}:{D2[r]+15}]')
    a.bg_flush()
    a(f'v_and_b32 v{T}, 31, v0'); a(f'v_lshrrev_b32 v{T+1}, 5, v0'); a(f'v_lshrrev_b32 v{T+2}, 2, v{T+1}'); a(f'v_lshlrev_b32 v{T+2}, 10, v{T+2}')
    a(f'v_bfe_u32 v{T+3}, v{T+1}, 1, 1'); a(f'v_lshl_add_u32 v{T}, v{T+3}, 5, v{T}'); a(f'v_lshl_add_u32 v{T}, v{T}, 4, v{T+2}')
    a(f'v_and_b32 v{T+1}, 1, v{T+1}'); a(f'v_lshl_add_u32 v{T}, v{T+1}, 3, v{T}'); a(f'v_add_u32 v{T}, {LDS_EX}, v{T}')
    a(f'v_lshrrev_b32 v{T+1}, 3, v0'); a(f'v_lshlrev_b32 v{T+1}, 15, v{T+1}'); a(f'v_and_b32 v{T+2}, 7, v0')
    a(f'v_lshl_add_u32 v{T+1}, v{T+2}, 4, v{T+1}'); a(f's_lshl_b32 s{t+5}, s2, 7'); a(f'v_add_u32 v{T+1}, s{t+5}, v{T+1}')
    a('s_nop 3')
    a('s_mov_b64 exec, 1')
    a(f'v_mov_b32 v{D2[0]+1}, v{D2[0]+8}'); a(f'v_mov_b32 v{D2[1]+1}, v{D2[1]+8}')
    a('s_mov_b64 exec, -1')
    Z0, DF, Z1 = X, X + 8, XA
    for i in range(8):
        a(f'v_add_f32 v{Z0+i}, v{D2[0]+i}, v{D2[1]+i}'); a(f'v_sub_f32 v{DF+i}, v{D2[0]+i}, v{D2[1]+i}')
    for i in range(0, 8, 2):
        a(f'v_mul_f32 v{Z1+i}, v{DF+i}, v{T+5}'); a(f'v_fmac_f32 v{Z1+i}, v{DF+i+1}, v{T+6}')
        a(f'v_mul_f32 v{Z1+i+1}, v{DF+i+1}, v{T+5}'); a(f'v_fma_f32 v{Z1+i+1}, -v{DF+i}, v{T+6}, v{Z1+i+1}')
    for ip in range(2):
        a(f'ds_write_b128 v{VE}, v[{Z0+4*ip}:{Z0+4*ip+3}] offset:{ip*1024}')
        a(f'ds_write_b128 v{VE}, v[{Z1+4*ip}:{Z1+4*ip+3}] offset:{2048+ip*1024}')
    srd(a, S.D, S.WS, WS_ZB, 2 * 32 * 256 * 128)
    a('s_waitcnt lgkmcnt(0)')
    a('s_barrier')
    G0 = C32
    for par in range(2):
        for w in range(4):
            a(f'ds_read_b64 v[{G0+16*par+2*w}:{G0+16*par+2*w+1}], v{T} offset:{w*4096+par*2048}')
    a(f's_mov_b32 s{t+5}, {32*256*128}')
    for par in range(2):
        g = G0 + 16 * par; o = g + 8
        a(f's_waitcnt lgkmcnt({4*(1-par)})')
        a(f'v_cvt_pk_bf16_f32 v{o}, v{g}, v{g+2}');     a(f'v_cvt_pk_bf16_f32 v{o+1}, v{g+4}, v{g+6}')
        a(f'v_cvt_pk_bf16_f32 v{o+2}, v{g+1}, v{g+3}'); a(f'v_cvt_pk_bf16_f32 v{o+3}, v{g+5}, v{g+7}')
        so = f's{t+5}' if par else '0'
        a(f'buffer_store_dwordx4 v[{o}:{o+3}], v{T+1}, s[{S.D}:{S.D+3}], {so} offen sc1')
    a(f'v_mov_b32 v{T+2}, 0')
    a(f'global_load_dword v{T+3}, v{T+2}, s[{S.DBG}:{S.DBG+1}] sc1')
    stamp(a, 3, T + 4)
    a('s_waitcnt vmcnt(0)')
    lp, ok = a.label('nonce'), a.label('nonce_ok')
    a(f's_mov_b32 s{t}, 0')
    a(f'{lp}:')
    a(f'v_readfirstlane_b32 s{S.NONCE}, v{T+3}')
    a('s_nop 3')
    a(f's_cmp_lg_u32 s{S.NONCE}, 0'); a(f's_cbranch_scc1 {ok}')
    a.lines.append(f'global_load_dword v{T+3}, v{T+2}, s[{S.DBG}:{S.DBG+1}] sc1')
    a('s_waitcnt vmcnt(0)')
    a(f's_add_u32 s{t}, s{t}, 1'); a(f's_cmp_lt_u32 s{t}, {CFG["spin"]}'); a(f's_cbranch_scc1 {lp}')
    a(f'{ok}:')
    a('s_barrier')
    publish(a, [f's_lshl_b32 s{t}, s2, 7', f's_add_u32 s{t}, s{t}, {WS_F1}'], t, T)
    stamp(a, 4, T)

def store_tile_rows(a, O, srd_, row0_lines, s_row0, stride_shift):
    L, T, t = V.LANE, V.T, S.T
    a(f's_lshr_b32 s{t}, s{S.WAVE}, 1'); a(f's_lshl_b32 s{t}, s{t}, 5')
    a(f'v_and_b32 v{T}, 31, v{L}'); a(f'v_add_u32 v{T}, s{t}, v{T}'); a(f'v_mul_u32_u24 v{T}, 144, v{T}')
    a(f's_and_b32 s{t}, s{S.WAVE}, 1'); a(f's_lshl_b32 s{t}, s{t}, 6'); a(f's_add_u32 s{t}, s{t}, {LDS_EX}')
    a(f'v_lshrrev_b32 v{T+1}, 5, v{L}'); a(f'v_lshl_add_u32 v{T}, v{T+1}, 4, v{T}'); a(f'v_add_u32 v{T}, s{t}, v{T}')
    a(f'ds_write_b128 v{T}, v[{O}:{O+3}]'); a(f'ds_write_b128 v{T}, v[{O+4}:{O+7}] offset:32')
    a(f'v_lshrrev_b32 v{T+1}, 3, v{L}'); a(f's_lshl_b32 s{t}, s{S.WAVE}, 4'); a(f'v_add_u32 v{T+1}, s{t}, v{T+1}')
    a(f'v_and_b32 v{T+2}, 7, v{L}'); a(f'v_lshlrev_b32 v{T+2}, 4, v{T+2}')
    a(f'v_mul_u32_u24 v{T+3}, 144, v{T+1}'); a(f'v_add_u32 v{T+3}, v{T+3}, v{T+2}'); a(f'v_add_u32 v{T+3}, {LDS_EX}, v{T+3}')
    for l in row0_lines: a(l)
    a(f'v_lshl_add_u32 v{T+1}, v{T+1}, {stride_shift}, v{T+2}'); a(f'v_add_u32 v{T+1}, s{s_row0}, v{T+1}')
    a.nobg('s_waitcnt lgkmcnt(0)')
    a.nobg('s_barrier')
    a(f'ds_read_b128 v[{O}:{O+3}], v{T+3}'); a(f'ds_read_b128 v[{O+4}:{O+7}], v{T+3} offset:{8*144}')
    a(f's_mov_b32 s{t}, {8 << stride_shift}')
    a.nobg('s_waitcnt lgkmcnt(0)')
    a(f'buffer_store_dwordx4 v[{O}:{O+3}], v{T+1}, s[{srd_}:{srd_+3}], 0 offen sc1')
    a(f'buffer_store_dwordx4 v[{O+4}:{O+7}], v{T+1}, s[{srd_}:{srd_+3}], s{t} offen sc1')

def w2_setup(a):
    t = S.T
    srd(a, S.B, S.W2, 0, 1792 * 4096)
    a(f's_lshl_b32 s{t+1}, s{S.ST}, 7')
    dma_offsets(a, V.Q0, V.Q1, 4096, t + 1)
    a(f's_mul_i32 s{S.SOB}, s{S.WAVE}, {16*4096}')

def gemm1(a):
    L, T, t = V.LANE, V.T, S.T
    a('s_waitcnt vmcnt(0)')
    srd(a, S.A, S.WS, WS_H, 2048 * 1024)
    a(f's_lshl_b32 s{t+1}, s{S.DT}, 7')
    dma_offsets(a, V.P0, V.P1, 1024, t + 1)
    a(f's_mul_i32 s{S.SOA}, s{S.WAVE}, {16*1024}')
    V_B1 = 60
    a(f's_lshr_b32 s{t}, s{S.WAVE}, 1'); a(f's_lshl_b32 s{t}, s{t}, 5'); a(f's_lshl_b32 s{t+1}, s{S.FT}, 6'); a(f's_add_u32 s{t}, s{t}, s{t+1}')
    a(f'v_and_b32 v{T}, 31, v{L}'); a(f'v_add_u32 v{T}, s{t}, v{T}'); a(f'v_lshlrev_b32 v{T}, 1, v{T}')
    a(f'global_load_ushort v{V_B1}, v{T}, s[{S.B1}:{S.B1+1}]')
    pf = []
    if CFG.get('pf2', 1):
        srd(a, S.C, S.W2, 0, 1792 * 4096)
        a(f's_lshl_b32 s{t}, s{S.J}, 2'); a(f's_add_u32 s{t}, s{t}, s{S.WAVE}'); a(f's_lshl_b32 s{t}, s{t}, 4')
        a(f'v_lshrrev_b32 v{T}, 3, v{L}'); a(f'v_add_u32 v{T}, s{t}, v{T}'); a(f'v_lshlrev_b32 v{T}, 12, v{T}')
        a(f'v_and_b32 v{T+1}, 7, v{L}'); a(f'v_lshl_add_u32 v{T}, v{T+1}, 7, v{T}')
        a(f's_lshr_b32 s{t}, s{S.XCD}, 1'); a(f's_lshl_b32 s{t}, s{t}, 10'); a(f'v_add_u32 v61, s{t}, v{T}')
        a(f'v_add_u32 v62, {8*4096}, v61')
        pf = [[f'buffer_load_dword v63, v61, s[{S.C}:{S.C+3}], 0 offen {CFG["wmod"]}'],
              [f'buffer_load_dword v63, v62, s[{S.C}:{S.C+3}], 0 offen {CFG["wmod"]}']]
    steps = [dict(items=[(0, V.P0, V.P1, S.A, S.SOA, 1024, 'sc1')], q=u) for u in range(32)]
    stream_loop(a, steps, CFG.get('depth1', 12), bg_extra=pf)
    stamp(a, 7, T)
    w2_setup(a)
    pre2 = Preload(28, S.B, 4096, CFG['wmod2'], range(6, NRING))
    pre2.issue(a, 4)
    reduce_partials(a)
    a.bg_start(pre2.issue_groups(NRING), 10)
    VD = V.VD
    a(f'v_lshlrev_b32 v{V_B1}, 16, v{V_B1}')
    c0 = -2.0 * 0.7978845608028654 * 1.4426950408889634
    a(f's_mov_b32 s{t+2}, {fb(c0)}'); a(f's_mov_b32 s{t+3}, {fb(c0 * 0.044715)}')
    a(f'v_mov_b32 v61, s{t+2}')
    for q in range(8):
        d0, d1 = VD + 2*q, VD + 2*q + 1
        a(f'v_cvt_pk_bf16_f32 v{T}, v{d0}, v{d1}')
        a(f'v_lshlrev_b32 v{d0}, 16, v{T}'); a(f'v_and_b32 v{d1}, 0xffff0000, v{T}')
        a(f'v_add_f32 v{d0}, v{d0}, v{V_B1}'); a(f'v_add_f32 v{d1}, v{d1}, v{V_B1}')
        a(f'v_cvt_pk_bf16_f32 v{T}, v{d0}, v{d1}')
        a(f'v_lshlrev_b32 v{d0}, 16, v{T}'); a(f'v_and_b32 v{d1}, 0xffff0000, v{T}')
        a(f'v_mul_f32 v{T+1}, v{d0}, v{d0}'); a(f'v_mul_f32 v{T+2}, v{d1}, v{d1}')
        a(f'v_fma_f32 v{T+1}, v{T+1}, s{t+3}, v61'); a(f'v_fma_f32 v{T+2}, v{T+2}, s{t+3}, v61')
        a(f'v_mul_f32 v{T+1}, v{T+1}, v{d0}'); a(f'v_mul_f32 v{T+2}, v{T+2}, v{d1}')
        a(f'v_exp_f32 v{T+1}, v{T+1}'); a(f'v_exp_f32 v{T+2}, v{T+2}')
        a('s_nop 0')
        a(f'v_add_f32 v{T+1}, 1.0, v{T+1}'); a(f'v_add_f32 v{T+2}, 1.0, v{T+2}')
        a(f'v_rcp_f32 v{T+1}, v{T+1}'); a(f'v_rcp_f32 v{T+2}, v{T+2}')
        a('s_nop 0')
        a(f'v_mul_f32 v{d0}, v{d0}, v{T+1}'); a(f'v_mul_f32 v{d1}, v{d1}, v{T+2}')
    a('s_nop 1')
    for p in range(2):
        for j in range(4):
            a(f'v_permlane32_swap_b32 v{VD+8*p+j}, v{VD+8*p+4+j}')
    O = 52
    for p in range(2):
        for jj in range(4):
            a(f'v_cvt_pk_bf16_f32 v{O+4*p+jj}, v{VD+8*p+2*jj}, v{VD+8*p+2*jj+1}')
    a.bg_flush()
    srd(a, S.D, S.WS, WS_GT, 1792 * 1024)
    store_tile_rows(a, O, S.D, [f's_lshl_b32 s{t+4}, s{S.FT}, 16', f's_lshl_b32 s{t+5}, s{S.DT}, 7', f's_add_u32 s{t+4}, s{t+4}, s{t+5}'], t + 4, 10)
    hst = a.mark()
    pre2.free += list(range(6))
    pre2.issue(a, 6)
    a.wait_vm(hst)
    a('s_barrier')
    publish(a, [f's_lshl_b32 s{t}, s{S.DT}, 5', f's_add_u32 s{t}, s{t}, s{S.FT}', f's_lshl_b32 s{t}, s{t}, 7', f's_add_u32 s{t}, s{t}, {WS_F2}'], t, T)
    stamp(a, 8, T)
    pre2.drain(a)

class F:
    L = 1; VT = 2; RZ0 = 3; RW = 5; VY = 6; T = 8
    C, S, NS = 24, 32, 40
    TC, TS = 48, 64
    UC, US = 80, 96
    AR, AI = 112, 120
    DR, DI = 128, 144
    ER, EI = 160, 176
    W = 192
    X2 = 208

def cplx_stage(a, form, conj):
    s_for_re = F.NS if conj else F.S
    s_for_im = F.S if conj else F.NS
    seq = []
    for b in range(2): seq += [(F.DR, F.AR + 4*b, F.C + 4*b), (F.DI, F.AI + 4*b, F.C + 4*b)]
    for b in range(2): seq += [(F.DR, F.AI + 4*b, s_for_re + 4*b), (F.DI, F.AR + 4*b, s_for_im + 4*b)]
    seen = set()
    for (d, x, c) in seq:
        cc = f'v[{d}:{d+15}]' if d in seen else '0'
        seen.add(d)
        if form == 'A': a(f'v_mfma_f32_32x32x16_bf16 v[{d}:{d+15}], v[{x}:{x+3}], v[{c}:{c+3}], {cc}')
        else:           a(f'v_mfma_f32_32x32x16_bf16 v[{d}:{d+15}], v[{c}:{c+3}], v[{x}:{x+3}], {cc}')
    a('s_nop 7'); a('s_nop 3')

def pack4(a, i):
    T = F.T
    a(f'v_cvt_pk_bf16_f32 v{F.AR+2*i}, v{T}, v{T+1}');     a(f'v_cvt_pk_bf16_f32 v{F.AR+2*i+1}, v{T+2}, v{T+3}')
    a(f'v_cvt_pk_bf16_f32 v{F.AI+2*i}, v{T+4}, v{T+5}');   a(f'v_cvt_pk_bf16_f32 v{F.AI+2*i+1}, v{T+6}, v{T+7}')

def cmul_pack(a, cr, ci, conj):
    T = F.T
    for i in range(4):
        for j in range(0, 4, 2):
            n = 4*i + j
            r_, i_, c, s = F.DR + n, F.DI + n, cr + n, ci + n
            P = lambda x: f'v[{x}:{x+1}]'
            a(f'v_pk_mul_f32 {P(T+j)}, {P(r_)}, {P(c)}'); a(f'v_pk_mul_f32 {P(T+4+j)}, {P(i_)}, {P(c)}')
            if conj:
                a(f'v_pk_fma_f32 {P(T+j)}, {P(i_)}, {P(s)}, {P(T+j)} neg_lo:[1,0,0] neg_hi:[1,0,0]')
                a(f'v_pk_fma_f32 {P(T+4+j)}, {P(r_)}, {P(s)}, {P(T+4+j)}')
            else:
                a(f'v_pk_fma_f32 {P(T+j)}, {P(i_)}, {P(s)}, {P(T+j)}')
                a(f'v_pk_fma_f32 {P(T+4+j)}, {P(r_)}, {P(s)}, {P(T+4+j)} neg_lo:[1,0,0] neg_hi:[1,0,0]')
        pack4(a, i)
    a('s_nop 1')

def filter_generic(a):
    T = F.T
    P = lambda x: f'v[{x}:{x+1}]'
    for i in range(4):
        for j in range(0, 4, 2):
            n = 4*i + j
            r_, i_, w = F.DR + n, F.DI + n, F.W + n
            a(f'v_lshlrev_b32 v{T+8}, 16, v{w}'); a(f'v_lshlrev_b32 v{T+9}, 16, v{w+1}')
            a(f'v_and_b32 v{T+10}, 0xffff0000, v{w}'); a(f'v_and_b32 v{T+11}, 0xffff0000, v{w+1}')
            a(f'v_pk_mul_f32 {P(T+j)}, {P(r_)}, {P(T+8)}'); a(f'v_pk_mul_f32 {P(T+4+j)}, {P(i_)}, {P(T+8)}')
            a(f'v_pk_fma_f32 {P(T+j)}, {P(i_)}, {P(T+10)}, {P(T+j)} neg_lo:[1,0,0] neg_hi:[1,0,0]')
            a(f'v_pk_fma_f32 {P(T+4+j)}, {P(r_)}, {P(T+10)}, {P(T+4+j)}')
        pack4(a, i)
    a('s_nop 1')

def filter_special(a, p, SAL):
    T = F.T; L = F.L
    MR = F.X2; BE = F.X2 + 32
    a(f'v_lshlrev_b32 v{T+10}, 4, v{L}'); a(f'v_add_u32 v{T+10}, {p*4096}, v{T+10}')
    for i in range(4):
        a(f'global_load_dwordx4 v[{F.W+4*i}:{F.W+4*i+3}], v{T+10}, s[{SAL}:{SAL+1}] offset:{i*1024} sc1')
    a(f'v_add_u32 v{T+10}, {WS_BE-WS_AL}, v{T+10}')
    for i in range(4):
        a(f'global_load_dwordx4 v[{BE+4*i}:{BE+4*i+3}], v{T+10}, s[{SAL}:{SAL+1}] offset:{i*1024} sc1')
    a(f'v_and_b32 v{T+11}, 31, v{L}'); a(f'v_lshrrev_b32 v{T+12}, 5, v{L}')
    a(f'v_lshl_add_u32 v{T+11}, v{T+12}, 7, v{T+11}')
    a(f'v_lshlrev_b32 v{T+12}, 3, v{T+11}'); a(f'v_add_u32 v{T+12}, {LDS_X}, v{T+12}')
    for i in range(4):
        for j in range(4):
            a(f'ds_write2_b32 v{T+12}, v{F.DR+4*i+j}, v{F.DI+4*i+j} offset0:{64*j} offset1:{64*j+1}')
        if i < 3: a(f'v_add_u32 v{T+12}, 2048, v{T+12}')
    top = 1024 if p == 0 else 1023
    if p == 0:
        a('s_mov_b64 exec, 1')
        a(f'v_mov_b32 v{T+12}, {LDS_X + 1024*8}')
        a(f'ds_write2_b32 v{T+12}, v{F.DR}, v{F.DI} offset0:0 offset1:1')
        a('s_mov_b64 exec, -1')
    a(f'v_sub_u32 v{T+12}, {top - 96}, v{T+11}')
    a(f'v_lshlrev_b32 v{T+12}, 3, v{T+12}'); a(f'v_add_u32 v{T+12}, {LDS_X}, v{T+12}')
    a('s_waitcnt lgkmcnt(0)')
    for i in range(4):
        for j in range(4):
            n = 4*i + j
            a(f'ds_read_b64 v[{MR+2*n}:{MR+2*n+1}], v{T+12} offset:{(3-j)*256}')
        if i < 3: a(f'v_subrev_u32 v{T+12}, 2048, v{T+12}')
    a('s_waitcnt vmcnt(0) lgkmcnt(0)')
    for i in range(4):
        for j in range(4):
            n = 4*i + j
            r_, i_, w, be, mr, mi = F.DR + n, F.DI + n, F.W + n, BE + n, MR + 2*n, MR + 2*n + 1
            a(f'v_lshlrev_b32 v{T+8}, 16, v{w}'); a(f'v_and_b32 v{T+9}, 0xffff0000, v{w}')
            a(f'v_mul_f32 v{T+j}, v{r_}, v{T+8}'); a(f'v_mul_f32 v{T+4+j}, v{i_}, v{T+8}')
            a(f'v_fma_f32 v{T+j}, -v{i_}, v{T+9}, v{T+j}'); a(f'v_fmac_f32 v{T+4+j}, v{r_}, v{T+9}')
            a(f'v_lshlrev_b32 v{T+8}, 16, v{be}'); a(f'v_and_b32 v{T+9}, 0xffff0000, v{be}')
            a(f'v_fmac_f32 v{T+j}, v{mr}, v{T+8}'); a(f'v_fmac_f32 v{T+j}, v{mi}, v{T+9}')
            a(f'v_fmac_f32 v{T+4+j}, v{mr}, v{T+9}'); a(f'v_fma_f32 v{T+4+j}, -v{mi}, v{T+8}, v{T+4+j}')
        pack4(a, i)
    a('s_nop 1')

def fft_role(a):
    L, T, t = F.L, F.T, S.T
    SZ, SW, SY = S.A, S.B, S.C
    KAP, PASS, SAL = t + 8, t + 9, t + 10
    a('s_waitcnt vmcnt(0)')
    table_base(a, S.TAB, 'tab_fft')
    a(f'v_lshlrev_b32 v{F.VT}, 4, v{L}')
    srd(a, SZ, S.WS, WS_ZB, 2 * 32 * 256 * 128)
    srd(a, SW, S.WS, WS_WP, 32 * 512 * 128)
    srd(a, SY, S.WS, WS_YT, 512 * 4096)
    a(f'v_lshrrev_b32 v{T}, 3, v{L}'); a(f'v_and_b32 v{T+1}, 7, v{L}')
    a(f'v_xor_b32 v{T+2}, v{T+1}, v{T}')
    a(f'v_lshrrev_b32 v{T+3}, 1, v{T}'); a(f'v_xor_b32 v{T+3}, v{T+1}, v{T+3}')
    a(f'v_lshlrev_b32 v{T}, 7, v{T}')
    a(f's_lshr_b32 s{t}, s{S.WAVE}, 1'); a(f's_lshl_b32 s{t}, s{t}, 5'); a(f's_add_u32 s{t}, s{t}, s{S.GRP}'); a(f's_lshl_b32 s{t}, s{t}, 15')
    a(f's_and_b32 s{t+1}, s{S.WAVE}, 1'); a(f's_lshl_b32 s{t+1}, s{t+1}, 14'); a(f's_add_u32 s{t}, s{t}, s{t+1}')
    a(f's_lshl_b32 s{t+2}, s{S.WAVE}, 14')
    for n in range(16):
        a(f'v_xor_b32 v{T+4}, {n & 7}, v{T+2}'); a(f'v_lshl_add_u32 v{T+4}, v{T+4}, 4, v{T}')
        a(f's_add_u32 m0, s{t+2}, {LDS_Z + n*1024}'); a(f's_add_u32 s{t+3}, s{t}, {n*1024}')
        a(f'buffer_load_dwordx4 v{T+4}, s[{SZ}:{SZ+3}], s{t+3} offen sc1 lds')
    a(f's_lshl_b32 s{t}, s{S.GRP}, 16'); a(f's_add_u32 s{t}, s{t}, s{t+2}')
    for n in range(16):
        a(f'v_xor_b32 v{T+4}, {4*(n&1)}, v{T+3}'); a(f'v_lshl_add_u32 v{T+4}, v{T+4}, 4, v{T}')
        a(f's_add_u32 m0, s{t+2}, {LDS_W + n*1024}'); a(f's_add_u32 s{t+3}, s{t}, {n*1024}')
        a(f'buffer_load_dwordx4 v{T+4}, s[{SW}:{SW+3}], s{t+3} offen sc1 lds')
    table_load(a, S.TAB, F.VT, [f'v[{r}:{r+3}]' for r in range(F.C, F.C + 88, 4)])
    a(f'v_lshrrev_b32 v{T}, 5, v{L}'); a(f'v_bfe_u32 v{T+1}, v{L}, 2, 2'); a(f'v_lshl_add_u32 v{T}, v{T}, 2, v{T+1}')
    a(f'v_bfe_u32 v{T+1}, v{L}, 4, 1'); a(f'v_and_b32 v{T+2}, 3, v{L}'); a(f'v_lshl_add_u32 v{T+1}, v{T+1}, 2, v{T+2}')
    a(f'v_xor_b32 v{T+2}, v{T}, v{T+1}'); a(f'v_xor_b32 v{T+2}, s{S.WAVE}, v{T+2}'); a(f'v_lshlrev_b32 v{T+2}, 4, v{T+2}')
    a(f'v_lshl_add_u32 v{T}, v{T}, 3, v{T+1}'); a(f'v_lshl_add_u32 v{F.RZ0}, v{T}, 7, v{T+2}')
    a(f'v_bfe_u32 v{T}, v{L}, 1, 3'); a(f'v_xor_b32 v{T}, s{S.WAVE}, v{T}'); a(f'v_lshlrev_b32 v{T}, 4, v{T}')
    a(f'v_lshl_add_u32 v{F.RW}, v{L}, 7, v{T}'); a(f'v_add_u32 v{F.RW}, {LDS_W}, v{F.RW}')
    a(f's_lshl_b32 s{KAP}, s{S.GRP}, 3'); a(f's_add_u32 s{KAP}, s{KAP}, s{S.WAVE}')
    a(f's_lshl_b32 s{t}, s{KAP}, 13')
    a(f'v_and_b32 v{T}, 15, v{L}'); a(f'v_lshlrev_b32 v{T}, 6, v{T}')
    a(f'v_bfe_u32 v{T+1}, v{L}, 4, 1'); a(f'v_lshl_add_u32 v{T}, v{T+1}, 5, v{T}')
    a(f'v_lshrrev_b32 v{T+1}, 5, v{L}'); a(f'v_lshl_add_u32 v{T}, v{T+1}, 4, v{T}')
    a(f'v_add_u32 v{F.VY}, s{t}, v{T}')
    a(f's_add_u32 s{SAL}, s{S.WS}, {WS_AL}'); a(f's_addc_u32 s{SAL+1}, s{S.WS+1}, 0')
    a(f's_mov_b32 s{PASS}, 0')
    a('s_waitcnt vmcnt(0)')
    a('s_barrier')
    stamp(a, 7, T)
    col = a.label('fftcol')
    a(f'{col}:')
    for p in range(2):
        for c in range(2):
            for b in range(2):
                for q in range(2):
                    r = (F.AI if c else F.AR) + 4*b + 2*q
                    a(f'ds_read_b64_tr_b16 v[{r}:{r+1}], v{F.RZ0} offset:{p*32768 + (16*b+8*q)*8*128 + 8*c}')
        for i in range(4):
            a(f'ds_read_b128 v[{F.W+4*i}:{F.W+4*i+3}], v{F.RW} offset:{p*32768 + i*8192}')
        a('s_waitcnt lgkmcnt(4)')
        cplx_stage(a, 'A', False)
        cmul_pack(a, F.TC, F.TS, False)
        cplx_stage(a, 'B', False)
        a('s_waitcnt lgkmcnt(0)')
        sp, jn = a.label('spec'), a.label('join')
        a(f's_cmp_eq_u32 s{KAP}, 0'); a(f's_cbranch_scc1 {sp}')
        filter_generic(a)
        a(f's_branch {jn}')
        a(f'{sp}:')
        filter_special(a, p, SAL)
        a(f'{jn}:')
        cplx_stage(a, 'A', True)
        cmul_pack(a, F.TC, F.TS, True)
        cplx_stage(a, 'A', True)
        if p == 0:
            for n in range(16):
                a(f'v_mov_b32 v{F.ER+n}, v{F.DR+n}'); a(f'v_mov_b32 v{F.EI+n}, v{F.DI+n}')
    P = lambda x: f'v[{x}:{x+1}]'
    for n in range(0, 16, 2):
        r_, i_, c, s = F.DR + n, F.DI + n, F.UC + n, F.US + n
        a(f'v_pk_mul_f32 {P(T)}, {P(r_)}, {P(c)}'); a(f'v_pk_mul_f32 {P(T+2)}, {P(i_)}, {P(c)}')
        a(f'v_pk_fma_f32 {P(T)}, {P(i_)}, {P(s)}, {P(T)} neg_lo:[1,0,0] neg_hi:[1,0,0]')
        a(f'v_pk_fma_f32 {P(T+2)}, {P(r_)}, {P(s)}, {P(T+2)}')
        a(f'v_pk_add_f32 {P(r_)}, {P(F.ER+n)}, {P(T)} neg_lo:[0,1] neg_hi:[0,1]')
        a(f'v_pk_add_f32 {P(i_)}, {P(F.EI+n)}, {P(T+2)} neg_lo:[0,1] neg_hi:[0,1]')
        a(f'v_pk_add_f32 {P(F.ER+n)}, {P(F.ER+n)}, {P(T)}'); a(f'v_pk_add_f32 {P(F.EI+n)}, {P(F.EI+n)}, {P(T+2)}')
    outs = [(F.ER, 0, 0), (F.DR, 0, 2048), (F.EI, 1, 0), (F.DI, 1, 2048)]
    a(f's_movk_i32 s{t}, 0x1000')
    for n_, (src, c, hi) in enumerate(outs):
        a('s_nop 1')
        for pp in range(2):
            for j in range(4): a(f'v_permlane32_swap_b32 v{src+8*pp+j}, v{src+8*pp+4+j}')
        o = F.AR + 8 * (n_ % 2)
        for pp in range(2):
            for jj in range(4): a(f'v_cvt_pk_bf16_f32 v{o+4*pp+jj}, v{src+8*pp+2*jj}, v{src+8*pp+2*jj+1}')
        a('s_nop 1')
        for k in range(4): a(f'v_permlane16_swap_b32 v{o+k}, v{o+4+k}')
        so = f's{t}' if c else '0'
        a.lines.append(f'buffer_store_dwordx4 v[{o}:{o+3}], v{F.VY}, s[{SY}:{SY+3}], {so} offen offset:{hi} sc1')
        a.lines.append(f'buffer_store_dwordx4 v[{o+4}:{o+7}], v{F.VY}, s[{SY}:{SY+3}], {so} offen offset:{hi + 1024} sc1')
    a(f'v_xor_b32 v{F.RZ0}, 64, v{F.RZ0}'); a(f'v_xor_b32 v{F.RW}, 64, v{F.RW}')
    a(f'v_add_u32 v{F.VY}, {4*8192}, v{F.VY}'); a(f's_add_u32 s{KAP}, s{KAP}, 4')
    a(f's_add_u32 s{PASS}, s{PASS}, 1'); a(f's_cmp_lt_u32 s{PASS}, 2'); a(f's_cbranch_scc1 {col}')
    a('s_waitcnt vmcnt(0)')
    a('s_barrier')
    publish(a, [f's_lshl_b32 s{t}, s{S.GRP}, 7', f's_add_u32 s{t}, s{t}, {WS_F3}'], t, T)
    stamp(a, 8, T)

def gemm2(a):
    L, T, t = V.LANE, V.T, S.T
    a(f'v_and_b32 v{L}, 63, v0')
    read_addresses(a)
    srd(a, S.A, S.WS, WS_GT, 2304 * 1024)
    a(f's_lshl_b32 s{t+1}, s{S.DT}, 7')
    dma_offsets(a, V.P0, V.P1, 1024, t + 1)
    a(f's_mul_i32 s{S.SOA}, s{S.WAVE}, {16*1024}')
    srd(a, S.C, S.WS, WS_YT, 512 * 4096)
    a(f's_lshl_b32 s{t+1}, s{S.ST}, 7')
    dma_offsets(a, V.Q0, V.Q1, 4096, t + 1)
    a(f's_mul_i32 s{S.SOB}, s{S.WAVE}, {16*4096}')
    V_XO, V_X, V_B2 = 50, 52, 60
    a(f's_lshr_b32 s{t}, s{S.WAVE}, 1'); a(f's_lshl_b32 s{t}, s{t}, 5'); a(f's_lshl_b32 s{t+1}, s{S.ST}, 6'); a(f's_add_u32 s{t}, s{t}, s{t+1}')
    a(f'v_and_b32 v{T}, 31, v{L}'); a(f'v_add_u32 v{T}, s{t}, v{T}'); a(f'v_lshlrev_b32 v{T+1}, 1, v{T}')
    a('s_waitcnt vmcnt(0)')
    a(f'global_load_ushort v{V_B2}, v{T+1}, s[{S.B2}:{S.B2+1}]')
    a(f's_and_b32 s{t}, s{S.WAVE}, 1'); a(f's_lshl_b32 s{t}, s{t}, 6'); a(f's_lshl_b32 s{t+1}, s{S.DT}, 7'); a(f's_add_u32 s{t}, s{t}, s{t+1}')
    a(f'v_lshrrev_b32 v{T+1}, 5, v{L}'); a(f'v_lshlrev_b32 v{T+1}, 4, v{T+1}')
    a(f'v_lshl_add_u32 v{V_XO}, v{T}, 10, v{T+1}'); a(f'v_add_u32 v{V_XO}, s{t}, v{V_XO}')
    a(f'global_load_dwordx4 v[{V_X}:{V_X+3}], v{V_XO}, s[{S.X}:{S.X+1}]')
    a(f'global_load_dwordx4 v[{V_X+4}:{V_X+7}], v{V_XO}, s[{S.X}:{S.X+1}] offset:32')
    poll(a, [([f's_lshl_b32 s{t}, s{S.DT}, 12', f's_add_u32 s{t}, s{t}, {WS_F2}'], 28), ([f's_mov_b32 s{t}, {WS_F3}'], 32)], 128)
    stamp(a, 9, T)
    steps = []
    for u in range(36):
        it = [(0, V.P0, V.P1, S.A, S.SOA, 1024, 'sc1')]
        if u >= 28: it.append((1, V.Q0, V.Q1, S.C, S.SOB, 4096, 'sc1'))
        steps.append(dict(items=it, q=u if u < 28 else None))
    stream_loop(a, steps, CFG.get('depth3', 12))
    stamp(a, 10, T)
    reduce_partials(a)
    VD = V.VD
    a(f'v_lshlrev_b32 v{V_B2}, 16, v{V_B2}')
    for i in range(16): a(f'v_add_f32 v{VD+i}, v{VD+i}, v{V_B2}')
    a('s_nop 1')
    for p in range(2):
        for j in range(4): a(f'v_permlane32_swap_b32 v{VD+8*p+j}, v{VD+8*p+4+j}')
    for p in range(2):
        for jj in range(4):
            xr = V_X + 4*p + jj
            d0 = VD + 8*p + 2*jj; d1 = d0 + 1
            a(f'v_lshlrev_b32 v{T}, 16, v{xr}'); a(f'v_and_b32 v{T+1}, 0xffff0000, v{xr}')
            a(f'v_add_f32 v{d0}, v{d0}, v{T}'); a(f'v_add_f32 v{d1}, v{d1}, v{T+1}')
            a(f'v_cvt_pk_bf16_f32 v{xr}, v{d0}, v{d1}')
    a(f'global_store_dwordx4 v{V_XO}, v[{V_X}:{V_X+3}], s[{S.OUT}:{S.OUT+1}]')
    a(f'global_store_dwordx4 v{V_XO}, v[{V_X+4}:{V_X+7}], s[{S.OUT}:{S.OUT+1}] offset:32')
    if CFG['stamps']:
        a('s_waitcnt vmcnt(0)')
        stamp(a, 11, T)

def mega(a, name):
    kernel_begin(a, name)
    end, fft, p3 = a.label('end'), a.label('fft'), a.label('p3')
    L, T, t = V.LANE, V.T, S.T
    a('s_cmp_ge_u32 s2, 256'); a(f's_cbranch_scc1 {end}')
    a('s_load_dwordx16 s[4:19], s[0:1], 0')
    a('s_load_dwordx4 s[20:23], s[0:1], 64')
    a('s_load_dwordx2 s[24:25], s[0:1], 80')
    a('v_lshrrev_b32 v1, 6, v0')
    a(f's_and_b32 s{S.XCD}, s2, 7'); a(f's_lshr_b32 s{S.J}, s2, 3')
    a(f'v_readfirstlane_b32 s{S.WAVE}, v1')
    a(f'v_and_b32 v{L}, 63, v0')
    a(f's_and_b32 s{t}, s{S.XCD}, 1'); a(f's_lshl_b32 s{t}, s{t}, 2'); a(f's_and_b32 s{t+1}, s{S.J}, 3'); a(f's_add_u32 s{S.DT}, s{t}, s{t+1}')
    a(f's_lshr_b32 s{t}, s{S.XCD}, 1'); a(f's_lshr_b32 s{t+2}, s{S.J}, 2')
    a(f's_lshl_b32 s{t+3}, s{t}, 3'); a(f's_add_u32 s{S.ST}, s{t+3}, s{t+2}')
    a(f's_mul_i32 s{t+3}, s{t}, 7'); a(f's_add_u32 s{S.FT}, s{t+3}, s{t+2}')
    a(f's_lshl_b32 s{t+3}, s{S.XCD}, 2'); a(f's_add_u32 s{S.GRP}, s{t+3}, s{t+1}')
    a(f's_mul_i32 s{S.RING}, s{S.WAVE}, {RINGB}')
    a('s_waitcnt lgkmcnt(0)')
    stamp(a, 0, T)
    if CFG.get('clk'):
        a('s_memtime s[80:81]'); a('s_memrealtime s[82:83]'); a('s_waitcnt lgkmcnt(0)')
    nn = a.label('nn')
    a(f's_or_b32 s{t}, s2, s{S.WAVE}'); a(f's_cmp_lg_u32 s{t}, 0'); a(f's_cbranch_scc1 {nn}')
    a(f's_memrealtime s[{t}:{t+1}]'); a('s_waitcnt lgkmcnt(0)'); a(f's_or_b32 s{t}, s{t}, 1')
    a(f'v_mov_b32 v{T}, s{t}'); a(f'v_mov_b32 v{T+1}, 0')
    a('s_mov_b64 exec, 1')
    a.lines.append(f'global_store_dword v{T+1}, v{T}, s[{S.DBG}:{S.DBG+1}] sc1')
    a('s_mov_b64 exec, -1')
    a(f'{nn}:')
    STR64 = t + 14
    read_addresses(a)
    a(f's_cmp_ge_u32 s{S.J}, 28')
    a(f's_cselect_b32 s{S.B}, s{S.W2}, s{S.W1}'); a(f's_cselect_b32 s{S.B+1}, s{S.W2+1}, s{S.W1+1}')
    a(f's_mov_b32 s{S.B+2}, {2048*3584}'); a(f's_mov_b32 s{S.B+3}, 0x20000')
    a(f's_cselect_b32 s{t+1}, s{S.ST}, s{S.FT}'); a(f's_movk_i32 s{t+2}, 3584'); a(f's_cselect_b32 s{t+2}, 4096, s{t+2}')
    a(f's_lshl_b32 s{t+1}, s{t+1}, 7')
    a(f's_lshl_b32 s{STR64}, s{t+2}, 6')
    a(f'v_lshrrev_b32 v{T}, 3, v{L}'); a(f'v_and_b32 v{T+1}, 7, v{L}'); a(f'v_lshlrev_b32 v{T+2}, 1, v{T}'); a(f'v_and_b32 v{T+2}, 4, v{T+2}')
    a(f'v_xor_b32 v{T+1}, v{T+1}, v{T+2}'); a(f'v_lshlrev_b32 v{T+1}, 4, v{T+1}')
    a(f'v_mad_u32_u24 v{V.Q0}, v{T}, s{t+2}, v{T+1}'); a(f'v_add_u32 v{V.Q0}, s{t+1}, v{V.Q0}')
    a(f's_lshl_b32 s{t+3}, s{t+2}, 3'); a(f's_sub_u32 s{t+3}, s{t+3}, 1024'); a(f'v_add_u32 v{V.Q1}, s{t+3}, v{V.Q0}')
    a(f's_mul_i32 s{S.SOB}, s{S.WAVE}, s{t+2}'); a(f's_lshl_b32 s{S.SOB}, s{S.SOB}, 4')
    pre = Preload(32, PRE_SRD, f's{STR64}', CFG['wmod'], range(NRING))
    for j in range(4): a(f's_mov_b32 s{PRE_SRD+j}, s{S.B+j}')
    phase1(a, pre)
    pre.drain(a)
    stamp(a, 5, T)
    poll(a, [([f's_mov_b32 s{t}, {WS_F1}'], 256)], 128)
    stamp(a, 6, T)
    a(f's_cmp_ge_u32 s{S.J}, 28'); a(f's_cbranch_scc1 {fft}')
    gemm1(a)
    a(f's_branch {p3}')
    a(f'{fft}:')
    fft_role(a)
    a(f'{p3}:')
    gemm2(a)
    if CFG.get('clk'):
        sk = a.label('clk')
        a('s_waitcnt vmcnt(0)')
        a('s_memtime s[84:85]'); a('s_memrealtime s[86:87]'); a('s_waitcnt lgkmcnt(0)')
        a('s_sub_u32 s84, s84, s80'); a('s_sub_u32 s86, s86, s82')
        a(f's_and_b32 s{t}, s2, 63'); a(f's_or_b32 s{t}, s{t}, s{S.WAVE}'); a(f's_cmp_lg_u32 s{t}, 0'); a(f's_cbranch_scc1 {sk}')
        a('s_mov_b64 exec, 1')
        a('v_mov_b32 v2, s84'); a('v_mov_b32 v3, s86'); a('s_lshr_b32 s84, s2, 6'); a('s_lshl_b32 s84, s84, 3'); a('s_add_u32 s84, s84, 8'); a('v_mov_b32 v4, s84')
        a(f'global_store_dwordx2 v4, v[2:3], s[{S.DBG}:{S.DBG+1}]')
        a(f'{sk}:')
    a(f'{end}:')
    a('s_endpgm')

PRE_SRD = 76

def tables(a):
    tb.emit(a, 'tab_k1', tb.f32mat('c') + tb.f32mat('ns') + tb.t512() + tb.a2())
    tb.emit(a, 'tab_fft', tb.f32mat('c') + tb.f32mat('s') + tb.f32mat('ns') + tb.t1024() + tb.t2048())

KNAME = 'parallel_sum__spectral_gfnet__mixer_token_mlp__prompt_kernel'
def make(path, **cfg):
    CFG.update(dict(stamps=0, early=12, inmod='nt', wmod='nt', wmod2='', spin=1 << 18, pf2=1, depth1=12, depth3=12))
    CFG.update(cfg)
    a = Em()
    a(HEADER + f'; @launch grid=(256,1,1) block=(256,1,1) lds={LDS_TOTAL}\n' + '.amdgcn_target "amdgcn-amd-amdhsa--gfx950"\n.text')
    mega(a, KNAME)
    tables(a)
    a('.section .rodata,"a"\n.p2align 6')
    a(descriptor(KNAME, 256, 256))
    open(path, 'w').write(a.text())
    build(path, [(KNAME, (256, 1, 1), (256, 1, 1), LDS_TOTAL)])

if __name__ == '__main__':
    o = dict(x.split('=') for x in sys.argv[2:])
    cfg = {k: (int(v) if v.lstrip('-').isdigit() else v.replace('_', ' ')) for k, v in o.items()}
    make(sys.argv[1], **cfg)
```

```python
import sys, struct
from asm2 import *
import tables as tb

WS_BASE = 0
WS_H    = WS_BASE + 0x000000
WS_GT   = WS_BASE + 0x200000
WS_FINV = WS_GT + 1792 * 1024
WS_ZB   = WS_BASE + 0x480000
WS_WP   = WS_BASE + 0x680000
WS_AL   = WS_BASE + 0x880000
WS_BE   = WS_BASE + 0x882000
WS_F1   = WS_BASE + 0x890000
WS_F2   = WS_BASE + 0x898000
WS_F3   = WS_BASE + 0x8A0000
WS_YT   = WS_BASE + 0x900000
WS_STAMP = 0x10000000 - (16 << 20)
NSLOT = 16

NRING = 18
RINGB = NRING * 2048
LDS_EX = 4 * RINGB
LDS_TOTAL = LDS_EX + 16384
LDS_Z, LDS_W, LDS_X = 0, 65536, 131072

class S:
    WAVE = 3
    X, WR, WI, BX, W1, B1, W2, B2, OUT, DBG, WS = 4, 6, 8, 10, 12, 14, 16, 18, 20, 22, 24
    NONCE, XCD, J, RING = 26, 27, 28, 29
    DT, FT, ST, GRP = 30, 31, 32, 33
    A, B, C, D = 36, 40, 44, 48
    SOA, SOB = 52, 53
    TAB = 54
    T = 56
    STMP = 72

CFG = dict(stamps=0, early=12, inmod='nt', wmod='nt', spin=1 << 18)

def fb(x): return '0x%08x' % struct.unpack('<I', struct.pack('<f', x))[0]

def srd(a, s, base, off, size):
    with a.atomic():
        if off:
            a(f's_add_u32 s{s}, s{base}, {off}'); a(f's_addc_u32 s{s+1}, s{base+1}, 0')
        else:
            a(f's_mov_b32 s{s}, s{base}'); a(f's_mov_b32 s{s+1}, s{base+1}')
        a(f's_mov_b32 s{s+2}, {size}'); a(f's_mov_b32 s{s+3}, 0x20000')

def stamp(a, slot, vt):
    if not CFG['stamps']: return
    st = S.STMP
    skip = a.label('stamp')
    old = a.in_bg; a.in_bg = True
    a(f's_memrealtime s[{st}:{st+1}]')
    a(f'v_cmp_eq_u32 vcc, 0, v0')
    a(f's_and_saveexec_b64 s[{st+2}:{st+3}], vcc')
    a(f's_waitcnt lgkmcnt(0)')
    a(f's_cbranch_execz {skip}')
    a(f'v_mov_b32 v{vt}, s{st}'); a(f'v_mov_b32 v{vt+1}, s{st+1}')
    a(f's_mul_i32 s{st}, s2, {NSLOT*8}'); a(f's_add_u32 s{st}, s{st}, {WS_STAMP + slot*8}')
    a(f'v_mov_b32 v{vt+2}, s{st}')
    a.lines.append(f'global_store_dwordx2 v{vt+2}, v[{vt}:{vt+1}], s[{S.WS}:{S.WS+1}]')
    a(f'{skip}:')
    a(f's_mov_b64 exec, s[{st+2}:{st+3}]')
    a.in_bg = old
    a.nobg('s_waitcnt vmcnt(0)') if CFG['stamps'] == 2 else None

def table_base(a, s, label):
    l = a.label('pc')
    a(f's_getpc_b64 s[{s}:{s+1}]'); a(f'{l}:')
    a(f's_add_u32 s{s}, s{s}, {label}-{l}'); a(f's_addc_u32 s{s+1}, s{s+1}, 0')

def table_load(a, s, voff, dsts, g0=0):
    cur = 0
    for n, dst in enumerate(dsts):
        g = g0 + n
        while g * 1024 - cur >= 4096:
            a(f'v_add_u32 v{voff}, 4096, v{voff}'); cur += 4096
        a(f'global_load_dwordx4 {dst}, v{voff}, s[{s}:{s+1}] offset:{g*1024-cur}')

def publish(a, off_expr_lines, s_off, vt):
    skip = a.label('pub')
    a(f's_cmp_lg_u32 s{S.WAVE}, 0'); a(f's_cbranch_scc1 {skip}')
    for l in off_expr_lines: a(l)
    a('s_mov_b64 exec, 1')
    a(f'v_mov_b32 v{vt}, s{S.NONCE}'); a(f'v_mov_b32 v{vt+1}, s{s_off}')
    a.lines.append(f'global_store_dword v{vt+1}, v{vt}, s[{S.WS}:{S.WS+1}] sc1')
    a('s_mov_b64 exec, -1')
    a(f'{skip}:')

def poll(a, groups, vt):
    skip, loop, ok = a.label('poll_skip'), a.label('poll'), a.label('poll_ok')
    T = S.T
    a(f's_cmp_lg_u32 s{S.WAVE}, 0'); a(f's_cbranch_scc1 {skip}')
    loads = []
    nv = 0
    for (lines, count) in groups:
        for l in lines: a(l)
        for c0 in range(0, count, 64):
            n = min(64, count - c0)
            va = vt + 2 * nv
            a(f'v_and_b32 v{va}, 63, v0')
            if n < 64: a(f'v_min_u32 v{va}, {n-1}, v{va}')
            a(f'v_lshlrev_b32 v{va}, 7, v{va}')
            a(f'v_add_u32 v{va}, s{T}, v{va}')
            if c0: a(f'v_add_u32 v{va}, {c0*128}, v{va}')
            loads.append(va); nv += 1
    a(f's_mov_b32 s{T+1}, 0')
    a(f'{loop}:')
    for va in loads:
        a.lines.append(f'global_load_dword v{va+1}, v{va}, s[{S.WS}:{S.WS+1}] sc1')
    a('s_waitcnt vmcnt(0)')
    first = True
    for va in loads:
        a(f'v_xor_b32 v{va+1}, s{S.NONCE}, v{va+1}')
        if not first: a(f'v_or_b32 v{loads[0]+1}, v{loads[0]+1}, v{va+1}')
        first = False
    a(f'v_cmp_eq_u32 vcc, 0, v{loads[0]+1}')
    a('s_nop 4')
    a('s_cmp_eq_u64 vcc, -1'); a(f's_cbranch_scc1 {ok}')
    a(f's_add_u32 s{T+1}, s{T+1}, 1'); a(f's_cmp_lt_u32 s{T+1}, {CFG["spin"]}'); a(f's_cbranch_scc1 {loop}')
    a(f'{ok}:')
    a(f'{skip}:')
    a('s_barrier')

class V:
    LANE = 1
    P0, P1, Q0, Q1 = 2, 3, 4, 5
    RA0, RA1, RB0, RB1 = 6, 7, 8, 9
    FR = 12
    FQ = 28
    T = 44
    ACC = 64
    VD = 128

def dma_offsets(a, dst0, dst1, stride, s_col):
    L, T = V.LANE, V.T
    a(f'v_lshrrev_b32 v{T}, 3, v{L}'); a(f'v_and_b32 v{T+1}, 7, v{L}')
    a(f'v_lshlrev_b32 v{T+2}, 1, v{T}'); a(f'v_and_b32 v{T+2}, 4, v{T+2}')
    a(f'v_xor_b32 v{T+1}, v{T+1}, v{T+2}'); a(f'v_lshlrev_b32 v{T+1}, 4, v{T+1}')
    a(f's_mov_b32 s{S.T}, {stride}')
    a(f'v_mad_u32_u24 v{dst0}, v{T}, s{S.T}, v{T+1}')
    a(f'v_add_u32 v{dst0}, s{s_col}, v{dst0}')
    a(f'v_add_u32 v{dst1}, {8*stride-1024}, v{dst0}')

def read_addresses(a):
    L, T = V.LANE, V.T
    a(f'v_lshrrev_b32 v{T}, 5, v{L}'); a(f'v_lshlrev_b32 v{T}, 3, v{T}')
    a(f'v_bfe_u32 v{T+1}, v{L}, 2, 2'); a(f'v_add_u32 v{T}, v{T}, v{T+1}'); a(f'v_lshlrev_b32 v{T}, 7, v{T}')
    a(f'v_bfe_u32 v{T+2}, v{L}, 4, 1'); a(f'v_lshlrev_b32 v{T+2}, 5, v{T+2}')
    a(f'v_and_b32 v{T+3}, 3, v{L}'); a(f'v_lshl_add_u32 v{T+2}, v{T+3}, 3, v{T+2}')
    a(f'v_lshlrev_b32 v{T+1}, 5, v{T+1}'); a(f'v_and_b32 v{T+1}, 64, v{T+1}'); a(f'v_or_b32 v{T+2}, v{T+2}, v{T+1}')
    a(f'v_add3_u32 v{T}, v{T}, v{T+2}, s{S.RING}')
    a(f's_lshl_b32 s{S.T}, s{S.WAVE}, 6'); a(f's_and_b32 s{S.T}, s{S.T}, 64')
    a(f'v_xor_b32 v{V.RA0}, s{S.T}, v{T}'); a(f'v_xor_b32 v{V.RA1}, 64, v{V.RA0}')
    a(f's_lshl_b32 s{S.T}, s{S.WAVE}, 5'); a(f's_and_b32 s{S.T}, s{S.T}, 64')
    a(f'v_xor_b32 v{V.RB0}, s{S.T}, v{T}'); a(f'v_xor_b32 v{V.RB1}, 64, v{V.RB0}')

def dma_groups(slot, v0, v1, srd_, so, stride, mods):
    g0 = [f's_add_u32 m0, s{S.RING}, {slot*2048}', 's_nop 0',
          f'buffer_load_dwordx4 v{v0}, s[{srd_}:{srd_+3}], s{so} offen {mods} lds']
    g1 = [f'buffer_load_dwordx4 v{v1}, s[{srd_}:{srd_+3}], s{so} offen offset:1024 {mods} lds',
          f's_add_u32 s{so}, s{so}, {stride if isinstance(stride, str) else 64*stride}']
    return g0, g1

def tile_reads(a, slot, side, dst):
    for t in range(2):
        ra = (V.RA0, V.RA1, V.RB0, V.RB1)[side * 2 + t]
        for q in range(2):
            a(f'ds_read_b64_tr_b16 {dst(t, q)}, v{ra} offset:{slot*2048 + q*512}')

def vpair(base): return lambda t, q: f'v[{base+4*t+2*q}:{base+4*t+2*q+1}]'
def apair(base): return lambda t, q: f'a[{base+4*t+2*q}:{base+4*t+2*q+1}]'

class Preload:
    def __init__(self, nsteps, srd_, stride, mods, slots):
        self.n, self.srd, self.stride, self.mods, self.slots = nsteps, srd_, stride, mods, list(slots)
        self.issued = 0; self.done = 0; self.h = {}; self.slot = {}; self.free = list(slots)
    def issue_groups(self, k):
        out = []
        for _ in range(k):
            if self.issued >= self.n or not self.free: break
            u = self.issued; self.issued += 1
            sl = self.free.pop(0); self.slot[u] = sl
            g0, g1 = dma_groups(sl, V.Q0, V.Q1, self.srd, S.SOB, self.stride, self.mods)
            def mk(u, g1):
                def f(a):
                    for l in g1: a(l)
                    self.h[u] = a.mark()
                return f
            out += [g0, mk(u, g1)]
        return out
    def issue(self, a, k):
        for g in self.issue_groups(k):
            g(a) if callable(g) else [a(l) for l in g]
    def drain(self, a, upto=None, more_slots=()):
        self.free += list(more_slots)
        upto = self.n if upto is None else upto
        self.issue(a, len(self.free))
        pend = None
        while self.done < upto:
            u = self.done
            a.wait_vm(self.h[u])
            tile_reads(a, self.slot[u], 1, apair(8 * u))
            if pend is not None:
                a('s_waitcnt lgkmcnt(4)')
                self.free.append(self.slot[pend]); self.issue(a, 1)
            pend = u
            self.done += 1
        a('s_waitcnt lgkmcnt(0)')
        if pend is not None: self.free.append(self.slot[pend])

def mfma_step(fs, qreg):
    f = V.FR + 8 * fs
    out = []
    for nt in range(2):
        for mt in range(2):
            acc = V.ACC + (nt * 2 + mt) * 16
            out.append(f'v_mfma_f32_32x32x16_bf16 v[{acc}:{acc+15}], v[{f+4*mt}:{f+4*mt+3}], {qreg(nt)}, v[{acc}:{acc+15}]')
    return out

def stream_loop(a, steps, depth, bg_extra=()):
    items = []
    for u, st in enumerate(steps):
        for it in st['items']: items.append((u, it))
    nxt = 0; free = list(range(NRING)); slot = {}; h = {}
    def issue_one():
        nonlocal nxt
        u, it = items[nxt]; key = (u, it[0]); nxt += 1
        sl = free.pop(0); slot[key] = sl
        pre = it[7] if len(it) > 7 else []
        for l in pre: a(l)
        g0, g1 = dma_groups(sl, it[1], it[2], it[3], it[4], it[5], it[6])
        for l in g0 + g1: a(l)
        h[key] = a.mark()
    def reads(u):
        fs = u % 2
        for it in steps[u]['items']:
            key = (u, it[0])
            if it[0] == 0: tile_reads(a, slot[key], 0, vpair(V.FR + 8 * fs))
            else: tile_reads(a, slot[key], 1, vpair(V.FQ + 8 * fs))
    def last_handle(u): return max(h[(u, it[0])] for it in steps[u]['items'])
    for i in range(64): a(f'v_mov_b32 v{V.ACC+i}, 0')
    inflight = lambda: NRING - len(free)
    while nxt < len(items) and inflight() < depth: issue_one()
    for g in bg_extra:
        g(a) if callable(g) else [a(l) for l in g]
    a.wait_vm(last_handle(0))
    reads(0)
    n = len(steps)
    for u in range(n):
        fs = u % 2
        q = steps[u]['q']
        qreg = (lambda nt, q=q: f'a[{8*q+4*nt}:{8*q+4*nt+3}]') if q is not None else (lambda nt, fs=fs: f'v[{V.FQ+8*fs+4*nt}:{V.FQ+8*fs+4*nt+3}]')
        m = mfma_step(fs, qreg)
        a('s_waitcnt lgkmcnt(0)')
        a(m[0])
        for it in steps[u]['items']: free.append(slot[(u, it[0])])
        while nxt < len(items) and inflight() < depth and free: issue_one()
        a(m[1])
        if u + 1 < n:
            a.wait_vm(last_handle(u + 1))
            reads(u + 1)
        a(m[2]); a(m[3])

def reduce_partials(a, bg=None):
    L, T = V.LANE, V.T
    a(f'v_lshlrev_b32 v{T}, 4, v{L}')
    a(f'v_add_u32 v{T+1}, s{S.RING}, v{T}')
    for t in range(1, 4):
        a(f's_xor_b32 s{S.T}, s{S.WAVE}, {t}'); a(f's_mul_i32 s{S.T}, s{S.T}, {RINGB}')
        a(f'v_add_u32 v{T+1+t}, s{S.T}, v{T}')
    a('s_nop 7')
    for t in range(1, 4):
        for i in range(4):
            r = V.ACC + t*16 + i*4
            a(f'ds_write_b128 v{T+1}, v[{r}:{r+3}] offset:{(t-1)*4096+i*1024}')
    a('s_waitcnt lgkmcnt(0)')
    a('s_barrier')
    for t in range(1, 4):
        for i in range(4):
            r = V.ACC + t*16 + i*4
            a(f'ds_read_b128 v[{r}:{r+3}], v{T+1+t} offset:{(t-1)*4096+i*1024}')
    a('s_waitcnt lgkmcnt(8)')
    for i in range(16): a(f'v_add_f32 v{V.VD+i}, v{V.ACC+i}, v{V.ACC+16+i}')
    a('s_waitcnt lgkmcnt(4)')
    for i in range(16): a(f'v_add_f32 v{V.VD+i}, v{V.VD+i}, v{V.ACC+32+i}')
    a('s_waitcnt lgkmcnt(0)')
    for i in range(16): a(f'v_add_f32 v{V.VD+i}, v{V.VD+i}, v{V.ACC+48+i}')

def row_sum(a, v, t):
    for n in (8, 4, 2, 1):
        a('s_nop 1')
        a(f'v_add_f32_dpp v{v}, v{v}, v{v} row_ror:{n} row_mask:0xf bank_mask:0xf')
    a(f'v_mov_b32 v{t}, v{v}')
    a('s_nop 1')
    a(f'v_permlane32_swap_b32 v{v}, v{t}')
    a('s_nop 0')
    a(f'v_add_f32 v{v}, v{v}, v{t}')

def rbf(a, d, s):
    a(f'v_cvt_pk_bf16_f32 v{d}, v{s}, v{s}')
    a(f'v_lshlrev_b32 v{d}, 16, v{d}')

def layernorm(a, X, P, T, unpack):
    t0, t1, t2, t3 = T, T + 1, T + 2, T + 3
    a(f'v_add_f32 v{t0}, v{X}, v{X+1}'); a(f'v_add_f32 v{t1}, v{X+2}, v{X+3}')
    for i in range(4, 16, 2):
        a(f'v_add_f32 v{t0}, v{t0}, v{X+i}'); a(f'v_add_f32 v{t1}, v{t1}, v{X+i+1}')
    a(f'v_add_f32 v{t0}, v{t0}, v{t1}')
    row_sum(a, t0, t1)
    a(f'v_mul_f32 v{t0}, 0x3b000000, v{t0}')
    rbf(a, t2, t0)
    a(f'v_sub_f32 v{t3}, v{t0}, v{t2}')
    for i in range(16):
        a(f'v_sub_f32 v{X+i}, v{X+i}, v{t2}')
    a(f'v_mul_f32 v{t0}, v{X}, v{X}'); a(f'v_mul_f32 v{t1}, v{X+1}, v{X+1}')
    for i in range(2, 16, 2):
        a(f'v_fmac_f32 v{t0}, v{X+i}, v{X+i}'); a(f'v_fmac_f32 v{t1}, v{X+i+1}, v{X+i+1}')
    a(f'v_add_f32 v{t0}, v{t0}, v{t1}')
    row_sum(a, t0, t1)
    a(f'v_mul_f32 v{t0}, 0x3b000000, v{t0}')
    a(f'v_fma_f32 v{t0}, -v{t3}, v{t3}, v{t0}')
    a(f'v_max_f32 v{t0}, 0, v{t0}')
    rbf(a, t0, t0)
    a(f'v_add_f32 v{t0}, 0x3727c5ac, v{t0}')
    rbf(a, t0, t0)
    a(f'v_sqrt_f32 v{t0}, v{t0}')
    a('s_nop 0')
    rbf(a, t0, t0)
    a(f'v_rcp_f32 v{t0}, v{t0}')
    for q in range(8):
        a(f'v_cvt_pk_bf16_f32 v{P+q}, v{X+2*q}, v{X+2*q+1}')
    for q in range(8):
        a(f'v_lshlrev_b32 v{X+2*q}, 16, v{P+q}')
        a(f'v_and_b32 v{X+2*q+1}, 0xffff0000, v{P+q}')
    for i in range(16):
        a(f'v_mul_f32 v{X+i}, v{X+i}, v{t0}')
    for q in range(8):
        a(f'v_cvt_pk_bf16_f32 v{P+q}, v{X+2*q}, v{X+2*q+1}')
    if unpack:
        for q in range(8):
            a(f'v_lshlrev_b32 v{X+2*q}, 16, v{P+q}')
            a(f'v_and_b32 v{X+2*q+1}, 0xffff0000, v{P+q}')

def finv_job(a, R):
    skip = a.label('finv')
    a(f's_cmp_lg_u32 s{S.WAVE}, 3'); a(f's_cbranch_scc1 {skip}')
    srd(a, S.D, S.WS, WS_FINV, 512 * 1024)
    L = V.LANE
    for e in range(2):
        t = S.T
        a(f's_mov_b32 s{t}, s2')
        a(f's_mov_b32 s{t+1}, {128*e}')
        a(f's_mov_b32 s{t+2}, 0x36000000')
        a('s_cmp_eq_u32 s2, 0')
        a(f's_cselect_b32 s{t+2}, 0x35800000, s{t+2}')
        if e == 1:
            a(f's_cselect_b32 s{t}, 0x100, s{t}')
            a(f's_cselect_b32 s{t+1}, 0, s{t+1}')
        a(f'v_lshlrev_b32 v{R}, 3, v{L}')
        a(f'v_mul_u32_u24 v{R}, s{t}, v{R}'); a(f'v_add_u32 v{R}, s{t+1}, v{R}')
        for k in range(8):
            r = R + 2 + k
            a(f'v_and_b32 v{r}, 511, v{R}'); a(f'v_cvt_f32_u32 v{r}, v{r}'); a(f'v_mul_f32 v{r}, 0x3b000000, v{r}')
            a(f'v_cos_f32 v{r}, v{r}'); a(f'v_add_u32 v{R}, s{t}, v{R}'); a(f'v_mul_f32 v{r}, s{t+2}, v{r}')
        o = R + 12 + 4*e
        for q in range(4): a(f'v_cvt_pk_bf16_f32 v{o+q}, v{R+2+2*q}, v{R+3+2*q}')
        a(f's_lshl_b32 s{t+3}, s2, 11'); a(f's_add_u32 s{t+3}, s{t+3}, {1024*e}')
        a(f'v_lshlrev_b32 v{R+1}, 4, v{L}')
        a.lines.append(f'buffer_store_dwordx4 v[{o}:{o+3}], v{R+1}, s[{S.D}:{S.D+3}], s{t+3} offen sc1')
    a(f'{skip}:')

def ab_loads(a, R):
    skip = a.label('abl')
    a(f's_cmp_lg_u32 s{S.WAVE}, 2'); a(f's_cbranch_scc1 {skip}')
    L = V.LANE
    a(f's_lshl_b32 s{S.T}, s2, 3')
    a(f'v_and_b32 v{R}, 7, v{L}'); a(f'v_add_u32 v{R}, s{S.T}, v{R}')
    a(f'v_sub_u32 v{R+1}, 0x800, v{R}'); a(f'v_and_b32 v{R+1}, 0x7ff, v{R+1}')
    a(f's_movk_i32 s{S.T}, 514')
    a(f'v_mul_lo_u32 v{R+2}, v{R}, s{S.T}'); a(f'v_mul_lo_u32 v{R+3}, v{R+1}, s{S.T}')
    for n, (v, s, off) in enumerate([(2, S.B, 0), (3, S.B, 0), (2, S.B, 512), (3, S.B, 512), (2, S.C, 0), (3, S.C, 0), (2, S.C, 512), (3, S.C, 512)]):
        a.lines.append(f'buffer_load_ushort v{R+4+n}, v{R+v}, s[{s}:{s+3}], 0 offen offset:{off}')
    a(f'{skip}:')

def ab_finish(a, R):
    with a.atomic(): ab_finish_(a, R)
def ab_finish_(a, R):
    skip = a.label('abf')
    a(f's_cmp_lg_u32 s{S.WAVE}, 2'); a(f's_cbranch_scc1 {skip}')
    for n in range(8): a(f'v_lshlrev_b32 v{R+4+n}, 16, v{R+4+n}')
    a(f'v_add_f32 v{R+2}, v{R+4}, v{R+5}'); a(f'v_add_f32 v{R+3}, v{R+6}, v{R+7}')
    a(f'v_sub_f32 v{R+4}, v{R+8}, v{R+9}'); a(f'v_sub_f32 v{R+5}, v{R+10}, v{R+11}')
    a(f'v_add_f32 v{R+6}, v{R+2}, v{R+3}'); a(f'v_add_f32 v{R+7}, v{R+4}, v{R+5}')
    a(f'v_sub_f32 v{R+8}, v{R+2}, v{R+3}'); a(f'v_sub_f32 v{R+9}, v{R+4}, v{R+5}')
    for n in range(4): a(f'v_mul_f32 v{R+6+n}, 0x3e800000, v{R+6+n}')
    a(f'v_cvt_pk_bf16_f32 v{R+2}, v{R+6}, v{R+7}'); a(f'v_cvt_pk_bf16_f32 v{R+3}, v{R+8}, v{R+9}')
    a(f'v_and_b32 v{R+4}, 1, v{R}'); a(f'v_lshlrev_b32 v{R+4}, 8, v{R+4}')
    a(f'v_lshrrev_b32 v{R+5}, 8, v{R}'); a(f'v_lshl_add_u32 v{R+4}, v{R+5}, 5, v{R+4}')
    a(f'v_bfe_u32 v{R+5}, v{R}, 1, 5'); a(f'v_add_u32 v{R+4}, v{R+4}, v{R+5}')
    a(f'v_bfe_u32 v{R+5}, v{R}, 6, 2'); a(f'v_lshlrev_b32 v{R+5}, 2, v{R+5}'); a(f'v_lshl_add_u32 v{R+4}, v{R+4}, 4, v{R+5}')
    srd(a, S.D, S.WS, WS_AL, 0x4000)
    a('s_mov_b64 exec, 0xff')
    a.lines.append(f'buffer_store_dword v{R+2}, v{R+4}, s[{S.D}:{S.D+3}], 0 offen sc1')
    a(f'v_add_u32 v{R+4}, {WS_BE-WS_AL}, v{R+4}')
    a.lines.append(f'buffer_store_dword v{R+3}, v{R+4}, s[{S.D}:{S.D+3}], 0 offen sc1')
    a('s_mov_b64 exec, -1')
    a(f'{skip}:')

def phase1(a, pre):
    L = V.LANE
    VO, VT, VE = 10, 11, 44
    X, XA = 128, 144
    C32, NS32, TC, TS, A2R, A2I = 152, 160, 168, 176, 184, 188
    D1R, D1I = 192, 208
    BR, BI = 224, 232
    T = 240
    WQ = 64
    AB = 96
    FI = 108
    t = S.T
    table_base(a, S.TAB, 'tab_k1')
    for i in range(16): a(f'v_mov_b32 v{X+i}, 0')
    a(f's_lshl_b32 s{t+8}, s2, 2'); a(f's_add_u32 s{t+8}, s{t+8}, s{S.WAVE}')
    a(f'v_bfe_u32 v{T}, v{L}, 4, 1'); a(f'v_lshlrev_b32 v{T}, 10, v{T}'); a(f'v_add_u32 v{T}, s{t+8}, v{T}')
    a(f'v_lshlrev_b32 v{T}, 10, v{T}'); a(f'v_and_b32 v{T+1}, 15, v{L}'); a(f'v_lshl_add_u32 v{T}, v{T+1}, 1, v{T}')
    a(f'v_lshrrev_b32 v{T+1}, 5, v{L}'); a(f'v_lshl_add_u32 v{VO}, v{T+1}, 7, v{T}')
    a(f'v_lshlrev_b32 v{VT}, 4, v{L}')
    srd(a, S.A, S.X, 0, 2048 * 1024)
    for b in range(2):
        for jj in range(8):
            a(f'buffer_load_short_d16_hi v{X+8*b+jj}, v{VO}, s[{S.A}:{S.A+3}], 0 offen offset:{512*b+256*(jj//4)+32*(jj%4)} {CFG["inmod"]}')
    hx = a.mark()
    table_load(a, S.TAB, VT, [f'v[{r}:{r+3}]' for r in range(C32, C32 + 40, 4)])
    htab = a.mark()
    srd(a, S.B, S.WR, 0, 2048 * 514); srd(a, S.C, S.WI, 0, 2048 * 514)
    a(f's_lshr_b32 s{t}, s{S.WAVE}, 1'); a(f's_lshl_b32 s{t+1}, s2, 1'); a(f's_add_u32 s{t}, s{t}, s{t+1}')
    a(f's_and_b32 s{t+1}, s{t}, 63'); a(f's_lshr_b32 s{t+2}, s{t}, 6')
    a(f's_lshl_b32 s{t+3}, s{t+2}, 8'); a(f's_add_u32 s{t+3}, s{t+3}, s{t+1}'); a(f's_mul_i32 s{t+3}, s{t+3}, 514')
    a(f's_and_b32 s{t+4}, s{S.WAVE}, 1'); a(f's_lshl_b32 s{t+5}, s{t+4}, 8'); a(f's_add_u32 s{t+3}, s{t+3}, s{t+5}')
    a(f'v_lshlrev_b32 v{WQ}, 2, v{L}'); a(f'v_add_u32 v{WQ}, s{t+3}, v{WQ}')
    for j in range(4):
        a(f's_mov_b32 s{t+5}, {j*64*514}')
        a(f'buffer_load_dword v{WQ+2+j}, v{WQ}, s[{S.B}:{S.B+3}], s{t+5} offen {CFG["inmod"]}')
        a(f'buffer_load_dword v{WQ+6+j}, v{WQ}, s[{S.C}:{S.C+3}], s{t+5} offen {CFG["inmod"]}')
    hw = a.mark()
    a(f's_and_b32 s{t+5}, s{t}, 1'); a(f's_lshl_b32 s{t+5}, s{t+5}, 8'); a(f's_lshl_b32 s{t+6}, s{t+2}, 5'); a(f's_add_u32 s{t+5}, s{t+5}, s{t+6}')
    a(f's_lshr_b32 s{t+6}, s{t+1}, 1'); a(f's_add_u32 s{t+5}, s{t+5}, s{t+6}'); a(f's_lshl_b32 s{t+5}, s{t+5}, 7')
    a(f's_lshl_b32 s{t+6}, s{t+4}, 20'); a(f's_add_u32 s{t+5}, s{t+5}, s{t+6}')
    a(f'v_lshrrev_b32 v{WQ+1}, 3, v{L}'); a(f'v_lshlrev_b32 v{WQ+1}, 16, v{WQ+1}'); a(f'v_and_b32 v{WQ}, 7, v{L}')
    a(f'v_lshl_add_u32 v{WQ+1}, v{WQ}, 4, v{WQ+1}'); a(f'v_add_u32 v{WQ+1}, s{t+5}, v{WQ+1}')
    ab_loads(a, AB)
    if CFG.get('tlb'):
        g = CFG['tlb']
        a(f'v_lshlrev_b32 v{T+7}, {g}, v{L}')
        step = 64 << g
        def touch(base, size):
            with a.atomic():
                for o in range(0, size, step):
                    a(f's_add_u32 s{t+12}, s{base}, {o}'); a(f's_addc_u32 s{t+13}, s{base+1}, 0')
                    n = min(64, (size - o + (1 << g) - 1) >> g)
                    if n < 64: a(f's_bfm_b64 exec, {n}, 0')
                    a(f'global_load_dword v{VT}, v{T+7}, s[{t+12}:{t+13}]')
                    if n < 64: a('s_mov_b64 exec, -1')
        touch(S.OUT, 2048 * 1024); touch(S.WS, 0xB00000); touch(S.W2, 1792 * 4096); touch(S.W1, 2048 * 3584)
    pre.issue(a, CFG['early'])
    finv_job(a, FI)
    a(f'v_cvt_f32_u32 v{T+4}, s{t+8}'); a(f'v_mul_f32 v{T+4}, 0x3a000000, v{T+4}')
    a(f'v_cos_f32 v{T+5}, v{T+4}'); a(f'v_sin_f32 v{T+6}, v{T+4}')
    a(f's_lshl_b32 s{t+9}, s{S.WAVE}, 12'); a(f's_add_u32 s{t+9}, s{t+9}, {LDS_EX}')
    stamp(a, 1, T)
    a.wait_vm(hx)
    stamp(a, 2, T)
    a.bg_start(pre.issue_groups(NRING), 12)
    layernorm(a, X, XA, T, True)
    a.wait_vm(htab)
    for b in range(2):
        c = '0' if b == 0 else f'v[{D1R}:{D1R+15}]'
        a(f'v_mfma_f32_32x32x16_bf16 v[{D1R}:{D1R+15}], v[{XA+4*b}:{XA+4*b+3}], v[{C32+4*b}:{C32+4*b+3}], {c}')
        c = '0' if b == 0 else f'v[{D1I}:{D1I+15}]'
        a(f'v_mfma_f32_32x32x16_bf16 v[{D1I}:{D1I+15}], v[{XA+4*b}:{XA+4*b+3}], v[{NS32+4*b}:{NS32+4*b+3}], {c}')
    a.wait_vm(hw)
    a(f's_mov_b32 s{t+10}, 0x05040100'); a(f's_mov_b32 s{t+11}, 0x07060302')
    for e in range(2):
        for j in range(4):
            a(f'v_perm_b32 v{WQ+10+4*e+j}, v{WQ+6+j}, v{WQ+2+j}, s{t+10+e}')
    a(f'v_lshlrev_b32 v{VE}, 5, v{L}'); a(f'v_add_u32 v{VE}, s{t+9}, v{VE}')
    a(f'ds_write_b128 v{VE}, v[{WQ+10}:{WQ+13}]'); a(f'ds_write_b128 v{VE}, v[{WQ+14}:{WQ+17}] offset:16')
    a(f'v_lshlrev_b32 v{VE}, 4, v{L}'); a(f'v_add_u32 v{VE}, s{t+9}, v{VE}')
    a(f'ds_read_b128 v[{WQ+20}:{WQ+23}], v{VE}'); a(f'ds_read_b128 v[{WQ+24}:{WQ+27}], v{VE} offset:1024')
    srd(a, S.D, S.WS, WS_WP, 32 * 512 * 128)
    a('s_waitcnt lgkmcnt(0)')
    a(f'buffer_store_dwordx4 v[{WQ+20}:{WQ+23}], v{WQ+1}, s[{S.D}:{S.D+3}], 0 offen sc1')
    a(f's_mov_b32 s{t+5}, {8*65536}')
    a(f'buffer_store_dwordx4 v[{WQ+24}:{WQ+27}], v{WQ+1}, s[{S.D}:{S.D+3}], s{t+5} offen sc1')
    ab_finish(a, AB)
    HP = XA
    layernorm(a, X, HP, T, False)
    a(f'v_bfe_u32 v{T}, v{L}, 4, 1'); a(f'v_mul_u32_u24 v{T}, 1056, v{T}'); a(f'v_and_b32 v{T+1}, 15, v{L}')
    a(f'v_lshl_add_u32 v{T}, v{T+1}, 1, v{T}'); a(f'v_lshrrev_b32 v{T+1}, 5, v{L}'); a(f'v_lshl_add_u32 v{T}, v{T+1}, 7, v{T}')
    a(f'v_add_u32 v{T}, s{t+9}, v{T}')
    for q in range(8):
        b, jq = q // 4, q % 4
        for e in range(2):
            jj = 2 * jq + e
            op = 'ds_write_b16_d16_hi' if e else 'ds_write_b16'
            a(f'{op} v{T}, v{HP+q} offset:{512*b+256*(jj//4)+32*(jj%4)}')
    a(f'ds_read_b128 v[{WQ+20}:{WQ+23}], v{VE}'); a(f'ds_read_b128 v[{WQ+24}:{WQ+27}], v{VE} offset:1056')
    srd(a, S.D, S.WS, WS_H, 2048 * 1024)
    a(f's_lshl_b32 s{t+5}, s{t+8}, 10'); a(f's_add_u32 s{t+6}, s{t+5}, {1024*1024}')
    a(f'v_lshlrev_b32 v{T+1}, 4, v{L}')
    for i in range(4):
        for j in range(4):
            r_, i_ = D1R + 4*i + j, D1I + 4*i + j
            tc, ts = TC + 4*(i % 2) + j, TS + 4*(i % 2) + j
            a(f'v_mul_f32 v{X+j}, v{r_}, v{tc}'); a(f'v_fmac_f32 v{X+j}, v{i_}, v{ts}')
            a(f'v_mul_f32 v{X+4+j}, v{i_}, v{tc}'); a(f'v_fma_f32 v{X+4+j}, -v{r_}, v{ts}, v{X+4+j}')
        a(f'v_cvt_pk_bf16_f32 v{BR+2*i}, v{X}, v{X+1}');   a(f'v_cvt_pk_bf16_f32 v{BR+2*i+1}, v{X+2}, v{X+3}')
        a(f'v_cvt_pk_bf16_f32 v{BI+2*i}, v{X+4}, v{X+5}'); a(f'v_cvt_pk_bf16_f32 v{BI+2*i+1}, v{X+6}, v{X+7}')
        if i == 0:
            a('s_waitcnt lgkmcnt(0)')
            a(f'buffer_store_dwordx4 v[{WQ+20}:{WQ+23}], v{T+1}, s[{S.D}:{S.D+3}], s{t+5} offen sc1')
            a(f'buffer_store_dwordx4 v[{WQ+24}:{WQ+27}], v{T+1}, s[{S.D}:{S.D+3}], s{t+6} offen sc1')
    a('s_nop 1')
    D2 = (D1R, D1I)
    for r in range(2):
        a(f'v_mfma_f32_32x32x16_bf16 v[{D2[r]}:{D2[r]+15}], v[{A2R}:{A2R+3}], v[{BR+4*r}:{BR+4*r+3}], 0')
    for r in range(2):
        a(f'v_mfma_f32_32x32x16_bf16 v[{D2[r]}:{D2[r]+15}], v[{A2I}:{A2I+3}], v[{BI+4*r}:{BI+4*r+3}], v[{D2[r]}:{D2[r]+15}]')
    a.bg_flush()
    a(f'v_and_b32 v{T}, 31, v0'); a(f'v_lshrrev_b32 v{T+1}, 5, v0'); a(f'v_lshrrev_b32 v{T+2}, 2, v{T+1}'); a(f'v_lshlrev_b32 v{T+2}, 10, v{T+2}')
    a(f'v_bfe_u32 v{T+3}, v{T+1}, 1, 1'); a(f'v_lshl_add_u32 v{T}, v{T+3}, 5, v{T}'); a(f'v_lshl_add_u32 v{T}, v{T}, 4, v{T+2}')
    a(f'v_and_b32 v{T+1}, 1, v{T+1}'); a(f'v_lshl_add_u32 v{T}, v{T+1}, 3, v{T}'); a(f'v_add_u32 v{T}, {LDS_EX}, v{T}')
    a(f'v_lshrrev_b32 v{T+1}, 3, v0'); a(f'v_lshlrev_b32 v{T+1}, 15, v{T+1}'); a(f'v_and_b32 v{T+2}, 7, v0')
    a(f'v_lshl_add_u32 v{T+1}, v{T+2}, 4, v{T+1}'); a(f's_lshl_b32 s{t+5}, s2, 7'); a(f'v_add_u32 v{T+1}, s{t+5}, v{T+1}')
    a('s_nop 3')
    a('s_mov_b64 exec, 1')
    a(f'v_mov_b32 v{D2[0]+1}, v{D2[0]+8}'); a(f'v_mov_b32 v{D2[1]+1}, v{D2[1]+8}')
    a('s_mov_b64 exec, -1')
    Z0, DF, Z1 = X, X + 8, XA
    for i in range(8):
        a(f'v_add_f32 v{Z0+i}, v{D2[0]+i}, v{D2[1]+i}'); a(f'v_sub_f32 v{DF+i}, v{D2[0]+i}, v{D2[1]+i}')
    for i in range(0, 8, 2):
        a(f'v_mul_f32 v{Z1+i}, v{DF+i}, v{T+5}'); a(f'v_fmac_f32 v{Z1+i}, v{DF+i+1}, v{T+6}')
        a(f'v_mul_f32 v{Z1+i+1}, v{DF+i+1}, v{T+5}'); a(f'v_fma_f32 v{Z1+i+1}, -v{DF+i}, v{T+6}, v{Z1+i+1}')
    for ip in range(2):
        a(f'ds_write_b128 v{VE}, v[{Z0+4*ip}:{Z0+4*ip+3}] offset:{ip*1024}')
        a(f'ds_write_b128 v{VE}, v[{Z1+4*ip}:{Z1+4*ip+3}] offset:{2048+ip*1024}')
    srd(a, S.D, S.WS, WS_ZB, 2 * 32 * 256 * 128)
    a('s_waitcnt lgkmcnt(0)')
    a('s_barrier')
    G0 = C32
    for par in range(2):
        for w in range(4):
            a(f'ds_read_b64 v[{G0+16*par+2*w}:{G0+16*par+2*w+1}], v{T} offset:{w*4096+par*2048}')
    a(f's_mov_b32 s{t+5}, {32*256*128}')
    for par in range(2):
        g = G0 + 16 * par; o = g + 8
        a(f's_waitcnt lgkmcnt({4*(1-par)})')
        a(f'v_cvt_pk_bf16_f32 v{o}, v{g}, v{g+2}');     a(f'v_cvt_pk_bf16_f32 v{o+1}, v{g+4}, v{g+6}')
        a(f'v_cvt_pk_bf16_f32 v{o+2}, v{g+1}, v{g+3}'); a(f'v_cvt_pk_bf16_f32 v{o+3}, v{g+5}, v{g+7}')
        so = f's{t+5}' if par else '0'
        a(f'buffer_store_dwordx4 v[{o}:{o+3}], v{T+1}, s[{S.D}:{S.D+3}], {so} offen sc1')
    a(f'v_mov_b32 v{T+2}, 0')
    a(f'global_load_dword v{T+3}, v{T+2}, s[{S.DBG}:{S.DBG+1}] sc1')
    stamp(a, 3, T + 4)
    a('s_waitcnt vmcnt(0)')
    lp, ok = a.label('nonce'), a.label('nonce_ok')
    a(f's_mov_b32 s{t}, 0')
    a(f'{lp}:')
    a(f'v_readfirstlane_b32 s{S.NONCE}, v{T+3}')
    a('s_nop 3')
    a(f's_cmp_lg_u32 s{S.NONCE}, 0'); a(f's_cbranch_scc1 {ok}')
    a.lines.append(f'global_load_dword v{T+3}, v{T+2}, s[{S.DBG}:{S.DBG+1}] sc1')
    a('s_waitcnt vmcnt(0)')
    a(f's_add_u32 s{t}, s{t}, 1'); a(f's_cmp_lt_u32 s{t}, {CFG["spin"]}'); a(f's_cbranch_scc1 {lp}')
    a(f'{ok}:')
    a('s_barrier')
    publish(a, [f's_lshl_b32 s{t}, s2, 7', f's_add_u32 s{t}, s{t}, {WS_F1}'], t, T)
    stamp(a, 4, T)

def store_tile_rows(a, O, srd_, row0_lines, s_row0, stride_shift):
    L, T, t = V.LANE, V.T, S.T
    a(f's_lshr_b32 s{t}, s{S.WAVE}, 1'); a(f's_lshl_b32 s{t}, s{t}, 5')
    a(f'v_and_b32 v{T}, 31, v{L}'); a(f'v_add_u32 v{T}, s{t}, v{T}'); a(f'v_mul_u32_u24 v{T}, 144, v{T}')
    a(f's_and_b32 s{t}, s{S.WAVE}, 1'); a(f's_lshl_b32 s{t}, s{t}, 6'); a(f's_add_u32 s{t}, s{t}, {LDS_EX}')
    a(f'v_lshrrev_b32 v{T+1}, 5, v{L}'); a(f'v_lshl_add_u32 v{T}, v{T+1}, 4, v{T}'); a(f'v_add_u32 v{T}, s{t}, v{T}')
    a(f'ds_write_b128 v{T}, v[{O}:{O+3}]'); a(f'ds_write_b128 v{T}, v[{O+4}:{O+7}] offset:32')
    a(f'v_lshrrev_b32 v{T+1}, 3, v{L}'); a(f's_lshl_b32 s{t}, s{S.WAVE}, 4'); a(f'v_add_u32 v{T+1}, s{t}, v{T+1}')
    a(f'v_and_b32 v{T+2}, 7, v{L}'); a(f'v_lshlrev_b32 v{T+2}, 4, v{T+2}')
    a(f'v_mul_u32_u24 v{T+3}, 144, v{T+1}'); a(f'v_add_u32 v{T+3}, v{T+3}, v{T+2}'); a(f'v_add_u32 v{T+3}, {LDS_EX}, v{T+3}')
    for l in row0_lines: a(l)
    a(f'v_lshl_add_u32 v{T+1}, v{T+1}, {stride_shift}, v{T+2}'); a(f'v_add_u32 v{T+1}, s{s_row0}, v{T+1}')
    a.nobg('s_waitcnt lgkmcnt(0)')
    a.nobg('s_barrier')
    a(f'ds_read_b128 v[{O}:{O+3}], v{T+3}'); a(f'ds_read_b128 v[{O+4}:{O+7}], v{T+3} offset:{8*144}')
    a(f's_mov_b32 s{t}, {8 << stride_shift}')
    a.nobg('s_waitcnt lgkmcnt(0)')
    a(f'buffer_store_dwordx4 v[{O}:{O+3}], v{T+1}, s[{srd_}:{srd_+3}], 0 offen sc1')
    a(f'buffer_store_dwordx4 v[{O+4}:{O+7}], v{T+1}, s[{srd_}:{srd_+3}], s{t} offen sc1')

def w2_setup(a):
    t = S.T
    srd(a, S.B, S.W2, 0, 1792 * 4096)
    a(f's_lshl_b32 s{t+1}, s{S.ST}, 7')
    dma_offsets(a, V.Q0, V.Q1, 4096, t + 1)
    a(f's_mul_i32 s{S.SOB}, s{S.WAVE}, {16*4096}')

def gemm1(a):
    L, T, t = V.LANE, V.T, S.T
    a('s_waitcnt vmcnt(0)')
    srd(a, S.A, S.WS, WS_H, 2048 * 1024)
    a(f's_lshl_b32 s{t+1}, s{S.DT}, 7')
    dma_offsets(a, V.P0, V.P1, 1024, t + 1)
    a(f's_mul_i32 s{S.SOA}, s{S.WAVE}, {16*1024}')
    V_B1 = 60
    a(f's_lshr_b32 s{t}, s{S.WAVE}, 1'); a(f's_lshl_b32 s{t}, s{t}, 5'); a(f's_lshl_b32 s{t+1}, s{S.FT}, 6'); a(f's_add_u32 s{t}, s{t}, s{t+1}')
    a(f'v_and_b32 v{T}, 31, v{L}'); a(f'v_add_u32 v{T}, s{t}, v{T}'); a(f'v_lshlrev_b32 v{T}, 1, v{T}')
    a(f'global_load_ushort v{V_B1}, v{T}, s[{S.B1}:{S.B1+1}]')
    pf = []
    if CFG.get('pf2', 1):
        srd(a, S.C, S.W2, 0, 1792 * 4096)
        a(f's_lshl_b32 s{t}, s{S.J}, 2'); a(f's_add_u32 s{t}, s{t}, s{S.WAVE}'); a(f's_lshl_b32 s{t}, s{t}, 4')
        a(f'v_lshrrev_b32 v{T}, 3, v{L}'); a(f'v_add_u32 v{T}, s{t}, v{T}'); a(f'v_lshlrev_b32 v{T}, 12, v{T}')
        a(f'v_and_b32 v{T+1}, 7, v{L}'); a(f'v_lshl_add_u32 v{T}, v{T+1}, 7, v{T}')
        a(f's_lshr_b32 s{t}, s{S.XCD}, 1'); a(f's_lshl_b32 s{t}, s{t}, 10'); a(f'v_add_u32 v61, s{t}, v{T}')
        a(f'v_add_u32 v62, {8*4096}, v61')
        pf = [[f'buffer_load_dword v63, v61, s[{S.C}:{S.C+3}], 0 offen {CFG["wmod"]}'],
              [f'buffer_load_dword v63, v62, s[{S.C}:{S.C+3}], 0 offen {CFG["wmod"]}']]
    steps = [dict(items=[(0, V.P0, V.P1, S.A, S.SOA, 1024, 'sc1')], q=u) for u in range(32)]
    stream_loop(a, steps, CFG.get('depth1', 12), bg_extra=pf)
    stamp(a, 7, T)
    w2_setup(a)
    pre2 = Preload(28, S.B, 4096, CFG['wmod2'], range(6, NRING))
    pre2.issue(a, 4)
    reduce_partials(a)
    a.bg_start(pre2.issue_groups(NRING), 10)
    VD = V.VD
    a(f'v_lshlrev_b32 v{V_B1}, 16, v{V_B1}')
    c0 = -2.0 * 0.7978845608028654 * 1.4426950408889634
    a(f's_mov_b32 s{t+2}, {fb(c0)}'); a(f's_mov_b32 s{t+3}, {fb(c0 * 0.044715)}')
    a(f'v_mov_b32 v61, s{t+2}')
    for q in range(8):
        d0, d1 = VD + 2*q, VD + 2*q + 1
        a(f'v_cvt_pk_bf16_f32 v{T}, v{d0}, v{d1}')
        a(f'v_lshlrev_b32 v{d0}, 16, v{T}'); a(f'v_and_b32 v{d1}, 0xffff0000, v{T}')
        a(f'v_add_f32 v{d0}, v{d0}, v{V_B1}'); a(f'v_add_f32 v{d1}, v{d1}, v{V_B1}')
        a(f'v_cvt_pk_bf16_f32 v{T}, v{d0}, v{d1}')
        a(f'v_lshlrev_b32 v{d0}, 16, v{T}'); a(f'v_and_b32 v{d1}, 0xffff0000, v{T}')
        a(f'v_mul_f32 v{T+1}, v{d0}, v{d0}'); a(f'v_mul_f32 v{T+2}, v{d1}, v{d1}')
        a(f'v_fma_f32 v{T+1}, v{T+1}, s{t+3}, v61'); a(f'v_fma_f32 v{T+2}, v{T+2}, s{t+3}, v61')
        a(f'v_mul_f32 v{T+1}, v{T+1}, v{d0}'); a(f'v_mul_f32 v{T+2}, v{T+2}, v{d1}')
        a(f'v_exp_f32 v{T+1}, v{T+1}'); a(f'v_exp_f32 v{T+2}, v{T+2}')
        a('s_nop 0')
        a(f'v_add_f32 v{T+1}, 1.0, v{T+1}'); a(f'v_add_f32 v{T+2}, 1.0, v{T+2}')
        a(f'v_rcp_f32 v{T+1}, v{T+1}'); a(f'v_rcp_f32 v{T+2}, v{T+2}')
        a('s_nop 0')
        a(f'v_mul_f32 v{d0}, v{d0}, v{T+1}'); a(f'v_mul_f32 v{d1}, v{d1}, v{T+2}')
    a('s_nop 1')
    for p in range(2):
        for j in range(4):
            a(f'v_permlane32_swap_b32 v{VD+8*p+j}, v{VD+8*p+4+j}')
    O = 52
    for p in range(2):
        for jj in range(4):
            a(f'v_cvt_pk_bf16_f32 v{O+4*p+jj}, v{VD+8*p+2*jj}, v{VD+8*p+2*jj+1}')
    a.bg_flush()
    srd(a, S.D, S.WS, WS_GT, 1792 * 1024)
    store_tile_rows(a, O, S.D, [f's_lshl_b32 s{t+4}, s{S.FT}, 16', f's_lshl_b32 s{t+5}, s{S.DT}, 7', f's_add_u32 s{t+4}, s{t+4}, s{t+5}'], t + 4, 10)
    hst = a.mark()
    pre2.free += list(range(6))
    pre2.issue(a, 6)
    a.wait_vm(hst)
    a('s_barrier')
    publish(a, [f's_lshl_b32 s{t}, s{S.DT}, 5', f's_add_u32 s{t}, s{t}, s{S.FT}', f's_lshl_b32 s{t}, s{t}, 7', f's_add_u32 s{t}, s{t}, {WS_F2}'], t, T)
    stamp(a, 8, T)
    pre2.drain(a)

class F:
    L = 1; VT = 2; RZ0 = 3; RW = 5; VY = 6; T = 8
    C, S, NS = 24, 32, 40
    TC, TS = 48, 64
    UC, US = 80, 96
    AR, AI = 112, 120
    DR, DI = 128, 144
    ER, EI = 160, 176
    W = 192
    X2 = 208

def cplx_stage(a, form, conj):
    s_for_re = F.NS if conj else F.S
    s_for_im = F.S if conj else F.NS
    seq = []
    for b in range(2): seq += [(F.DR, F.AR + 4*b, F.C + 4*b), (F.DI, F.AI + 4*b, F.C + 4*b)]
    for b in range(2): seq += [(F.DR, F.AI + 4*b, s_for_re + 4*b), (F.DI, F.AR + 4*b, s_for_im + 4*b)]
    seen = set()
    for (d, x, c) in seq:
        cc = f'v[{d}:{d+15}]' if d in seen else '0'
        seen.add(d)
        if form == 'A': a(f'v_mfma_f32_32x32x16_bf16 v[{d}:{d+15}], v[{x}:{x+3}], v[{c}:{c+3}], {cc}')
        else:           a(f'v_mfma_f32_32x32x16_bf16 v[{d}:{d+15}], v[{c}:{c+3}], v[{x}:{x+3}], {cc}')
    a('s_nop 7'); a('s_nop 3')

def pack4(a, i):
    T = F.T
    a(f'v_cvt_pk_bf16_f32 v{F.AR+2*i}, v{T}, v{T+1}');     a(f'v_cvt_pk_bf16_f32 v{F.AR+2*i+1}, v{T+2}, v{T+3}')
    a(f'v_cvt_pk_bf16_f32 v{F.AI+2*i}, v{T+4}, v{T+5}');   a(f'v_cvt_pk_bf16_f32 v{F.AI+2*i+1}, v{T+6}, v{T+7}')

def cmul_pack(a, cr, ci, conj):
    T = F.T
    for i in range(4):
        for j in range(0, 4, 2):
            n = 4*i + j
            r_, i_, c, s = F.DR + n, F.DI + n, cr + n, ci + n
            P = lambda x: f'v[{x}:{x+1}]'
            a(f'v_pk_mul_f32 {P(T+j)}, {P(r_)}, {P(c)}'); a(f'v_pk_mul_f32 {P(T+4+j)}, {P(i_)}, {P(c)}')
            if conj:
                a(f'v_pk_fma_f32 {P(T+j)}, {P(i_)}, {P(s)}, {P(T+j)} neg_lo:[1,0,0] neg_hi:[1,0,0]')
                a(f'v_pk_fma_f32 {P(T+4+j)}, {P(r_)}, {P(s)}, {P(T+4+j)}')
            else:
                a(f'v_pk_fma_f32 {P(T+j)}, {P(i_)}, {P(s)}, {P(T+j)}')
                a(f'v_pk_fma_f32 {P(T+4+j)}, {P(r_)}, {P(s)}, {P(T+4+j)} neg_lo:[1,0,0] neg_hi:[1,0,0]')
        pack4(a, i)
    a('s_nop 1')

def filter_generic(a):
    T = F.T
    P = lambda x: f'v[{x}:{x+1}]'
    for i in range(4):
        for j in range(0, 4, 2):
            n = 4*i + j
            r_, i_, w = F.DR + n, F.DI + n, F.W + n
            a(f'v_lshlrev_b32 v{T+8}, 16, v{w}'); a(f'v_lshlrev_b32 v{T+9}, 16, v{w+1}')
            a(f'v_and_b32 v{T+10}, 0xffff0000, v{w}'); a(f'v_and_b32 v{T+11}, 0xffff0000, v{w+1}')
            a(f'v_pk_mul_f32 {P(T+j)}, {P(r_)}, {P(T+8)}'); a(f'v_pk_mul_f32 {P(T+4+j)}, {P(i_)}, {P(T+8)}')
            a(f'v_pk_fma_f32 {P(T+j)}, {P(i_)}, {P(T+10)}, {P(T+j)} neg_lo:[1,0,0] neg_hi:[1,0,0]')
            a(f'v_pk_fma_f32 {P(T+4+j)}, {P(r_)}, {P(T+10)}, {P(T+4+j)}')
        pack4(a, i)
    a('s_nop 1')

def filter_special(a, p, SAL):
    T = F.T; L = F.L
    MR = F.X2; BE = F.X2 + 32
    a(f'v_lshlrev_b32 v{T+10}, 4, v{L}'); a(f'v_add_u32 v{T+10}, {p*4096}, v{T+10}')
    for i in range(4):
        a(f'global_load_dwordx4 v[{F.W+4*i}:{F.W+4*i+3}], v{T+10}, s[{SAL}:{SAL+1}] offset:{i*1024} sc1')
    a(f'v_add_u32 v{T+10}, {WS_BE-WS_AL}, v{T+10}')
    for i in range(4):
        a(f'global_load_dwordx4 v[{BE+4*i}:{BE+4*i+3}], v{T+10}, s[{SAL}:{SAL+1}] offset:{i*1024} sc1')
    a(f'v_and_b32 v{T+11}, 31, v{L}'); a(f'v_lshrrev_b32 v{T+12}, 5, v{L}')
    a(f'v_lshl_add_u32 v{T+11}, v{T+12}, 7, v{T+11}')
    a(f'v_lshlrev_b32 v{T+12}, 3, v{T+11}'); a(f'v_add_u32 v{T+12}, {LDS_X}, v{T+12}')
    for i in range(4):
        for j in range(4):
            a(f'ds_write2_b32 v{T+12}, v{F.DR+4*i+j}, v{F.DI+4*i+j} offset0:{64*j} offset1:{64*j+1}')
        if i < 3: a(f'v_add_u32 v{T+12}, 2048, v{T+12}')
    top = 1024 if p == 0 else 1023
    if p == 0:
        a('s_mov_b64 exec, 1')
        a(f'v_mov_b32 v{T+12}, {LDS_X + 1024*8}')
        a(f'ds_write2_b32 v{T+12}, v{F.DR}, v{F.DI} offset0:0 offset1:1')
        a('s_mov_b64 exec, -1')
    a(f'v_sub_u32 v{T+12}, {top - 96}, v{T+11}')
    a(f'v_lshlrev_b32 v{T+12}, 3, v{T+12}'); a(f'v_add_u32 v{T+12}, {LDS_X}, v{T+12}')
    a('s_waitcnt lgkmcnt(0)')
    for i in range(4):
        for j in range(4):
            n = 4*i + j
            a(f'ds_read_b64 v[{MR+2*n}:{MR+2*n+1}], v{T+12} offset:{(3-j)*256}')
        if i < 3: a(f'v_subrev_u32 v{T+12}, 2048, v{T+12}')
    a('s_waitcnt vmcnt(0) lgkmcnt(0)')
    for i in range(4):
        for j in range(4):
            n = 4*i + j
            r_, i_, w, be, mr, mi = F.DR + n, F.DI + n, F.W + n, BE + n, MR + 2*n, MR + 2*n + 1
            a(f'v_lshlrev_b32 v{T+8}, 16, v{w}'); a(f'v_and_b32 v{T+9}, 0xffff0000, v{w}')
            a(f'v_mul_f32 v{T+j}, v{r_}, v{T+8}'); a(f'v_mul_f32 v{T+4+j}, v{i_}, v{T+8}')
            a(f'v_fma_f32 v{T+j}, -v{i_}, v{T+9}, v{T+j}'); a(f'v_fmac_f32 v{T+4+j}, v{r_}, v{T+9}')
            a(f'v_lshlrev_b32 v{T+8}, 16, v{be}'); a(f'v_and_b32 v{T+9}, 0xffff0000, v{be}')
            a(f'v_fmac_f32 v{T+j}, v{mr}, v{T+8}'); a(f'v_fmac_f32 v{T+j}, v{mi}, v{T+9}')
            a(f'v_fmac_f32 v{T+4+j}, v{mr}, v{T+9}'); a(f'v_fma_f32 v{T+4+j}, -v{mi}, v{T+8}, v{T+4+j}')
        pack4(a, i)
    a('s_nop 1')

def fft_role(a):
    L, T, t = F.L, F.T, S.T
    SZ, SW, SY = S.A, S.B, S.C
    KAP, PASS, SAL = t + 8, t + 9, t + 10
    a('s_waitcnt vmcnt(0)')
    table_base(a, S.TAB, 'tab_fft')
    a(f'v_lshlrev_b32 v{F.VT}, 4, v{L}')
    srd(a, SZ, S.WS, WS_ZB, 2 * 32 * 256 * 128)
    srd(a, SW, S.WS, WS_WP, 32 * 512 * 128)
    srd(a, SY, S.WS, WS_YT, 512 * 4096)
    a(f'v_lshrrev_b32 v{T}, 3, v{L}'); a(f'v_and_b32 v{T+1}, 7, v{L}')
    a(f'v_xor_b32 v{T+2}, v{T+1}, v{T}')
    a(f'v_lshrrev_b32 v{T+3}, 1, v{T}'); a(f'v_xor_b32 v{T+3}, v{T+1}, v{T+3}')
    a(f'v_lshlrev_b32 v{T}, 7, v{T}')
    a(f's_lshr_b32 s{t}, s{S.WAVE}, 1'); a(f's_lshl_b32 s{t}, s{t}, 5'); a(f's_add_u32 s{t}, s{t}, s{S.GRP}'); a(f's_lshl_b32 s{t}, s{t}, 15')
    a(f's_and_b32 s{t+1}, s{S.WAVE}, 1'); a(f's_lshl_b32 s{t+1}, s{t+1}, 14'); a(f's_add_u32 s{t}, s{t}, s{t+1}')
    a(f's_lshl_b32 s{t+2}, s{S.WAVE}, 14')
    for n in range(16):
        a(f'v_xor_b32 v{T+4}, {n & 7}, v{T+2}'); a(f'v_lshl_add_u32 v{T+4}, v{T+4}, 4, v{T}')
        a(f's_add_u32 m0, s{t+2}, {LDS_Z + n*1024}'); a(f's_add_u32 s{t+3}, s{t}, {n*1024}')
        a(f'buffer_load_dwordx4 v{T+4}, s[{SZ}:{SZ+3}], s{t+3} offen sc1 lds')
    a(f's_lshl_b32 s{t}, s{S.GRP}, 16'); a(f's_add_u32 s{t}, s{t}, s{t+2}')
    for n in range(16):
        a(f'v_xor_b32 v{T+4}, {4*(n&1)}, v{T+3}'); a(f'v_lshl_add_u32 v{T+4}, v{T+4}, 4, v{T}')
        a(f's_add_u32 m0, s{t+2}, {LDS_W + n*1024}'); a(f's_add_u32 s{t+3}, s{t}, {n*1024}')
        a(f'buffer_load_dwordx4 v{T+4}, s[{SW}:{SW+3}], s{t+3} offen sc1 lds')
    table_load(a, S.TAB, F.VT, [f'v[{r}:{r+3}]' for r in range(F.C, F.C + 88, 4)])
    a(f'v_lshrrev_b32 v{T}, 5, v{L}'); a(f'v_bfe_u32 v{T+1}, v{L}, 2, 2'); a(f'v_lshl_add_u32 v{T}, v{T}, 2, v{T+1}')
    a(f'v_bfe_u32 v{T+1}, v{L}, 4, 1'); a(f'v_and_b32 v{T+2}, 3, v{L}'); a(f'v_lshl_add_u32 v{T+1}, v{T+1}, 2, v{T+2}')
    a(f'v_xor_b32 v{T+2}, v{T}, v{T+1}'); a(f'v_xor_b32 v{T+2}, s{S.WAVE}, v{T+2}'); a(f'v_lshlrev_b32 v{T+2}, 4, v{T+2}')
    a(f'v_lshl_add_u32 v{T}, v{T}, 3, v{T+1}'); a(f'v_lshl_add_u32 v{F.RZ0}, v{T}, 7, v{T+2}')
    a(f'v_bfe_u32 v{T}, v{L}, 1, 3'); a(f'v_xor_b32 v{T}, s{S.WAVE}, v{T}'); a(f'v_lshlrev_b32 v{T}, 4, v{T}')
    a(f'v_lshl_add_u32 v{F.RW}, v{L}, 7, v{T}'); a(f'v_add_u32 v{F.RW}, {LDS_W}, v{F.RW}')
    a(f's_lshl_b32 s{KAP}, s{S.GRP}, 3'); a(f's_add_u32 s{KAP}, s{KAP}, s{S.WAVE}')
    a(f's_lshl_b32 s{t}, s{KAP}, 13')
    a(f'v_and_b32 v{T}, 15, v{L}'); a(f'v_lshlrev_b32 v{T}, 6, v{T}')
    a(f'v_bfe_u32 v{T+1}, v{L}, 4, 1'); a(f'v_lshl_add_u32 v{T}, v{T+1}, 5, v{T}')
    a(f'v_lshrrev_b32 v{T+1}, 5, v{L}'); a(f'v_lshl_add_u32 v{T}, v{T+1}, 4, v{T}')
    a(f'v_add_u32 v{F.VY}, s{t}, v{T}')
    a(f's_add_u32 s{SAL}, s{S.WS}, {WS_AL}'); a(f's_addc_u32 s{SAL+1}, s{S.WS+1}, 0')
    a(f's_mov_b32 s{PASS}, 0')
    a('s_waitcnt vmcnt(0)')
    a('s_barrier')
    stamp(a, 7, T)
    col = a.label('fftcol')
    a(f'{col}:')
    for p in range(2):
        for c in range(2):
            for b in range(2):
                for q in range(2):
                    r = (F.AI if c else F.AR) + 4*b + 2*q
                    a(f'ds_read_b64_tr_b16 v[{r}:{r+1}], v{F.RZ0} offset:{p*32768 + (16*b+8*q)*8*128 + 8*c}')
        for i in range(4):
            a(f'ds_read_b128 v[{F.W+4*i}:{F.W+4*i+3}], v{F.RW} offset:{p*32768 + i*8192}')
        a('s_waitcnt lgkmcnt(4)')
        cplx_stage(a, 'A', False)
        cmul_pack(a, F.TC, F.TS, False)
        cplx_stage(a, 'B', False)
        a('s_waitcnt lgkmcnt(0)')
        sp, jn = a.label('spec'), a.label('join')
        a(f's_cmp_eq_u32 s{KAP}, 0'); a(f's_cbranch_scc1 {sp}')
        filter_generic(a)
        a(f's_branch {jn}')
        a(f'{sp}:')
        filter_special(a, p, SAL)
        a(f'{jn}:')
        cplx_stage(a, 'A', True)
        cmul_pack(a, F.TC, F.TS, True)
        cplx_stage(a, 'A', True)
        if p == 0:
            for n in range(16):
                a(f'v_mov_b32 v{F.ER+n}, v{F.DR+n}'); a(f'v_mov_b32 v{F.EI+n}, v{F.DI+n}')
    P = lambda x: f'v[{x}:{x+1}]'
    for n in range(0, 16, 2):
        r_, i_, c, s = F.DR + n, F.DI + n, F.UC + n, F.US + n
        a(f'v_pk_mul_f32 {P(T)}, {P(r_)}, {P(c)}'); a(f'v_pk_mul_f32 {P(T+2)}, {P(i_)}, {P(c)}')
        a(f'v_pk_fma_f32 {P(T)}, {P(i_)}, {P(s)}, {P(T)} neg_lo:[1,0,0] neg_hi:[1,0,0]')
        a(f'v_pk_fma_f32 {P(T+2)}, {P(r_)}, {P(s)}, {P(T+2)}')
        a(f'v_pk_add_f32 {P(r_)}, {P(F.ER+n)}, {P(T)} neg_lo:[0,1] neg_hi:[0,1]')
        a(f'v_pk_add_f32 {P(i_)}, {P(F.EI+n)}, {P(T+2)} neg_lo:[0,1] neg_hi:[0,1]')
        a(f'v_pk_add_f32 {P(F.ER+n)}, {P(F.ER+n)}, {P(T)}'); a(f'v_pk_add_f32 {P(F.EI+n)}, {P(F.EI+n)}, {P(T+2)}')
    outs = [(F.ER, 0, 0), (F.DR, 0, 2048), (F.EI, 1, 0), (F.DI, 1, 2048)]
    a(f's_movk_i32 s{t}, 0x1000')
    for n_, (src, c, hi) in enumerate(outs):
        a('s_nop 1')
        for pp in range(2):
            for j in range(4): a(f'v_permlane32_swap_b32 v{src+8*pp+j}, v{src+8*pp+4+j}')
        o = F.AR + 8 * (n_ % 2)
        for pp in range(2):
            for jj in range(4): a(f'v_cvt_pk_bf16_f32 v{o+4*pp+jj}, v{src+8*pp+2*jj}, v{src+8*pp+2*jj+1}')
        a('s_nop 1')
        for k in range(4): a(f'v_permlane16_swap_b32 v{o+k}, v{o+4+k}')
        so = f's{t}' if c else '0'
        a.lines.append(f'buffer_store_dwordx4 v[{o}:{o+3}], v{F.VY}, s[{SY}:{SY+3}], {so} offen offset:{hi} sc1')
        a.lines.append(f'buffer_store_dwordx4 v[{o+4}:{o+7}], v{F.VY}, s[{SY}:{SY+3}], {so} offen offset:{hi + 1024} sc1')
    a(f'v_xor_b32 v{F.RZ0}, 64, v{F.RZ0}'); a(f'v_xor_b32 v{F.RW}, 64, v{F.RW}')
    a(f'v_add_u32 v{F.VY}, {4*8192}, v{F.VY}'); a(f's_add_u32 s{KAP}, s{KAP}, 4')
    a(f's_add_u32 s{PASS}, s{PASS}, 1'); a(f's_cmp_lt_u32 s{PASS}, 2'); a(f's_cbranch_scc1 {col}')
    a('s_waitcnt vmcnt(0)')
    a('s_barrier')
    publish(a, [f's_lshl_b32 s{t}, s{S.GRP}, 7', f's_add_u32 s{t}, s{t}, {WS_F3}'], t, T)
    stamp(a, 8, T)

def gemm2(a):
    L, T, t = V.LANE, V.T, S.T
    a(f'v_and_b32 v{L}, 63, v0')
    read_addresses(a)
    srd(a, S.A, S.WS, WS_GT, 2304 * 1024)
    a(f's_lshl_b32 s{t+1}, s{S.DT}, 7')
    dma_offsets(a, V.P0, V.P1, 1024, t + 1)
    a(f's_mul_i32 s{S.SOA}, s{S.WAVE}, {16*1024}')
    srd(a, S.C, S.WS, WS_YT, 512 * 4096)
    a(f's_lshl_b32 s{t+1}, s{S.ST}, 7')
    dma_offsets(a, V.Q0, V.Q1, 4096, t + 1)
    a(f's_mul_i32 s{S.SOB}, s{S.WAVE}, {16*4096}')
    V_XO, V_X, V_B2 = 50, 52, 60
    a(f's_lshr_b32 s{t}, s{S.WAVE}, 1'); a(f's_lshl_b32 s{t}, s{t}, 5'); a(f's_lshl_b32 s{t+1}, s{S.ST}, 6'); a(f's_add_u32 s{t}, s{t}, s{t+1}')
    a(f'v_and_b32 v{T}, 31, v{L}'); a(f'v_add_u32 v{T}, s{t}, v{T}'); a(f'v_lshlrev_b32 v{T+1}, 1, v{T}')
    a('s_waitcnt vmcnt(0)')
    a(f'global_load_ushort v{V_B2}, v{T+1}, s[{S.B2}:{S.B2+1}]')
    a(f's_and_b32 s{t}, s{S.WAVE}, 1'); a(f's_lshl_b32 s{t}, s{t}, 6'); a(f's_lshl_b32 s{t+1}, s{S.DT}, 7'); a(f's_add_u32 s{t}, s{t}, s{t+1}')
    a(f'v_lshrrev_b32 v{T+1}, 5, v{L}'); a(f'v_lshlrev_b32 v{T+1}, 4, v{T+1}')
    a(f'v_lshl_add_u32 v{V_XO}, v{T}, 10, v{T+1}'); a(f'v_add_u32 v{V_XO}, s{t}, v{V_XO}')
    a(f'global_load_dwordx4 v[{V_X}:{V_X+3}], v{V_XO}, s[{S.X}:{S.X+1}]')
    a(f'global_load_dwordx4 v[{V_X+4}:{V_X+7}], v{V_XO}, s[{S.X}:{S.X+1}] offset:32')
    poll(a, [([f's_lshl_b32 s{t}, s{S.DT}, 12', f's_add_u32 s{t}, s{t}, {WS_F2}'], 28), ([f's_mov_b32 s{t}, {WS_F3}'], 32)], 128)
    stamp(a, 9, T)
    steps = []
    for u in range(36):
        it = [(0, V.P0, V.P1, S.A, S.SOA, 1024, 'sc1')]
        if u >= 28: it.append((1, V.Q0, V.Q1, S.C, S.SOB, 4096, 'sc1'))
        steps.append(dict(items=it, q=u if u < 28 else None))
    stream_loop(a, steps, CFG.get('depth3', 12))
    stamp(a, 10, T)
    reduce_partials(a)
    VD = V.VD
    a(f'v_lshlrev_b32 v{V_B2}, 16, v{V_B2}')
    for i in range(16): a(f'v_add_f32 v{VD+i}, v{VD+i}, v{V_B2}')
    a('s_nop 1')
    for p in range(2):
        for j in range(4): a(f'v_permlane32_swap_b32 v{VD+8*p+j}, v{VD+8*p+4+j}')
    for p in range(2):
        for jj in range(4):
            xr = V_X + 4*p + jj
            d0 = VD + 8*p + 2*jj; d1 = d0 + 1
            a(f'v_lshlrev_b32 v{T}, 16, v{xr}'); a(f'v_and_b32 v{T+1}, 0xffff0000, v{xr}')
            a(f'v_add_f32 v{d0}, v{d0}, v{T}'); a(f'v_add_f32 v{d1}, v{d1}, v{T+1}')
            a(f'v_cvt_pk_bf16_f32 v{xr}, v{d0}, v{d1}')
    a(f'global_store_dwordx4 v{V_XO}, v[{V_X}:{V_X+3}], s[{S.OUT}:{S.OUT+1}]')
    a(f'global_store_dwordx4 v{V_XO}, v[{V_X+4}:{V_X+7}], s[{S.OUT}:{S.OUT+1}] offset:32')
    if CFG['stamps']:
        a('s_waitcnt vmcnt(0)')
        stamp(a, 11, T)

def mega(a, name):
    kernel_begin(a, name)
    end, fft, p3 = a.label('end'), a.label('fft'), a.label('p3')
    L, T, t = V.LANE, V.T, S.T
    a('s_cmp_ge_u32 s2, 256'); a(f's_cbranch_scc1 {end}')
    a('s_load_dwordx16 s[4:19], s[0:1], 0')
    a('s_load_dwordx4 s[20:23], s[0:1], 64')
    a('s_load_dwordx2 s[24:25], s[0:1], 80')
    a('v_lshrrev_b32 v1, 6, v0')
    a(f's_and_b32 s{S.XCD}, s2, 7'); a(f's_lshr_b32 s{S.J}, s2, 3')
    a(f'v_readfirstlane_b32 s{S.WAVE}, v1')
    a(f'v_and_b32 v{L}, 63, v0')
    a(f's_and_b32 s{t}, s{S.XCD}, 1'); a(f's_lshl_b32 s{t}, s{t}, 2'); a(f's_and_b32 s{t+1}, s{S.J}, 3'); a(f's_add_u32 s{S.DT}, s{t}, s{t+1}')
    a(f's_lshr_b32 s{t}, s{S.XCD}, 1'); a(f's_lshr_b32 s{t+2}, s{S.J}, 2')
    a(f's_lshl_b32 s{t+3}, s{t}, 3'); a(f's_add_u32 s{S.ST}, s{t+3}, s{t+2}')
    a(f's_mul_i32 s{t+3}, s{t}, 7'); a(f's_add_u32 s{S.FT}, s{t+3}, s{t+2}')
    a(f's_lshl_b32 s{t+3}, s{S.XCD}, 2'); a(f's_add_u32 s{S.GRP}, s{t+3}, s{t+1}')
    a(f's_mul_i32 s{S.RING}, s{S.WAVE}, {RINGB}')
    a('s_waitcnt lgkmcnt(0)')
    stamp(a, 0, T)
    if CFG.get('clk'):
        a('s_memtime s[80:81]'); a('s_memrealtime s[82:83]'); a('s_waitcnt lgkmcnt(0)')
    nn = a.label('nn')
    a(f's_or_b32 s{t}, s2, s{S.WAVE}'); a(f's_cmp_lg_u32 s{t}, 0'); a(f's_cbranch_scc1 {nn}')
    a(f's_memrealtime s[{t}:{t+1}]'); a('s_waitcnt lgkmcnt(0)'); a(f's_or_b32 s{t}, s{t}, 1')
    a(f'v_mov_b32 v{T}, s{t}'); a(f'v_mov_b32 v{T+1}, 0')
    a('s_mov_b64 exec, 1')
    a.lines.append(f'global_store_dword v{T+1}, v{T}, s[{S.DBG}:{S.DBG+1}] sc1')
    a('s_mov_b64 exec, -1')
    a(f'{nn}:')
    STR64 = t + 14
    read_addresses(a)
    a(f's_cmp_ge_u32 s{S.J}, 28')
    a(f's_cselect_b32 s{S.B}, s{S.W2}, s{S.W1}'); a(f's_cselect_b32 s{S.B+1}, s{S.W2+1}, s{S.W1+1}')
    a(f's_mov_b32 s{S.B+2}, {2048*3584}'); a(f's_mov_b32 s{S.B+3}, 0x20000')
    a(f's_cselect_b32 s{t+1}, s{S.ST}, s{S.FT}'); a(f's_movk_i32 s{t+2}, 3584'); a(f's_cselect_b32 s{t+2}, 4096, s{t+2}')
    a(f's_lshl_b32 s{t+1}, s{t+1}, 7')
    a(f's_lshl_b32 s{STR64}, s{t+2}, 6')
    a(f'v_lshrrev_b32 v{T}, 3, v{L}'); a(f'v_and_b32 v{T+1}, 7, v{L}'); a(f'v_lshlrev_b32 v{T+2}, 1, v{T}'); a(f'v_and_b32 v{T+2}, 4, v{T+2}')
    a(f'v_xor_b32 v{T+1}, v{T+1}, v{T+2}'); a(f'v_lshlrev_b32 v{T+1}, 4, v{T+1}')
    a(f'v_mad_u32_u24 v{V.Q0}, v{T}, s{t+2}, v{T+1}'); a(f'v_add_u32 v{V.Q0}, s{t+1}, v{V.Q0}')
    a(f's_lshl_b32 s{t+3}, s{t+2}, 3'); a(f's_sub_u32 s{t+3}, s{t+3}, 1024'); a(f'v_add_u32 v{V.Q1}, s{t+3}, v{V.Q0}')
    a(f's_mul_i32 s{S.SOB}, s{S.WAVE}, s{t+2}'); a(f's_lshl_b32 s{S.SOB}, s{S.SOB}, 4')
    pre = Preload(32, PRE_SRD, f's{STR64}', CFG['wmod'], range(NRING))
    for j in range(4): a(f's_mov_b32 s{PRE_SRD+j}, s{S.B+j}')
    phase1(a, pre)
    pre.drain(a)
    stamp(a, 5, T)
    poll(a, [([f's_mov_b32 s{t}, {WS_F1}'], 256)], 128)
    stamp(a, 6, T)
    a(f's_cmp_ge_u32 s{S.J}, 28'); a(f's_cbranch_scc1 {fft}')
    gemm1(a)
    a(f's_branch {p3}')
    a(f'{fft}:')
    fft_role(a)
    a(f'{p3}:')
    gemm2(a)
    if CFG.get('delay'):
        lp = a.label('dly')
        a('s_memtime s[88:89]'); a('s_waitcnt lgkmcnt(0)')
        a(f'{lp}:')
        a('s_memtime s[90:91]'); a('s_waitcnt lgkmcnt(0)'); a('s_sub_u32 s90, s90, s88')
        a(f's_cmp_lt_u32 s90, {CFG["delay"]}'); a(f's_cbranch_scc1 {lp}')
    if CFG.get('clk'):
        sk = a.label('clk')
        a('s_waitcnt vmcnt(0)')
        a('s_memtime s[84:85]'); a('s_memrealtime s[86:87]'); a('s_waitcnt lgkmcnt(0)')
        a('s_sub_u32 s84, s84, s80'); a('s_sub_u32 s86, s86, s82')
        a(f's_and_b32 s{t}, s2, 63'); a(f's_or_b32 s{t}, s{t}, s{S.WAVE}'); a(f's_cmp_lg_u32 s{t}, 0'); a(f's_cbranch_scc1 {sk}')
        a('s_mov_b64 exec, 1')
        a('v_mov_b32 v2, s84'); a('v_mov_b32 v3, s86'); a('s_lshr_b32 s84, s2, 6'); a('s_lshl_b32 s84, s84, 3'); a('s_add_u32 s84, s84, 8'); a('v_mov_b32 v4, s84')
        a(f'global_store_dwordx2 v4, v[2:3], s[{S.DBG}:{S.DBG+1}]')
        a(f'{sk}:')
    a(f'{end}:')
    a('s_endpgm')

PRE_SRD = 76

def tables(a):
    tb.emit(a, 'tab_k1', tb.f32mat('c') + tb.f32mat('ns') + tb.t512() + tb.a2())
    tb.emit(a, 'tab_fft', tb.f32mat('c') + tb.f32mat('s') + tb.f32mat('ns') + tb.t1024() + tb.t2048())

KNAME = 'parallel_sum__spectral_gfnet__mixer_token_mlp__prompt_kernel'
def make(path, **cfg):
    CFG.update(dict(stamps=0, early=12, inmod='nt', wmod='nt', wmod2='', spin=1 << 18, pf2=1, depth1=12, depth3=12))
    CFG.update(cfg)
    a = Em()
    a(HEADER + f'; @launch grid=(256,1,1) block=(256,1,1) lds={LDS_TOTAL}\n' + '.amdgcn_target "amdgcn-amd-amdhsa--gfx950"\n.text')
    mega(a, KNAME)
    tables(a)
    a('.section .rodata,"a"\n.p2align 6')
    a(descriptor(KNAME, 256, 256))
    open(path, 'w').write(a.text())
    build(path, [(KNAME, (256, 1, 1), (256, 1, 1), LDS_TOTAL)])

if __name__ == '__main__':
    o = dict(x.split('=') for x in sys.argv[2:])
    cfg = {k: (int(v) if v.lstrip('-').isdigit() else v.replace('_', ' ')) for k, v in o.items()}
    make(sys.argv[1], **cfg)
```

```python
import sys, struct
from asm2 import *
import tables as tb

WS_BASE = 0
WS_H    = WS_BASE + 0x000000
WS_GT   = WS_BASE + 0x200000
WS_FINV = WS_GT + 1792 * 1024
WS_ZB   = WS_BASE + 0x480000
WS_WP   = WS_BASE + 0x680000
WS_AL   = WS_BASE + 0x880000
WS_BE   = WS_BASE + 0x882000
WS_F1   = WS_BASE + 0x890000
WS_F2   = WS_BASE + 0x898000
WS_F3   = WS_BASE + 0x8A0000
WS_YT   = WS_BASE + 0x900000
WS_STAMP = 0x10000000 - (16 << 20)
NSLOT = 16

NRING = 18
RINGB = NRING * 2048
LDS_EX = 4 * RINGB
LDS_TOTAL = LDS_EX + 16384
LDS_Z, LDS_W, LDS_X = 0, 65536, 131072

class S:
    WAVE = 3
    X, WR, WI, BX, W1, B1, W2, B2, OUT, DBG, WS = 4, 6, 8, 10, 12, 14, 16, 18, 20, 22, 24
    NONCE, XCD, J, RING = 26, 27, 28, 29
    DT, FT, ST, GRP = 30, 31, 32, 33
    ROT1, ROT3, ROT4, SOA2 = 94, 95, 96, 97
    A, B, C, D = 36, 40, 44, 48
    SOA, SOB = 52, 53
    TAB = 54
    T = 56
    STMP = 72

CFG = dict(stamps=0, early=12, inmod='nt', wmod='nt', spin=1 << 18)

def fb(x): return '0x%08x' % struct.unpack('<I', struct.pack('<f', x))[0]

def srd(a, s, base, off, size):
    with a.atomic():
        if off:
            a(f's_add_u32 s{s}, s{base}, {off}'); a(f's_addc_u32 s{s+1}, s{base+1}, 0')
        else:
            a(f's_mov_b32 s{s}, s{base}'); a(f's_mov_b32 s{s+1}, s{base+1}')
        a(f's_mov_b32 s{s+2}, {size}'); a(f's_mov_b32 s{s+3}, 0x20000')

def stamp(a, slot, vt):
    if not CFG['stamps']: return
    st = S.STMP
    skip = a.label('stamp')
    old = a.in_bg; a.in_bg = True
    a(f's_memrealtime s[{st}:{st+1}]')
    a(f'v_cmp_eq_u32 vcc, 0, v0')
    a(f's_and_saveexec_b64 s[{st+2}:{st+3}], vcc')
    a(f's_waitcnt lgkmcnt(0)')
    a(f's_cbranch_execz {skip}')
    a(f'v_mov_b32 v{vt}, s{st}'); a(f'v_mov_b32 v{vt+1}, s{st+1}')
    a(f's_mul_i32 s{st}, s2, {NSLOT*8}'); a(f's_add_u32 s{st}, s{st}, {WS_STAMP + slot*8}')
    a(f'v_mov_b32 v{vt+2}, s{st}')
    a.lines.append(f'global_store_dwordx2 v{vt+2}, v[{vt}:{vt+1}], s[{S.WS}:{S.WS+1}]')
    a(f'{skip}:')
    a(f's_mov_b64 exec, s[{st+2}:{st+3}]')
    a.in_bg = old
    a.nobg('s_waitcnt vmcnt(0)') if CFG['stamps'] == 2 else None

def table_base(a, s, label):
    l = a.label('pc')
    a(f's_getpc_b64 s[{s}:{s+1}]'); a(f'{l}:')
    a(f's_add_u32 s{s}, s{s}, {label}-{l}'); a(f's_addc_u32 s{s+1}, s{s+1}, 0')

def table_load(a, s, voff, dsts, g0=0):
    cur = 0
    for n, dst in enumerate(dsts):
        g = g0 + n
        while g * 1024 - cur >= 4096:
            a(f'v_add_u32 v{voff}, 4096, v{voff}'); cur += 4096
        a(f'global_load_dwordx4 {dst}, v{voff}, s[{s}:{s+1}] offset:{g*1024-cur}')

def publish(a, off_expr_lines, s_off, vt):
    skip = a.label('pub')
    a(f's_cmp_lg_u32 s{S.WAVE}, 0'); a(f's_cbranch_scc1 {skip}')
    for l in off_expr_lines: a(l)
    a('s_mov_b64 exec, 1')
    a(f'v_mov_b32 v{vt}, s{S.NONCE}'); a(f'v_mov_b32 v{vt+1}, s{s_off}')
    a.lines.append(f'global_store_dword v{vt+1}, v{vt}, s[{S.WS}:{S.WS+1}] sc1')
    a('s_mov_b64 exec, -1')
    a(f'{skip}:')

def poll(a, groups, vt):
    skip, loop, ok = a.label('poll_skip'), a.label('poll'), a.label('poll_ok')
    T = S.T
    a(f's_cmp_lg_u32 s{S.WAVE}, 0'); a(f's_cbranch_scc1 {skip}')
    loads = []
    nv = 0
    for (lines, count) in groups:
        for l in lines: a(l)
        for c0 in range(0, count, 64):
            n = min(64, count - c0)
            va = vt + 2 * nv
            a(f'v_and_b32 v{va}, 63, v0')
            if n < 64: a(f'v_min_u32 v{va}, {n-1}, v{va}')
            a(f'v_lshlrev_b32 v{va}, 7, v{va}')
            a(f'v_add_u32 v{va}, s{T}, v{va}')
            if c0: a(f'v_add_u32 v{va}, {c0*128}, v{va}')
            loads.append(va); nv += 1
    a(f's_mov_b32 s{T+1}, 0')
    a(f'{loop}:')
    for va in loads:
        a.lines.append(f'global_load_dword v{va+1}, v{va}, s[{S.WS}:{S.WS+1}] sc1')
    a('s_waitcnt vmcnt(0)')
    first = True
    for va in loads:
        a(f'v_xor_b32 v{va+1}, s{S.NONCE}, v{va+1}')
        if not first: a(f'v_or_b32 v{loads[0]+1}, v{loads[0]+1}, v{va+1}')
        first = False
    a(f'v_cmp_eq_u32 vcc, 0, v{loads[0]+1}')
    a('s_nop 4')
    a('s_cmp_eq_u64 vcc, -1'); a(f's_cbranch_scc1 {ok}')
    a(f's_add_u32 s{T+1}, s{T+1}, 1'); a(f's_cmp_lt_u32 s{T+1}, {CFG["spin"]}'); a(f's_cbranch_scc1 {loop}')
    a(f'{ok}:')
    a(f'{skip}:')
    a('s_barrier')

class V:
    LANE = 1
    P0, P1, Q0, Q1 = 2, 3, 4, 5
    RA0, RA1, RB0, RB1 = 6, 7, 8, 9
    FR = 12
    FQ = 28
    T = 44
    ACC = 64
    VD = 128

def dma_offsets(a, dst0, dst1, stride, s_col):
    L, T = V.LANE, V.T
    a(f'v_lshrrev_b32 v{T}, 3, v{L}'); a(f'v_and_b32 v{T+1}, 7, v{L}')
    a(f'v_lshlrev_b32 v{T+2}, 1, v{T}'); a(f'v_and_b32 v{T+2}, 4, v{T+2}')
    a(f'v_xor_b32 v{T+1}, v{T+1}, v{T+2}'); a(f'v_lshlrev_b32 v{T+1}, 4, v{T+1}')
    a(f's_mov_b32 s{S.T}, {stride}')
    a(f'v_mad_u32_u24 v{dst0}, v{T}, s{S.T}, v{T+1}')
    a(f'v_add_u32 v{dst0}, s{s_col}, v{dst0}')
    a(f'v_add_u32 v{dst1}, {8*stride-1024}, v{dst0}')

def read_addresses(a):
    L, T = V.LANE, V.T
    a(f'v_lshrrev_b32 v{T}, 5, v{L}'); a(f'v_lshlrev_b32 v{T}, 3, v{T}')
    a(f'v_bfe_u32 v{T+1}, v{L}, 2, 2'); a(f'v_add_u32 v{T}, v{T}, v{T+1}'); a(f'v_lshlrev_b32 v{T}, 7, v{T}')
    a(f'v_bfe_u32 v{T+2}, v{L}, 4, 1'); a(f'v_lshlrev_b32 v{T+2}, 5, v{T+2}')
    a(f'v_and_b32 v{T+3}, 3, v{L}'); a(f'v_lshl_add_u32 v{T+2}, v{T+3}, 3, v{T+2}')
    a(f'v_lshlrev_b32 v{T+1}, 5, v{T+1}'); a(f'v_and_b32 v{T+1}, 64, v{T+1}'); a(f'v_or_b32 v{T+2}, v{T+2}, v{T+1}')
    a(f'v_add3_u32 v{T}, v{T}, v{T+2}, s{S.RING}')
    a(f's_lshl_b32 s{S.T}, s{S.WAVE}, 6'); a(f's_and_b32 s{S.T}, s{S.T}, 64')
    a(f'v_xor_b32 v{V.RA0}, s{S.T}, v{T}'); a(f'v_xor_b32 v{V.RA1}, 64, v{V.RA0}')
    a(f's_lshl_b32 s{S.T}, s{S.WAVE}, 5'); a(f's_and_b32 s{S.T}, s{S.T}, 64')
    a(f'v_xor_b32 v{V.RB0}, s{S.T}, v{T}'); a(f'v_xor_b32 v{V.RB1}, 64, v{V.RB0}')

S_WRAP = 93
def dma_groups(slot, v0, v1, srd_, so, stride, mods, wrap=None):
    g0 = [f's_add_u32 m0, s{S.RING}, {slot*2048}', 's_nop 0',
          f'buffer_load_dwordx4 v{v0}, s[{srd_}:{srd_+3}], s{so} offen {mods} lds']
    g1 = [f'buffer_load_dwordx4 v{v1}, s[{srd_}:{srd_+3}], s{so} offen offset:1024 {mods} lds',
          f's_add_u32 s{so}, s{so}, {stride if isinstance(stride, str) else 64*stride}']
    if wrap:
        g1 += [f's_cmp_ge_u32 s{so}, {wrap[0]}', f's_cselect_b32 s{S_WRAP}, {wrap[1]}, 0', f's_sub_u32 s{so}, s{so}, s{S_WRAP}']
    return g0, g1

def tile_reads(a, slot, side, dst):
    if CFG.get('x_nods') and side == 0: return
    for t in range(2):
        ra = (V.RA0, V.RA1, V.RB0, V.RB1)[side * 2 + t]
        for q in range(2):
            a(f'ds_read_b64_tr_b16 {dst(t, q)}, v{ra} offset:{slot*2048 + q*512}')

def vpair(base): return lambda t, q: f'v[{base+4*t+2*q}:{base+4*t+2*q+1}]'
def apair(base): return lambda t, q: f'a[{base+4*t+2*q}:{base+4*t+2*q+1}]'

class Preload:
    def __init__(self, nsteps, srd_, stride, mods, slots, wrap=None):
        self.wrap = wrap
        self.n, self.srd, self.stride, self.mods, self.slots = nsteps, srd_, stride, mods, list(slots)
        self.issued = 0; self.done = 0; self.h = {}; self.slot = {}; self.free = list(slots)
    def issue_groups(self, k):
        out = []
        for _ in range(k):
            if self.issued >= self.n or not self.free: break
            u = self.issued; self.issued += 1
            sl = self.free.pop(0); self.slot[u] = sl
            g0, g1 = dma_groups(sl, V.Q0, V.Q1, self.srd, S.SOB, self.stride, self.mods, self.wrap)
            def mk(u, g1):
                def f(a):
                    for l in g1: a(l)
                    self.h[u] = a.mark()
                return f
            out += [g0, mk(u, g1)]
        return out
    def issue(self, a, k):
        for g in self.issue_groups(k):
            g(a) if callable(g) else [a(l) for l in g]
    def drain(self, a, upto=None, more_slots=()):
        self.free += list(more_slots)
        upto = self.n if upto is None else upto
        self.issue(a, len(self.free))
        pend = None
        while self.done < upto:
            u = self.done
            a.wait_vm(self.h[u])
            tile_reads(a, self.slot[u], 1, apair(8 * u))
            if pend is not None:
                a('s_waitcnt lgkmcnt(4)')
                self.free.append(self.slot[pend]); self.issue(a, 1)
            pend = u
            self.done += 1
        a('s_waitcnt lgkmcnt(0)')
        if pend is not None: self.free.append(self.slot[pend])

def mfma_step(fs, qreg):
    f = V.FR + 8 * fs
    out = []
    if CFG.get('x_nomfma'): return ['s_nop 0'] * 4
    if CFG.get('x_vq'): qreg = lambda nt: f'v[{V.FQ+4*nt}:{V.FQ+4*nt+3}]'
    for nt in range(2):
        for mt in range(2):
            acc = V.ACC + (nt * 2 + mt) * 16
            out.append(f'v_mfma_f32_32x32x16_bf16 v[{acc}:{acc+15}], v[{f+4*mt}:{f+4*mt+3}], {qreg(nt)}, v[{acc}:{acc+15}]')
    return out

def stream_loop(a, steps, depth, bg_extra=()):
    items = []
    for u, st in enumerate(steps):
        for it in st['items']: items.append((u, it))
    nxt = 0; free = list(range(NRING)); slot = {}; h = {}
    def issue_one():
        nonlocal nxt
        u, it = items[nxt]; key = (u, it[0]); nxt += 1
        sl = free.pop(0); slot[key] = sl
        hook = steps[u].get('before_issue')
        if hook and it is steps[u]['items'][0]: hook(a)
        g0, g1 = dma_groups(sl, it[1], it[2], it[3], it[4], it[5], it[6], it[7] if len(it) > 7 else None)
        for l in g0 + g1: a(l)
        h[key] = a.mark()
    def reads(u):
        fs = u % 2
        for it in steps[u]['items']:
            key = (u, it[0])
            if it[0] == 0: tile_reads(a, slot[key], 0, vpair(V.FR + 8 * fs))
            else: tile_reads(a, slot[key], 1, vpair(V.FQ + 8 * fs))
    def last_handle(u): return max(h[(u, it[0])] for it in steps[u]['items'])
    for i in range(64): a(f'v_mov_b32 v{V.ACC+i}, 0')
    inflight = lambda: NRING - len(free)
    while nxt < len(items) and inflight() < depth: issue_one()
    for g in bg_extra:
        g(a) if callable(g) else [a(l) for l in g]
    a.wait_vm(last_handle(0))
    reads(0)
    n = len(steps)
    for u in range(n):
        fs = u % 2
        q = steps[u]['q']
        qreg = (lambda nt, q=q: f'a[{8*q+4*nt}:{8*q+4*nt+3}]') if q is not None else (lambda nt, fs=fs: f'v[{V.FQ+8*fs+4*nt}:{V.FQ+8*fs+4*nt+3}]')
        m = mfma_step(fs, qreg)
        a('s_waitcnt lgkmcnt(0)')
        a(m[0])
        for it in steps[u]['items']: free.append(slot[(u, it[0])])
        while nxt < len(items) and inflight() < depth and free: issue_one()
        a(m[1])
        if u + 1 < n:
            a.wait_vm(last_handle(u + 1))
            reads(u + 1)
        a(m[2]); a(m[3])

def reduce_partials(a, bg=None):
    L, T = V.LANE, V.T
    a(f'v_lshlrev_b32 v{T}, 4, v{L}')
    a(f'v_add_u32 v{T+1}, s{S.RING}, v{T}')
    for t in range(1, 4):
        a(f's_xor_b32 s{S.T}, s{S.WAVE}, {t}'); a(f's_mul_i32 s{S.T}, s{S.T}, {RINGB}')
        a(f'v_add_u32 v{T+1+t}, s{S.T}, v{T}')
    a('s_nop 7')
    for t in range(1, 4):
        for i in range(4):
            r = V.ACC + t*16 + i*4
            a(f'ds_write_b128 v{T+1}, v[{r}:{r+3}] offset:{(t-1)*4096+i*1024}')
    a('s_waitcnt lgkmcnt(0)')
    a('s_barrier')
    for t in range(1, 4):
        for i in range(4):
            r = V.ACC + t*16 + i*4
            a(f'ds_read_b128 v[{r}:{r+3}], v{T+1+t} offset:{(t-1)*4096+i*1024}')
    a('s_waitcnt lgkmcnt(8)')
    for i in range(16): a(f'v_add_f32 v{V.VD+i}, v{V.ACC+i}, v{V.ACC+16+i}')
    a('s_waitcnt lgkmcnt(4)')
    for i in range(16): a(f'v_add_f32 v{V.VD+i}, v{V.VD+i}, v{V.ACC+32+i}')
    a('s_waitcnt lgkmcnt(0)')
    for i in range(16): a(f'v_add_f32 v{V.VD+i}, v{V.VD+i}, v{V.ACC+48+i}')


def ff(x): return fb(float(x))
def lane_floats(a, fa, fh, tmp):
    L = V.LANE
    a(f'v_and_b32 v{tmp}, 31, v{L}'); a(f'v_cvt_f32_u32 v{fa}, v{tmp}')
    a(f'v_lshrrev_b32 v{tmp}, 5, v{L}'); a(f'v_cvt_f32_u32 v{fh}, v{tmp}')

def gen_f32(a, fa, fh, C, S_, NS, tmp):
    st, ba = tmp, tmp + 1
    a(f'v_mul_f32 v{st}, {ff(1/32)}, v{fa}')
    a(f'v_mul_f32 v{ba}, v{fa}, v{fh}'); a(f'v_mul_f32 v{ba}, {ff(1/8)}, v{ba}')
    for b in range(2):
        for q in range(4):
            r = []
            for e in range(2):
                jj = 2*q + e; kb = 16*b + 8*(jj//4) + jj % 4
                a(f'v_fmamk_f32 v{tmp+2+e}, v{st}, {ff(kb)}, v{ba}')
            for e in range(2):
                a(f'v_sin_f32 v{tmp+4+e}, v{tmp+2+e}')
            for e in range(2):
                a(f'v_cos_f32 v{tmp+2+e}, v{tmp+2+e}')
            if S_ is not None: a(f'v_cvt_pk_bf16_f32 v{S_+4*b+q}, v{tmp+4}, v{tmp+5}')
            if NS is not None: a(f'v_cvt_pk_bf16_f32 v{NS+4*b+q}, -v{tmp+4}, -v{tmp+5}')
            a(f'v_cvt_pk_bf16_f32 v{C+4*b+q}, v{tmp+2}, v{tmp+3}')

def gen_twiddle(a, fa, fh, TC, TS, ns, den, tmp):
    st, ba = tmp, tmp + 1
    a(f'v_mul_f32 v{st}, {ff(1/den)}, v{fa}')
    a(f'v_mul_f32 v{ba}, v{fa}, v{fh}'); a(f'v_mul_f32 v{ba}, {ff(4/den)}, v{ba}')
    for i, n in enumerate(ns):
        a(f'v_fmamk_f32 v{TC+i}, v{st}, {ff(n)}, v{ba}')
        a(f'v_sin_f32 v{TS+i}, v{TC+i}'); a(f'v_cos_f32 v{TC+i}, v{TC+i}')

def gen_t2048(a, fa, fh, UC, US, tmp):
    a(f'v_mul_f32 v{tmp}, {ff(1/64)}, v{fa}'); a(f'v_fmamk_f32 v{tmp}, v{fh}, {ff(4/2048)}, v{tmp}')
    for i in range(4):
        for j in range(4):
            n = 4*i + j
            a(f'v_add_f32 v{UC+n}, {ff((8*i+j)/2048)}, v{tmp}')
            a(f'v_sin_f32 v{US+n}, v{UC+n}'); a(f'v_cos_f32 v{UC+n}, v{UC+n}')

def gen_a2(a, fh, A2R, A2I, tmp):
    L = V.LANE
    k2, c4, st, ba = tmp, tmp + 1, tmp + 2, tmp + 3
    a(f'v_bfe_u32 v{k2}, v{L}, 3, 2'); a(f'v_lshlrev_b32 v{k2}, 2, v{k2}')
    a(f'v_bfe_u32 v{c4}, v{L}, 2, 1'); a(f'v_lshl_add_u32 v{k2}, v{c4}, 1, v{k2}')
    a(f'v_bfe_u32 v{c4}, v{L}, 1, 1'); a(f'v_add_u32 v{k2}, v{k2}, v{c4}'); a(f'v_cvt_f32_u32 v{k2}, v{k2}')
    a(f'v_and_b32 v{c4}, 1, v{L}'); a(f'v_cvt_f32_u32 v{c4}, v{c4}'); a(f'v_mul_f32 v{c4}, 0x3e800000, v{c4}')
    a(f'v_mul_f32 v{st}, {ff(1/16)}, v{k2}')
    a(f'v_mul_f32 v{ba}, v{k2}, v{fh}'); a(f'v_fmamk_f32 v{ba}, v{ba}, {ff(1/4)}, v{c4}')
    for q in range(4):
        for e in range(2):
            jj = 2*q + e; nb = 8*(jj//4) + jj % 4
            a(f'v_fmamk_f32 v{tmp+4+e}, v{st}, {ff(nb)}, v{ba}')
        for e in range(2): a(f'v_sin_f32 v{tmp+6+e}, v{tmp+4+e}')
        for e in range(2): a(f'v_cos_f32 v{tmp+4+e}, v{tmp+4+e}')
        a(f'v_cvt_pk_bf16_f32 v{A2I+q}, v{tmp+6}, v{tmp+7}')
        a(f'v_cvt_pk_bf16_f32 v{A2R+q}, v{tmp+4}, v{tmp+5}')

def row_sum(a, v, t):
    for n in (8, 4, 2, 1):
        a('s_nop 1')
        a(f'v_add_f32_dpp v{v}, v{v}, v{v} row_ror:{n} row_mask:0xf bank_mask:0xf')
    a(f'v_mov_b32 v{t}, v{v}')
    a('s_nop 1')
    a(f'v_permlane32_swap_b32 v{v}, v{t}')
    a('s_nop 0')
    a(f'v_add_f32 v{v}, v{v}, v{t}')

def rbf(a, d, s):
    a(f'v_cvt_pk_bf16_f32 v{d}, v{s}, v{s}')
    a(f'v_lshlrev_b32 v{d}, 16, v{d}')

def layernorm(a, X, P, T, unpack):
    t0, t1, t2, t3 = T, T + 1, T + 2, T + 3
    Pp = lambda x: f'v[{x}:{x+1}]'
    a(f'v_pk_add_f32 {Pp(t0)}, {Pp(X)}, {Pp(X+2)}'); a(f'v_pk_add_f32 {Pp(t2)}, {Pp(X+4)}, {Pp(X+6)}')
    for i in (8, 12):
        a(f'v_pk_add_f32 {Pp(t0)}, {Pp(t0)}, {Pp(X+i)}'); a(f'v_pk_add_f32 {Pp(t2)}, {Pp(t2)}, {Pp(X+i+2)}')
    a(f'v_pk_add_f32 {Pp(t0)}, {Pp(t0)}, {Pp(t2)}')
    a(f'v_add_f32 v{t0}, v{t0}, v{t1}')
    row_sum(a, t0, t1)
    a(f'v_mul_f32 v{t0}, 0x3b000000, v{t0}')
    rbf(a, t2, t0)
    a(f'v_sub_f32 v{t3}, v{t0}, v{t2}')
    for i in range(0, 16, 2):
        a(f'v_pk_add_f32 {Pp(X+i)}, {Pp(X+i)}, {Pp(t2)} op_sel_hi:[1,0] neg_lo:[0,1] neg_hi:[0,1]')
    a(f'v_mul_f32 v{t3}, v{t3}, v{t3}')
    a(f'v_pk_mul_f32 {Pp(t0)}, {Pp(X)}, {Pp(X)}'); a(f'v_pk_mul_f32 {Pp(T+4)}, {Pp(X+2)}, {Pp(X+2)}')
    for i in range(4, 16, 4):
        a(f'v_pk_fma_f32 {Pp(t0)}, {Pp(X+i)}, {Pp(X+i)}, {Pp(t0)}'); a(f'v_pk_fma_f32 {Pp(T+4)}, {Pp(X+i+2)}, {Pp(X+i+2)}, {Pp(T+4)}')
    a(f'v_pk_add_f32 {Pp(t0)}, {Pp(t0)}, {Pp(T+4)}')
    a(f'v_add_f32 v{t0}, v{t0}, v{t1}')
    for n in (8, 4, 2, 1):
        a(f'v_cvt_pk_bf16_f32 v{P+2*[8,4,2,1].index(n)}, v{X+4*[8,4,2,1].index(n)}, v{X+4*[8,4,2,1].index(n)+1}')
        a(f'v_cvt_pk_bf16_f32 v{P+2*[8,4,2,1].index(n)+1}, v{X+4*[8,4,2,1].index(n)+2}, v{X+4*[8,4,2,1].index(n)+3}')
        a(f'v_add_f32_dpp v{t0}, v{t0}, v{t0} row_ror:{n} row_mask:0xf bank_mask:0xf')
    a(f'v_lshlrev_b32 v{X}, 16, v{P}')
    a(f'v_mov_b32 v{t1}, v{t0}')
    a(f'v_and_b32 v{X+1}, 0xffff0000, v{P}'); a(f'v_lshlrev_b32 v{X+2}, 16, v{P+1}')
    a(f'v_permlane32_swap_b32 v{t0}, v{t1}')
    a(f'v_and_b32 v{X+3}, 0xffff0000, v{P+1}')
    a(f'v_add_f32 v{t0}, v{t0}, v{t1}')
    a(f'v_fma_f32 v{t0}, v{t0}, v{T+6}, -v{t3}')
    a(f'v_max_f32 v{t0}, 0, v{t0}')
    rbf(a, t0, t0)
    a(f'v_add_f32 v{t0}, 0x3727c5ac, v{t0}')
    rbf(a, t0, t0)
    a(f'v_sqrt_f32 v{t0}, v{t0}')
    a(f'v_lshlrev_b32 v{X+4}, 16, v{P+2}')
    rbf(a, t0, t0)
    a(f'v_rcp_f32 v{t0}, v{t0}')
    a(f'v_and_b32 v{X+5}, 0xffff0000, v{P+2}')
    for q in range(3, 8):
        a(f'v_lshlrev_b32 v{X+2*q}, 16, v{P+q}'); a(f'v_and_b32 v{X+2*q+1}, 0xffff0000, v{P+q}')
    for i in range(0, 16, 2):
        a(f'v_pk_mul_f32 {Pp(X+i)}, {Pp(X+i)}, {Pp(t0)} op_sel_hi:[1,0]')
    for q in range(8):
        a(f'v_cvt_pk_bf16_f32 v{P+q}, v{X+2*q}, v{X+2*q+1}')
    if unpack:
        for q in range(8):
            a(f'v_lshlrev_b32 v{X+2*q}, 16, v{P+q}'); a(f'v_and_b32 v{X+2*q+1}, 0xffff0000, v{P+q}')

def finv_job(a, R):
    skip = a.label('finv')
    a(f's_cmp_lg_u32 s{S.WAVE}, 3'); a(f's_cbranch_scc1 {skip}')
    srd(a, S.D, S.WS, WS_FINV, 512 * 1024)
    L = V.LANE
    for e in range(2):
        t = S.T
        a(f's_mov_b32 s{t}, s2')
        a(f's_mov_b32 s{t+1}, {128*e}')
        a(f's_mov_b32 s{t+2}, 0x36000000')
        a('s_cmp_eq_u32 s2, 0')
        a(f's_cselect_b32 s{t+2}, 0x35800000, s{t+2}')
        if e == 1:
            a(f's_cselect_b32 s{t}, 0x100, s{t}')
            a(f's_cselect_b32 s{t+1}, 0, s{t+1}')
        a(f'v_lshlrev_b32 v{R}, 3, v{L}')
        a(f'v_mul_u32_u24 v{R}, s{t}, v{R}'); a(f'v_add_u32 v{R}, s{t+1}, v{R}')
        for k in range(8):
            r = R + 2 + k
            a(f'v_and_b32 v{r}, 511, v{R}'); a(f'v_cvt_f32_u32 v{r}, v{r}'); a(f'v_mul_f32 v{r}, 0x3b000000, v{r}')
            a(f'v_cos_f32 v{r}, v{r}'); a(f'v_add_u32 v{R}, s{t}, v{R}'); a(f'v_mul_f32 v{r}, s{t+2}, v{r}')
        o = R + 12 + 4*e
        for q in range(4): a(f'v_cvt_pk_bf16_f32 v{o+q}, v{R+2+2*q}, v{R+3+2*q}')
        a(f's_lshl_b32 s{t+3}, s2, 11'); a(f's_add_u32 s{t+3}, s{t+3}, {1024*e}')
        a(f'v_lshlrev_b32 v{R+1}, 4, v{L}')
        a.lines.append(f'buffer_store_dwordx4 v[{o}:{o+3}], v{R+1}, s[{S.D}:{S.D+3}], s{t+3} offen sc1')
    a(f'{skip}:')

def ab_loads(a, R):
    skip = a.label('abl')
    a(f's_cmp_lg_u32 s{S.WAVE}, 2'); a(f's_cbranch_scc1 {skip}')
    L = V.LANE
    a(f's_lshl_b32 s{S.T}, s2, 3')
    a(f'v_and_b32 v{R}, 7, v{L}'); a(f'v_add_u32 v{R}, s{S.T}, v{R}')
    a(f'v_sub_u32 v{R+1}, 0x800, v{R}'); a(f'v_and_b32 v{R+1}, 0x7ff, v{R+1}')
    a(f's_movk_i32 s{S.T}, 514')
    a(f'v_mul_lo_u32 v{R+2}, v{R}, s{S.T}'); a(f'v_mul_lo_u32 v{R+3}, v{R+1}, s{S.T}')
    for n, (v, s, off) in enumerate([(2, S.B, 0), (3, S.B, 0), (2, S.B, 512), (3, S.B, 512), (2, S.C, 0), (3, S.C, 0), (2, S.C, 512), (3, S.C, 512)]):
        a.lines.append(f'buffer_load_ushort v{R+4+n}, v{R+v}, s[{s}:{s+3}], 0 offen offset:{off}')
    a(f'{skip}:')

def ab_finish(a, R):
    with a.atomic(): ab_finish_(a, R)
def ab_finish_(a, R):
    skip = a.label('abf')
    a(f's_cmp_lg_u32 s{S.WAVE}, 2'); a(f's_cbranch_scc1 {skip}')
    for n in range(8): a(f'v_lshlrev_b32 v{R+4+n}, 16, v{R+4+n}')
    a(f'v_add_f32 v{R+2}, v{R+4}, v{R+5}'); a(f'v_add_f32 v{R+3}, v{R+6}, v{R+7}')
    a(f'v_sub_f32 v{R+4}, v{R+8}, v{R+9}'); a(f'v_sub_f32 v{R+5}, v{R+10}, v{R+11}')
    a(f'v_add_f32 v{R+6}, v{R+2}, v{R+3}'); a(f'v_add_f32 v{R+7}, v{R+4}, v{R+5}')
    a(f'v_sub_f32 v{R+8}, v{R+2}, v{R+3}'); a(f'v_sub_f32 v{R+9}, v{R+4}, v{R+5}')
    for n in range(4): a(f'v_mul_f32 v{R+6+n}, 0x3e800000, v{R+6+n}')
    a(f'v_cvt_pk_bf16_f32 v{R+2}, v{R+6}, v{R+7}'); a(f'v_cvt_pk_bf16_f32 v{R+3}, v{R+8}, v{R+9}')
    a(f'v_and_b32 v{R+4}, 1, v{R}'); a(f'v_lshlrev_b32 v{R+4}, 8, v{R+4}')
    a(f'v_lshrrev_b32 v{R+5}, 8, v{R}'); a(f'v_lshl_add_u32 v{R+4}, v{R+5}, 5, v{R+4}')
    a(f'v_bfe_u32 v{R+5}, v{R}, 1, 5'); a(f'v_add_u32 v{R+4}, v{R+4}, v{R+5}')
    a(f'v_bfe_u32 v{R+5}, v{R}, 6, 2'); a(f'v_lshlrev_b32 v{R+5}, 2, v{R+5}'); a(f'v_lshl_add_u32 v{R+4}, v{R+4}, 4, v{R+5}')
    srd(a, S.D, S.WS, WS_AL, 0x4000)
    a('s_mov_b64 exec, 0xff')
    a.lines.append(f'buffer_store_dword v{R+2}, v{R+4}, s[{S.D}:{S.D+3}], 0 offen sc1')
    a(f'v_add_u32 v{R+4}, {WS_BE-WS_AL}, v{R+4}')
    a.lines.append(f'buffer_store_dword v{R+3}, v{R+4}, s[{S.D}:{S.D+3}], 0 offen sc1')
    a('s_mov_b64 exec, -1')
    a(f'{skip}:')

def phase1(a, pre):
    L = V.LANE
    VO, VT, VE = 10, 11, 44
    X, XA = 128, 144
    C32, NS32, TC, TS, A2R, A2I = 152, 160, 168, 176, 184, 188
    D1R, D1I = 192, 208
    BR, BI = 224, 232
    T = 240
    TW = 248
    WQ = 64
    AB = 96
    FI = 108
    t = S.T
    for i in range(16): a(f'v_mov_b32 v{X+i}, 0')
    a(f's_lshl_b32 s{t+8}, s2, 2'); a(f's_add_u32 s{t+8}, s{t+8}, s{S.WAVE}')
    a(f'v_bfe_u32 v{T}, v{L}, 4, 1'); a(f'v_lshlrev_b32 v{T}, 10, v{T}'); a(f'v_add_u32 v{T}, s{t+8}, v{T}')
    a(f'v_lshlrev_b32 v{T}, 10, v{T}'); a(f'v_and_b32 v{T+1}, 15, v{L}'); a(f'v_lshl_add_u32 v{T}, v{T+1}, 1, v{T}')
    a(f'v_lshrrev_b32 v{T+1}, 5, v{L}'); a(f'v_lshl_add_u32 v{VO}, v{T+1}, 7, v{T}')
    srd(a, S.A, S.X, 0, 2048 * 1024)
    for b in range(2):
        for jj in range(8):
            a(f'buffer_load_short_d16_hi v{X+8*b+jj}, v{VO}, s[{S.A}:{S.A+3}], 0 offen offset:{512*b+256*(jj//4)+32*(jj%4)} {CFG["inmod"]}')
    hx = a.mark()
    srd(a, S.B, S.WR, 0, 2048 * 514); srd(a, S.C, S.WI, 0, 2048 * 514)
    a(f's_lshr_b32 s{t}, s{S.WAVE}, 1'); a(f's_lshl_b32 s{t+1}, s2, 1'); a(f's_add_u32 s{t}, s{t}, s{t+1}')
    a(f's_and_b32 s{t+1}, s{t}, 63'); a(f's_lshr_b32 s{t+2}, s{t}, 6')
    a(f's_lshl_b32 s{t+3}, s{t+2}, 8'); a(f's_add_u32 s{t+3}, s{t+3}, s{t+1}'); a(f's_mul_i32 s{t+3}, s{t+3}, 514')
    a(f's_and_b32 s{t+4}, s{S.WAVE}, 1'); a(f's_lshl_b32 s{t+5}, s{t+4}, 8'); a(f's_add_u32 s{t+3}, s{t+3}, s{t+5}')
    a(f'v_lshlrev_b32 v{WQ}, 2, v{L}'); a(f'v_add_u32 v{WQ}, s{t+3}, v{WQ}')
    for j in range(4):
        a(f's_mov_b32 s{t+5}, {j*64*514}')
        a(f'buffer_load_dword v{WQ+2+j}, v{WQ}, s[{S.B}:{S.B+3}], s{t+5} offen {CFG["inmod"]}')
        a(f'buffer_load_dword v{WQ+6+j}, v{WQ}, s[{S.C}:{S.C+3}], s{t+5} offen {CFG["inmod"]}')
    hw = a.mark()
    a(f's_and_b32 s{t+5}, s{t}, 1'); a(f's_lshl_b32 s{t+5}, s{t+5}, 8'); a(f's_lshl_b32 s{t+6}, s{t+2}, 5'); a(f's_add_u32 s{t+5}, s{t+5}, s{t+6}')
    a(f's_lshr_b32 s{t+6}, s{t+1}, 1'); a(f's_add_u32 s{t+5}, s{t+5}, s{t+6}'); a(f's_lshl_b32 s{t+5}, s{t+5}, 7')
    a(f's_lshl_b32 s{t+6}, s{t+4}, 20'); a(f's_add_u32 s{t+5}, s{t+5}, s{t+6}')
    a(f'v_lshrrev_b32 v{WQ+1}, 3, v{L}'); a(f'v_lshlrev_b32 v{WQ+1}, 16, v{WQ+1}'); a(f'v_and_b32 v{WQ}, 7, v{L}')
    a(f'v_lshl_add_u32 v{WQ+1}, v{WQ}, 4, v{WQ+1}'); a(f'v_add_u32 v{WQ+1}, s{t+5}, v{WQ+1}')
    ab_loads(a, AB)
    def pf1():
        a(f's_and_b32 s{t+12}, s{S.J}, 3'); a(f's_lshl_b32 s{t+12}, s{t+12}, 2'); a(f's_add_u32 s{t+12}, s{t+12}, s{S.WAVE}')
        a(f's_lshl_b32 s{t+12}, s{t+12}, 7')
        a(f'v_add_u32 v{T+7}, s{t+12}, v{L}')
        a(f's_lshr_b32 s{t+13}, s{t+14}, 6')
        a(f'v_mul_lo_u32 v{T+7}, v{T+7}, s{t+13}'); a(f'v_add_u32 v{T+7}, s{PF_COL}, v{T+7}')
        a(f'buffer_load_dword v{VT}, v{T+7}, s[{PRE_SRD}:{PRE_SRD+3}], 0 offen {CFG["wmod"]}')
        a(f'buffer_load_dword v{VT}, v{T+7}, s[{PRE_SRD}:{PRE_SRD+3}], s{t+14} offen {CFG["wmod"]}')
    if CFG['pf1'] == 1: pf1()
    pre.issue(a, CFG['early'])
    finv_job(a, FI)
    lane_floats(a, D1R, D1R + 1, D1R + 2)
    gen_f32(a, D1R, D1R + 1, C32, None, NS32, D1R + 2)
    gen_twiddle(a, D1R, D1R + 1, TC, TS, [0, 1, 2, 3, 8, 9, 10, 11], 512, D1R + 2)
    gen_a2(a, D1R + 1, A2R, A2I, D1R + 2)
    a(f'v_cvt_f32_u32 v{TW}, s{t+8}'); a(f'v_mul_f32 v{TW}, 0x3a000000, v{TW}')
    a(f'v_sin_f32 v{TW+1}, v{TW}'); a(f'v_cos_f32 v{TW}, v{TW}')
    a(f'v_mov_b32 v{T+6}, 0x3b000000')
    a(f's_lshl_b32 s{t+9}, s{S.WAVE}, 12'); a(f's_add_u32 s{t+9}, s{t+9}, {LDS_EX}')
    a(f'v_lshlrev_b32 v{VE}, 4, v{L}'); a(f'v_add_u32 v{VE}, s{t+9}, v{VE}')
    stamp(a, 1, T)
    a.wait_vm(hx)
    stamp(a, 2, T)
    if CFG['pf1'] == 2: pf1()
    layernorm(a, X, XA, T, True)
    for b in range(2):
        c = '0' if b == 0 else f'v[{D1R}:{D1R+15}]'
        a(f'v_mfma_f32_32x32x16_bf16 v[{D1R}:{D1R+15}], v[{XA+4*b}:{XA+4*b+3}], v[{C32+4*b}:{C32+4*b+3}], {c}')
        c = '0' if b == 0 else f'v[{D1I}:{D1I+15}]'
        a(f'v_mfma_f32_32x32x16_bf16 v[{D1I}:{D1I+15}], v[{XA+4*b}:{XA+4*b+3}], v[{NS32+4*b}:{NS32+4*b+3}], {c}')
    HP = XA
    layernorm(a, X, HP, T, False)
    a(f'v_bfe_u32 v{T}, v{L}, 4, 1'); a(f'v_mul_u32_u24 v{T}, 1056, v{T}'); a(f'v_and_b32 v{T+1}, 15, v{L}')
    a(f'v_lshl_add_u32 v{T}, v{T+1}, 1, v{T}'); a(f'v_lshrrev_b32 v{T+1}, 5, v{L}'); a(f'v_lshl_add_u32 v{T}, v{T+1}, 7, v{T}')
    a(f'v_add_u32 v{T}, s{t+9}, v{T}')
    for q in range(8):
        b, jq = q // 4, q % 4
        for e in range(2):
            jj = 2 * jq + e
            op = 'ds_write_b16_d16_hi' if e else 'ds_write_b16'
            a(f'{op} v{T}, v{HP+q} offset:{512*b+256*(jj//4)+32*(jj%4)}')
    a(f'ds_read_b128 v[{WQ+20}:{WQ+23}], v{VE}'); a(f'ds_read_b128 v[{WQ+24}:{WQ+27}], v{VE} offset:1056')
    srd(a, S.D, S.WS, WS_H, 2048 * 1024)
    a(f's_lshl_b32 s{t+5}, s{t+8}, 10'); a(f's_add_u32 s{t+6}, s{t+5}, {1024*1024}')
    a(f'v_lshlrev_b32 v{T+1}, 4, v{L}')
    Pp = lambda x: f'v[{x}:{x+1}]'
    for i in range(4):
        for j in range(0, 4, 2):
            r_, i_ = D1R + 4*i + j, D1I + 4*i + j
            tc, ts = TC + 4*(i % 2) + j, TS + 4*(i % 2) + j
            a(f'v_pk_mul_f32 {Pp(X+j)}, {Pp(r_)}, {Pp(tc)}'); a(f'v_pk_mul_f32 {Pp(X+4+j)}, {Pp(i_)}, {Pp(tc)}')
            a(f'v_pk_fma_f32 {Pp(X+j)}, {Pp(i_)}, {Pp(ts)}, {Pp(X+j)}')
            a(f'v_pk_fma_f32 {Pp(X+4+j)}, {Pp(r_)}, {Pp(ts)}, {Pp(X+4+j)} neg_lo:[1,0,0] neg_hi:[1,0,0]')
        a(f'v_cvt_pk_bf16_f32 v{BR+2*i}, v{X}, v{X+1}');   a(f'v_cvt_pk_bf16_f32 v{BR+2*i+1}, v{X+2}, v{X+3}')
        a(f'v_cvt_pk_bf16_f32 v{BI+2*i}, v{X+4}, v{X+5}'); a(f'v_cvt_pk_bf16_f32 v{BI+2*i+1}, v{X+6}, v{X+7}')
        if i == 0:
            a('s_waitcnt lgkmcnt(0)')
            a(f'buffer_store_dwordx4 v[{WQ+20}:{WQ+23}], v{T+1}, s[{S.D}:{S.D+3}], s{t+5} offen sc1')
            a(f'buffer_store_dwordx4 v[{WQ+24}:{WQ+27}], v{T+1}, s[{S.D}:{S.D+3}], s{t+6} offen sc1')
    a('s_nop 1')
    D2 = (D1R, D1I)
    for r in range(2):
        a(f'v_mfma_f32_32x32x16_bf16 v[{D2[r]}:{D2[r]+15}], v[{A2R}:{A2R+3}], v[{BR+4*r}:{BR+4*r+3}], 0')
    for r in range(2):
        a(f'v_mfma_f32_32x32x16_bf16 v[{D2[r]}:{D2[r]+15}], v[{A2I}:{A2I+3}], v[{BI+4*r}:{BI+4*r+3}], v[{D2[r]}:{D2[r]+15}]')
    a(f'v_and_b32 v{T}, 31, v0'); a(f'v_lshrrev_b32 v{T+1}, 5, v0'); a(f'v_lshrrev_b32 v{T+2}, 2, v{T+1}'); a(f'v_lshlrev_b32 v{T+2}, 10, v{T+2}')
    a(f'v_bfe_u32 v{T+3}, v{T+1}, 1, 1'); a(f'v_lshl_add_u32 v{T}, v{T+3}, 5, v{T}'); a(f'v_lshl_add_u32 v{T}, v{T}, 4, v{T+2}')
    a(f'v_and_b32 v{T+1}, 1, v{T+1}'); a(f'v_lshl_add_u32 v{T}, v{T+1}, 3, v{T}'); a(f'v_add_u32 v{T}, {LDS_EX}, v{T}')
    a(f'v_lshrrev_b32 v{T+1}, 3, v0'); a(f'v_lshlrev_b32 v{T+1}, 15, v{T+1}'); a(f'v_and_b32 v{T+2}, 7, v0')
    a(f'v_lshl_add_u32 v{T+1}, v{T+2}, 4, v{T+1}'); a(f's_lshl_b32 s{t+5}, s2, 7'); a(f'v_add_u32 v{T+1}, s{t+5}, v{T+1}')
    a('s_nop 3')
    a('s_mov_b64 exec, 1')
    a(f'v_mov_b32 v{D2[0]+1}, v{D2[0]+8}'); a(f'v_mov_b32 v{D2[1]+1}, v{D2[1]+8}')
    a('s_mov_b64 exec, -1')
    Z0, DF, Z1 = X, X + 8, XA
    for i in range(0, 8, 2):
        a(f'v_pk_add_f32 {Pp(Z0+i)}, {Pp(D2[0]+i)}, {Pp(D2[1]+i)}')
        a(f'v_pk_add_f32 {Pp(DF+i)}, {Pp(D2[0]+i)}, {Pp(D2[1]+i)} neg_lo:[0,1] neg_hi:[0,1]')
    for i in range(0, 8, 2):
        a(f'v_mul_f32 v{Z1+i}, v{DF+i}, v{TW}'); a(f'v_mul_f32 v{Z1+i+1}, v{DF+i+1}, v{TW}')
        a(f'v_fmac_f32 v{Z1+i}, v{DF+i+1}, v{TW+1}'); a(f'v_fma_f32 v{Z1+i+1}, -v{DF+i}, v{TW+1}, v{Z1+i+1}')
    for ip in range(2):
        a(f'ds_write_b128 v{VE}, v[{Z0+4*ip}:{Z0+4*ip+3}] offset:{ip*1024}')
        a(f'ds_write_b128 v{VE}, v[{Z1+4*ip}:{Z1+4*ip+3}] offset:{2048+ip*1024}')
    srd(a, S.D, S.WS, WS_ZB, 2 * 32 * 256 * 128)
    a('s_waitcnt lgkmcnt(0)')
    a('s_barrier')
    G0 = C32
    for par in range(2):
        for w in range(4):
            a(f'ds_read_b64 v[{G0+16*par+2*w}:{G0+16*par+2*w+1}], v{T} offset:{w*4096+par*2048}')
    a(f's_mov_b32 s{t+5}, {32*256*128}')
    for par in range(2):
        g = G0 + 16 * par; o = g + 8
        a(f's_waitcnt lgkmcnt({4*(1-par)})')
        a(f'v_cvt_pk_bf16_f32 v{o}, v{g}, v{g+2}');     a(f'v_cvt_pk_bf16_f32 v{o+1}, v{g+4}, v{g+6}')
        a(f'v_cvt_pk_bf16_f32 v{o+2}, v{g+1}, v{g+3}'); a(f'v_cvt_pk_bf16_f32 v{o+3}, v{g+5}, v{g+7}')
        so = f's{t+5}' if par else '0'
        a(f'buffer_store_dwordx4 v[{o}:{o+3}], v{T+1}, s[{S.D}:{S.D+3}], {so} offen sc1')
    stamp(a, 3, T + 2)
    a.wait_vm(hw)
    a(f's_mov_b32 s{t+10}, 0x05040100'); a(f's_mov_b32 s{t+11}, 0x07060302')
    for e in range(2):
        for j in range(4):
            a(f'v_perm_b32 v{WQ+10+4*e+j}, v{WQ+6+j}, v{WQ+2+j}, s{t+10+e}')
    a(f'v_lshlrev_b32 v{VE}, 5, v{L}'); a(f'v_add_u32 v{VE}, s{S.RING}, v{VE}')
    a(f'ds_write_b128 v{VE}, v[{WQ+10}:{WQ+13}] offset:{(NRING-1)*2048}'); a(f'ds_write_b128 v{VE}, v[{WQ+14}:{WQ+17}] offset:{(NRING-1)*2048+16}')
    a(f'v_lshlrev_b32 v{VE}, 4, v{L}'); a(f'v_add_u32 v{VE}, s{S.RING}, v{VE}')
    a(f'ds_read_b128 v[{WQ+20}:{WQ+23}], v{VE} offset:{(NRING-1)*2048}'); a(f'ds_read_b128 v[{WQ+24}:{WQ+27}], v{VE} offset:{(NRING-1)*2048+1024}')
    srd(a, S.D, S.WS, WS_WP, 32 * 512 * 128)
    ab_finish(a, AB)
    srd(a, S.D, S.WS, WS_WP, 32 * 512 * 128)
    a(f's_mov_b32 s{t+5}, {8*65536}')
    a('s_waitcnt lgkmcnt(0)')
    a(f'buffer_store_dwordx4 v[{WQ+20}:{WQ+23}], v{WQ+1}, s[{S.D}:{S.D+3}], 0 offen sc1')
    a(f'buffer_store_dwordx4 v[{WQ+24}:{WQ+27}], v{WQ+1}, s[{S.D}:{S.D+3}], s{t+5} offen sc1')
    a(f'v_mov_b32 v{T+2}, 0')
    a(f'global_load_dword v{T+3}, v{T+2}, s[{S.DBG}:{S.DBG+1}] sc1')
    hst = a.mark()
    if CFG['pf1'] == 3: pf1()
    pre.issue(a, CFG['mid'])
    a.wait_vm(hst)
    lp, ok = a.label('nonce'), a.label('nonce_ok')
    a(f's_mov_b32 s{t}, 0')
    a(f'{lp}:')
    a(f'v_readfirstlane_b32 s{S.NONCE}, v{T+3}')
    a('s_nop 3')
    a(f's_cmp_lg_u32 s{S.NONCE}, 0'); a(f's_cbranch_scc1 {ok}')
    a.lines.append(f'global_load_dword v{T+3}, v{T+2}, s[{S.DBG}:{S.DBG+1}] sc1')
    a('s_waitcnt vmcnt(0)')
    a(f's_add_u32 s{t}, s{t}, 1'); a(f's_cmp_lt_u32 s{t}, {CFG["spin"]}'); a(f's_cbranch_scc1 {lp}')
    a(f'{ok}:')
    a('s_barrier')
    publish(a, [f's_lshl_b32 s{t}, s2, 7', f's_add_u32 s{t}, s{t}, {WS_F1}'], t, T)
    stamp(a, 4, T)

def store_tile_rows(a, O, srd_, row0_lines, s_row0, stride_shift):
    L, T, t = V.LANE, V.T, S.T
    a(f's_lshr_b32 s{t}, s{S.WAVE}, 1'); a(f's_lshl_b32 s{t}, s{t}, 5')
    a(f'v_and_b32 v{T}, 31, v{L}'); a(f'v_add_u32 v{T}, s{t}, v{T}'); a(f'v_mul_u32_u24 v{T}, 144, v{T}')
    a(f's_and_b32 s{t}, s{S.WAVE}, 1'); a(f's_lshl_b32 s{t}, s{t}, 6'); a(f's_add_u32 s{t}, s{t}, {LDS_EX}')
    a(f'v_lshrrev_b32 v{T+1}, 5, v{L}'); a(f'v_lshl_add_u32 v{T}, v{T+1}, 4, v{T}'); a(f'v_add_u32 v{T}, s{t}, v{T}')
    a(f'ds_write_b128 v{T}, v[{O}:{O+3}]'); a(f'ds_write_b128 v{T}, v[{O+4}:{O+7}] offset:32')
    a(f'v_lshrrev_b32 v{T+1}, 3, v{L}'); a(f's_lshl_b32 s{t}, s{S.WAVE}, 4'); a(f'v_add_u32 v{T+1}, s{t}, v{T+1}')
    a(f'v_and_b32 v{T+2}, 7, v{L}'); a(f'v_lshlrev_b32 v{T+2}, 4, v{T+2}')
    a(f'v_mul_u32_u24 v{T+3}, 144, v{T+1}'); a(f'v_add_u32 v{T+3}, v{T+3}, v{T+2}'); a(f'v_add_u32 v{T+3}, {LDS_EX}, v{T+3}')
    for l in row0_lines: a(l)
    a(f'v_lshl_add_u32 v{T+1}, v{T+1}, {stride_shift}, v{T+2}'); a(f'v_add_u32 v{T+1}, s{s_row0}, v{T+1}')
    a.nobg('s_waitcnt lgkmcnt(0)')
    a.nobg('s_barrier')
    a(f'ds_read_b128 v[{O}:{O+3}], v{T+3}'); a(f'ds_read_b128 v[{O+4}:{O+7}], v{T+3} offset:{8*144}')
    a(f's_mov_b32 s{t}, {8 << stride_shift}')
    a.nobg('s_waitcnt lgkmcnt(0)')
    a(f'buffer_store_dwordx4 v[{O}:{O+3}], v{T+1}, s[{srd_}:{srd_+3}], 0 offen sc1')
    a(f'buffer_store_dwordx4 v[{O+4}:{O+7}], v{T+1}, s[{srd_}:{srd_+3}], s{t} offen sc1')

def w2_setup(a):
    t = S.T
    srd(a, S.B, S.W2, 0, 1792 * 4096)
    a(f's_lshl_b32 s{t+1}, s{S.ST}, 7')
    dma_offsets(a, V.Q0, V.Q1, 4096, t + 1)
    a(f's_mul_i32 s{S.SOB}, s{S.WAVE}, {16*4096}')
    a(f's_mul_i32 s{t}, s{S.ROT3}, {64*4096}'); a(f's_add_u32 s{S.SOB}, s{S.SOB}, s{t}')

def gemm1(a):
    L, T, t = V.LANE, V.T, S.T
    a('s_waitcnt vmcnt(0)')
    srd(a, S.A, S.WS, WS_H, 2048 * 1024)
    a(f's_lshl_b32 s{t+1}, s{S.DT}, 7')
    dma_offsets(a, V.P0, V.P1, 1024, t + 1)
    a(f's_mul_i32 s{S.SOA}, s{S.WAVE}, {16*1024}')
    a(f's_lshl_b32 s{t}, s{S.ROT1}, 16'); a(f's_add_u32 s{S.SOA}, s{S.SOA}, s{t}')
    V_B1 = 60
    a(f's_lshr_b32 s{t}, s{S.WAVE}, 1'); a(f's_lshl_b32 s{t}, s{t}, 5'); a(f's_lshl_b32 s{t+1}, s{S.FT}, 6'); a(f's_add_u32 s{t}, s{t}, s{t+1}')
    a(f'v_and_b32 v{T}, 31, v{L}'); a(f'v_add_u32 v{T}, s{t}, v{T}'); a(f'v_lshlrev_b32 v{T}, 1, v{T}')
    a(f'global_load_ushort v{V_B1}, v{T}, s[{S.B1}:{S.B1+1}]')
    pf = []
    if CFG.get('pf2', 1):
        srd(a, S.C, S.W2, 0, 1792 * 4096)
        a(f's_lshl_b32 s{t}, s{S.J}, 2'); a(f's_add_u32 s{t}, s{t}, s{S.WAVE}'); a(f's_lshl_b32 s{t}, s{t}, 4')
        a(f'v_lshrrev_b32 v{T}, 3, v{L}'); a(f'v_add_u32 v{T}, s{t}, v{T}'); a(f'v_lshlrev_b32 v{T}, 12, v{T}')
        a(f'v_and_b32 v{T+1}, 7, v{L}'); a(f'v_lshl_add_u32 v{T}, v{T+1}, 7, v{T}')
        a(f's_lshr_b32 s{t}, s{S.XCD}, 1'); a(f's_lshl_b32 s{t}, s{t}, 10'); a(f'v_add_u32 v61, s{t}, v{T}')
        a(f'v_add_u32 v62, {8*4096}, v61')
        pf = [[f'buffer_load_dword v63, v61, s[{S.C}:{S.C+3}], 0 offen {CFG["wmod"]}'],
              [f'buffer_load_dword v63, v62, s[{S.C}:{S.C+3}], 0 offen {CFG["wmod"]}']]
    steps = [dict(items=[(0, V.P0, V.P1, S.A, S.SOA, 1024, CFG['dmod'], (32*65536, 32*65536))], q=u) for u in range(32)]
    stream_loop(a, steps, CFG.get('depth1', 12), bg_extra=pf)
    stamp(a, 7, T)
    w2_setup(a)
    pre2 = Preload(28, S.B, 4096, CFG['wmod2'], range(6, NRING), wrap=(7340032, 7340032))
    reduce_partials(a)
    stamp(a, 12, T)
    VD = V.VD
    a(f'v_lshlrev_b32 v{V_B1}, 16, v{V_B1}')
    c0 = -2.0 * 0.7978845608028654 * 1.4426950408889634
    a(f's_mov_b32 s{t+2}, {fb(c0)}'); a(f's_mov_b32 s{t+3}, {fb(c0 * 0.044715)}')
    a(f'v_mov_b32 v61, s{t+2}')
    for q in range(8):
        d0, d1 = VD + 2*q, VD + 2*q + 1
        a(f'v_cvt_pk_bf16_f32 v{T}, v{d0}, v{d1}')
        a(f'v_lshlrev_b32 v{d0}, 16, v{T}'); a(f'v_and_b32 v{d1}, 0xffff0000, v{T}')
        a(f'v_add_f32 v{d0}, v{d0}, v{V_B1}'); a(f'v_add_f32 v{d1}, v{d1}, v{V_B1}')
        a(f'v_cvt_pk_bf16_f32 v{T}, v{d0}, v{d1}')
        a(f'v_lshlrev_b32 v{d0}, 16, v{T}'); a(f'v_and_b32 v{d1}, 0xffff0000, v{T}')
        a(f'v_mul_f32 v{T+1}, v{d0}, v{d0}'); a(f'v_mul_f32 v{T+2}, v{d1}, v{d1}')
        a(f'v_fma_f32 v{T+1}, v{T+1}, s{t+3}, v61'); a(f'v_fma_f32 v{T+2}, v{T+2}, s{t+3}, v61')
        a(f'v_mul_f32 v{T+1}, v{T+1}, v{d0}'); a(f'v_mul_f32 v{T+2}, v{T+2}, v{d1}')
        a(f'v_exp_f32 v{T+1}, v{T+1}'); a(f'v_exp_f32 v{T+2}, v{T+2}')
        a('s_nop 0')
        a(f'v_add_f32 v{T+1}, 1.0, v{T+1}'); a(f'v_add_f32 v{T+2}, 1.0, v{T+2}')
        a(f'v_rcp_f32 v{T+1}, v{T+1}'); a(f'v_rcp_f32 v{T+2}, v{T+2}')
        a('s_nop 0')
        a(f'v_mul_f32 v{d0}, v{d0}, v{T+1}'); a(f'v_mul_f32 v{d1}, v{d1}, v{T+2}')
    a('s_nop 1')
    for p in range(2):
        for j in range(4):
            a(f'v_permlane32_swap_b32 v{VD+8*p+j}, v{VD+8*p+4+j}')
    O = 52
    for p in range(2):
        for jj in range(4):
            a(f'v_cvt_pk_bf16_f32 v{O+4*p+jj}, v{VD+8*p+2*jj}, v{VD+8*p+2*jj+1}')
    a.bg_flush()
    srd(a, S.D, S.WS, WS_GT, 1792 * 1024)
    store_tile_rows(a, O, S.D, [f's_lshl_b32 s{t+4}, s{S.FT}, 16', f's_lshl_b32 s{t+5}, s{S.DT}, 7', f's_add_u32 s{t+4}, s{t+4}, s{t+5}'], t + 4, 10)
    hst = a.mark()
    stamp(a, 13, T)
    pre2.free += list(range(6))
    pre2.issue(a, CFG['mid'])
    a.wait_vm(hst)
    a('s_barrier')
    publish(a, [f's_lshl_b32 s{t}, s{S.DT}, 5', f's_add_u32 s{t}, s{t}, s{S.FT}', f's_lshl_b32 s{t}, s{t}, 7', f's_add_u32 s{t}, s{t}, {WS_F2}'], t, T)
    stamp(a, 8, T)
    pre2.drain(a)
    stamp(a, 14, T)

class F:
    L = 1; RZ0 = 3; RW = 5; VY = 6; T = 8
    C, S, NS = 24, 32, 40
    TC, TS = 48, 64
    UC, US = 80, 96
    AR = (112, 176); AI = (120, 184); DR = (128, 192); DI = (144, 208); W = (160, 224)
    BE = 240

def stage_mfmas(p, form, conj):
    s_for_re = F.NS if conj else F.S
    s_for_im = F.S if conj else F.NS
    DR, DI, AR, AI = F.DR[p], F.DI[p], F.AR[p], F.AI[p]
    seq = []
    for b in range(2): seq += [(DR, AR + 4*b, F.C + 4*b), (DI, AI + 4*b, F.C + 4*b)]
    for b in range(2): seq += [(DR, AI + 4*b, s_for_re + 4*b), (DI, AR + 4*b, s_for_im + 4*b)]
    seen = set(); out = []
    for (d, x, c) in seq:
        cc = f'v[{d}:{d+15}]' if d in seen else '0'
        seen.add(d)
        if form == 'A': out.append(f'v_mfma_f32_32x32x16_bf16 v[{d}:{d+15}], v[{x}:{x+3}], v[{c}:{c+3}], {cc}')
        else:           out.append(f'v_mfma_f32_32x32x16_bf16 v[{d}:{d+15}], v[{c}:{c+3}], v[{x}:{x+3}], {cc}')
    return out

PP = lambda x: f'v[{x}:{x+1}]'
def pack4(p, i):
    T = F.T
    return [f'v_cvt_pk_bf16_f32 v{F.AR[p]+2*i}, v{T}, v{T+1}', f'v_cvt_pk_bf16_f32 v{F.AR[p]+2*i+1}, v{T+2}, v{T+3}',
            f'v_cvt_pk_bf16_f32 v{F.AI[p]+2*i}, v{T+4}, v{T+5}', f'v_cvt_pk_bf16_f32 v{F.AI[p]+2*i+1}, v{T+6}, v{T+7}']

def twiddle_valu(p, conj):
    T = F.T; out = []
    if not CFG.get('fftpk'):
        for i in range(4):
            for j in range(4):
                n = 4*i + j
                r_, i_, c, s_ = F.DR[p] + n, F.DI[p] + n, F.TC + n, F.TS + n
                out += [f'v_mul_f32 v{T+j}, v{r_}, v{c}', f'v_mul_f32 v{T+4+j}, v{i_}, v{c}']
                if conj: out += [f'v_fma_f32 v{T+j}, -v{i_}, v{s_}, v{T+j}', f'v_fmac_f32 v{T+4+j}, v{r_}, v{s_}']
                else:    out += [f'v_fmac_f32 v{T+j}, v{i_}, v{s_}', f'v_fma_f32 v{T+4+j}, -v{r_}, v{s_}, v{T+4+j}']
            out += pack4(p, i)
        return out
    for i in range(4):
        for j in range(0, 4, 2):
            n = 4*i + j
            r_, i_, c, s_ = F.DR[p] + n, F.DI[p] + n, F.TC + n, F.TS + n
            out += [f'v_pk_mul_f32 {PP(T+j)}, {PP(r_)}, {PP(c)}', f'v_pk_mul_f32 {PP(T+4+j)}, {PP(i_)}, {PP(c)}']
            if conj:
                out += [f'v_pk_fma_f32 {PP(T+j)}, {PP(i_)}, {PP(s_)}, {PP(T+j)} neg_lo:[1,0,0] neg_hi:[1,0,0]',
                        f'v_pk_fma_f32 {PP(T+4+j)}, {PP(r_)}, {PP(s_)}, {PP(T+4+j)}']
            else:
                out += [f'v_pk_fma_f32 {PP(T+j)}, {PP(i_)}, {PP(s_)}, {PP(T+j)}',
                        f'v_pk_fma_f32 {PP(T+4+j)}, {PP(r_)}, {PP(s_)}, {PP(T+4+j)} neg_lo:[1,0,0] neg_hi:[1,0,0]']
        out += pack4(p, i)
    return out

def filter_valu(p):
    T = F.T; out = []
    if not CFG.get('fftpk'):
        for i in range(4):
            for j in range(4):
                n = 4*i + j
                r_, i_, w = F.DR[p] + n, F.DI[p] + n, F.W[p] + n
                t0, t1 = T + 8 + 2*(j % 2), T + 9 + 2*(j % 2)
                out += [f'v_lshlrev_b32 v{t0}, 16, v{w}', f'v_and_b32 v{t1}, 0xffff0000, v{w}',
                        f'v_mul_f32 v{T+j}, v{r_}, v{t0}', f'v_mul_f32 v{T+4+j}, v{i_}, v{t0}',
                        f'v_fma_f32 v{T+j}, -v{i_}, v{t1}, v{T+j}', f'v_fmac_f32 v{T+4+j}, v{r_}, v{t1}']
            out += pack4(p, i)
        return out
    for i in range(4):
        for j in range(0, 4, 2):
            n = 4*i + j
            r_, i_, w = F.DR[p] + n, F.DI[p] + n, F.W[p] + n
            out += [f'v_lshlrev_b32 v{T+8}, 16, v{w}', f'v_lshlrev_b32 v{T+9}, 16, v{w+1}',
                    f'v_and_b32 v{T+10}, 0xffff0000, v{w}', f'v_and_b32 v{T+11}, 0xffff0000, v{w+1}',
                    f'v_pk_mul_f32 {PP(T+j)}, {PP(r_)}, {PP(T+8)}', f'v_pk_mul_f32 {PP(T+4+j)}, {PP(i_)}, {PP(T+8)}',
                    f'v_pk_fma_f32 {PP(T+j)}, {PP(i_)}, {PP(T+10)}, {PP(T+j)} neg_lo:[1,0,0] neg_hi:[1,0,0]',
                    f'v_pk_fma_f32 {PP(T+4+j)}, {PP(r_)}, {PP(T+10)}, {PP(T+4+j)}']
        out += pack4(p, i)
    return out

def merge(a, valu, mfmas):
    n = len(valu)
    span = max(n - 14, 8)
    pos = [2 + (k * (span - 2)) // len(mfmas) for k in range(len(mfmas))]
    k = 0
    for i, v in enumerate(valu):
        while k < len(mfmas) and pos[k] <= i:
            a(mfmas[k]); k += 1
        a(v)
    while k < len(mfmas): a(mfmas[k]); k += 1
    tail = n - pos[-1]
    if tail < 12:
        need = 12 - tail
        while need > 0:
            a(f's_nop {min(need, 8) - 1}'); need -= min(need, 8)

def filter_special(a, p, SAL):
    T = F.T; L = F.L
    DR, DI, W, BE = F.DR[p], F.DI[p], F.W[p], F.BE
    a(f'v_lshlrev_b32 v{T+10}, 4, v{L}'); a(f'v_add_u32 v{T+10}, {p*4096}, v{T+10}')
    for i in range(4):
        a.lines.append(f'global_load_dwordx4 v[{W+4*i}:{W+4*i+3}], v{T+10}, s[{SAL}:{SAL+1}] offset:{i*1024} sc1')
    a(f'v_add_u32 v{T+10}, {WS_BE-WS_AL}, v{T+10}')
    for i in range(4):
        a.lines.append(f'global_load_dwordx4 v[{BE+4*i}:{BE+4*i+3}], v{T+10}, s[{SAL}:{SAL+1}] offset:{i*1024} sc1')
    a(f'v_and_b32 v{T+14}, 31, v{L}'); a(f'v_lshrrev_b32 v{T+15}, 5, v{L}')
    a(f'v_lshl_add_u32 v{T+14}, v{T+15}, 7, v{T+14}')
    a(f'v_lshlrev_b32 v{T+15}, 3, v{T+14}'); a(f'v_add_u32 v{T+15}, {LDS_X}, v{T+15}')
    for i in range(4):
        for j in range(4):
            a(f'ds_write2_b32 v{T+15}, v{DR+4*i+j}, v{DI+4*i+j} offset0:{64*j} offset1:{64*j+1}')
        if i < 3: a(f'v_add_u32 v{T+15}, 2048, v{T+15}')
    top = 1024 if p == 0 else 1023
    if p == 0:
        a('s_mov_b64 exec, 1')
        a(f'v_mov_b32 v{T+15}, {LDS_X + 1024*8}')
        a(f'ds_write2_b32 v{T+15}, v{DR}, v{DI} offset0:0 offset1:1')
        a('s_mov_b64 exec, -1')
    a(f'v_sub_u32 v{T+15}, {top - 96}, v{T+14}')
    a(f'v_lshlrev_b32 v{T+15}, 3, v{T+15}'); a(f'v_add_u32 v{T+15}, {LDS_X}, v{T+15}')
    a('s_waitcnt vmcnt(0) lgkmcnt(0)')
    for i in range(4):
        for jp in range(0, 4, 2):
            for e in range(2):
                a(f'ds_read_b64 v[{T+10+2*e}:{T+11+2*e}], v{T+15} offset:{(3-jp-e)*256}')
            a('s_waitcnt lgkmcnt(0)')
            for e in range(2):
                j = jp + e; n = 4*i + j
                r_, i_, w, be, mr, mi = DR + n, DI + n, W + n, BE + n, T + 10 + 2*e, T + 11 + 2*e
                a(f'v_lshlrev_b32 v{T+8}, 16, v{w}'); a(f'v_and_b32 v{T+9}, 0xffff0000, v{w}')
                a(f'v_mul_f32 v{T+j}, v{r_}, v{T+8}'); a(f'v_mul_f32 v{T+4+j}, v{i_}, v{T+8}')
                a(f'v_fma_f32 v{T+j}, -v{i_}, v{T+9}, v{T+j}'); a(f'v_fmac_f32 v{T+4+j}, v{r_}, v{T+9}')
                a(f'v_lshlrev_b32 v{T+8}, 16, v{be}'); a(f'v_and_b32 v{T+9}, 0xffff0000, v{be}')
                a(f'v_fmac_f32 v{T+j}, v{mr}, v{T+8}'); a(f'v_fmac_f32 v{T+j}, v{mi}, v{T+9}')
                a(f'v_fmac_f32 v{T+4+j}, v{mr}, v{T+9}'); a(f'v_fma_f32 v{T+4+j}, -v{mi}, v{T+8}, v{T+4+j}')
        for l in pack4(p, i): a(l)
        if i < 3: a(f'v_subrev_u32 v{T+15}, 2048, v{T+15}')
    a('s_nop 1')

def fft_consts(a):
    T = F.T
    lane_floats(a, T, T + 1, T + 2)
    gen_f32(a, T, T + 1, F.C, F.S, F.NS, T + 2)
    gen_twiddle(a, T, T + 1, F.TC, F.TS, [8*i + j for i in range(4) for j in range(4)], 1024, T + 2)
    gen_t2048(a, T, T + 1, F.UC, F.US, T + 2)

def fft_role(a):
    L, T, t = F.L, F.T, S.T
    SZ, SW, SY = S.A, S.B, S.C
    KAP, PASS, SAL = t + 8, t + 9, t + 10
    a('s_waitcnt vmcnt(0)')
    srd(a, SZ, S.WS, WS_ZB, 2 * 32 * 256 * 128)
    srd(a, SW, S.WS, WS_WP, 32 * 512 * 128)
    srd(a, SY, S.WS, WS_YT, 512 * 4096)
    a(f'v_lshrrev_b32 v{T}, 3, v{L}'); a(f'v_and_b32 v{T+1}, 7, v{L}')
    a(f'v_xor_b32 v{T+2}, v{T+1}, v{T}')
    a(f'v_lshrrev_b32 v{T+3}, 1, v{T}'); a(f'v_xor_b32 v{T+3}, v{T+1}, v{T+3}')
    a(f'v_lshlrev_b32 v{T}, 7, v{T}')
    a(f's_lshr_b32 s{t}, s{S.WAVE}, 1'); a(f's_lshl_b32 s{t}, s{t}, 5'); a(f's_add_u32 s{t}, s{t}, s{S.GRP}'); a(f's_lshl_b32 s{t}, s{t}, 15')
    a(f's_and_b32 s{t+1}, s{S.WAVE}, 1'); a(f's_lshl_b32 s{t+1}, s{t+1}, 14'); a(f's_add_u32 s{t}, s{t}, s{t+1}')
    a(f's_lshl_b32 s{t+2}, s{S.WAVE}, 14')
    for n in range(16):
        a(f'v_xor_b32 v{T+4}, {n & 7}, v{T+2}'); a(f'v_lshl_add_u32 v{T+4}, v{T+4}, 4, v{T}')
        a(f's_add_u32 m0, s{t+2}, {LDS_Z + n*1024}'); a(f's_add_u32 s{t+3}, s{t}, {n*1024}')
        a(f'buffer_load_dwordx4 v{T+4}, s[{SZ}:{SZ+3}], s{t+3} offen {CFG["dmod"]} lds')
    hz = a.mark()
    a(f's_lshl_b32 s{t}, s{S.GRP}, 16'); a(f's_add_u32 s{t}, s{t}, s{t+2}')
    for n in range(16):
        a(f'v_xor_b32 v{T+4}, {4*(n&1)}, v{T+3}'); a(f'v_lshl_add_u32 v{T+4}, v{T+4}, 4, v{T}')
        a(f's_add_u32 m0, s{t+2}, {LDS_W + n*1024}'); a(f's_add_u32 s{t+3}, s{t}, {n*1024}')
        a(f'buffer_load_dwordx4 v{T+4}, s[{SW}:{SW+3}], s{t+3} offen {CFG["dmod"]} lds')
    a(f'v_lshrrev_b32 v{T}, 5, v{L}'); a(f'v_bfe_u32 v{T+1}, v{L}, 2, 2'); a(f'v_lshl_add_u32 v{T}, v{T}, 2, v{T+1}')
    a(f'v_bfe_u32 v{T+1}, v{L}, 4, 1'); a(f'v_and_b32 v{T+2}, 3, v{L}'); a(f'v_lshl_add_u32 v{T+1}, v{T+1}, 2, v{T+2}')
    a(f'v_xor_b32 v{T+2}, v{T}, v{T+1}'); a(f'v_xor_b32 v{T+2}, s{S.WAVE}, v{T+2}'); a(f'v_lshlrev_b32 v{T+2}, 4, v{T+2}')
    a(f'v_lshl_add_u32 v{T}, v{T}, 3, v{T+1}'); a(f'v_lshl_add_u32 v{F.RZ0}, v{T}, 7, v{T+2}')
    a(f'v_bfe_u32 v{T}, v{L}, 1, 3'); a(f'v_xor_b32 v{T}, s{S.WAVE}, v{T}'); a(f'v_lshlrev_b32 v{T}, 4, v{T}')
    a(f'v_lshl_add_u32 v{F.RW}, v{L}, 7, v{T}'); a(f'v_add_u32 v{F.RW}, {LDS_W}, v{F.RW}')
    a(f's_lshl_b32 s{KAP}, s{S.GRP}, 3'); a(f's_add_u32 s{KAP}, s{KAP}, s{S.WAVE}')
    a(f's_lshl_b32 s{t}, s{KAP}, 13')
    a(f'v_and_b32 v{T}, 15, v{L}'); a(f'v_lshlrev_b32 v{T}, 6, v{T}')
    a(f'v_bfe_u32 v{T+1}, v{L}, 4, 1'); a(f'v_lshl_add_u32 v{T}, v{T+1}, 5, v{T}')
    a(f'v_lshrrev_b32 v{T+1}, 5, v{L}'); a(f'v_lshl_add_u32 v{T}, v{T+1}, 4, v{T}')
    a(f'v_add_u32 v{F.VY}, s{t}, v{T}')
    a(f's_add_u32 s{SAL}, s{S.WS}, {WS_AL}'); a(f's_addc_u32 s{SAL+1}, s{S.WS+1}, 0')
    a(f's_mov_b32 s{PASS}, 0')
    a.wait_vm(hz)
    a('s_barrier')
    stamp(a, 7, T)
    col = a.label('fftcol')
    a(f'{col}:')
    stamp(a, 12, T)
    for p in range(2):
        for c in range(2):
            for b in range(2):
                for q in range(2):
                    r = (F.AI[p] if c else F.AR[p]) + 4*b + 2*q
                    a(f'ds_read_b64_tr_b16 v[{r}:{r+1}], v{F.RZ0} offset:{p*32768 + (16*b+8*q)*8*128 + 8*c}')
        if p == 0: pass
    a('s_waitcnt lgkmcnt(8)')
    for m in stage_mfmas(0, 'A', False): a(m)
    wok = a.label('wok')
    a(f's_cmp_lg_u32 s{PASS}, 0'); a(f's_cbranch_scc1 {wok}')
    a('s_waitcnt vmcnt(0)'); a('s_barrier')
    a(f'{wok}:')
    a('s_waitcnt lgkmcnt(0)')
    for p in range(2):
        for i in range(4):
            a(f'ds_read_b128 v[{F.W[p]+4*i}:{F.W[p]+4*i+3}], v{F.RW} offset:{p*32768 + i*8192}')
    a('s_nop 3')
    merge(a, twiddle_valu(0, False), stage_mfmas(1, 'A', False))
    merge(a, twiddle_valu(1, False), stage_mfmas(0, 'B', False))
    a('s_waitcnt lgkmcnt(0)')
    sp, jn = a.label('spec'), a.label('join')
    a(f's_cmp_eq_u32 s{KAP}, 0'); a(f's_cbranch_scc1 {sp}')
    merge(a, filter_valu(0), stage_mfmas(1, 'B', False))
    merge(a, filter_valu(1), stage_mfmas(0, 'A', True))
    a(f's_branch {jn}')
    a(f'{sp}:')
    for m in stage_mfmas(1, 'B', False): a(m)
    filter_special(a, 0, SAL)
    for m in stage_mfmas(0, 'A', True): a(m)
    filter_special(a, 1, SAL)
    a('s_nop 7'); a('s_nop 3')
    a(f'{jn}:')
    merge(a, twiddle_valu(0, True), stage_mfmas(1, 'A', True))
    merge(a, twiddle_valu(1, True), stage_mfmas(0, 'A', True))
    a('s_nop 1')
    for m in stage_mfmas(1, 'A', True): a(m)
    a('s_nop 7'); a('s_nop 3')
    ER, EI, DR, DI = F.DR[0], F.DI[0], F.DR[1], F.DI[1]
    for n in range(0, 16, 2):
        r_, i_, c, s_ = DR + n, DI + n, F.UC + n, F.US + n
        a(f'v_pk_mul_f32 {PP(T)}, {PP(r_)}, {PP(c)}'); a(f'v_pk_mul_f32 {PP(T+2)}, {PP(i_)}, {PP(c)}')
        a(f'v_pk_fma_f32 {PP(T)}, {PP(i_)}, {PP(s_)}, {PP(T)} neg_lo:[1,0,0] neg_hi:[1,0,0]')
        a(f'v_pk_fma_f32 {PP(T+2)}, {PP(r_)}, {PP(s_)}, {PP(T+2)}')
        a(f'v_pk_add_f32 {PP(r_)}, {PP(ER+n)}, {PP(T)} neg_lo:[0,1] neg_hi:[0,1]')
        a(f'v_pk_add_f32 {PP(i_)}, {PP(EI+n)}, {PP(T+2)} neg_lo:[0,1] neg_hi:[0,1]')
        a(f'v_pk_add_f32 {PP(ER+n)}, {PP(ER+n)}, {PP(T)}'); a(f'v_pk_add_f32 {PP(EI+n)}, {PP(EI+n)}, {PP(T+2)}')
    outs = [(ER, 0, 0), (DR, 0, 2048), (EI, 1, 0), (DI, 1, 2048)]
    a(f's_movk_i32 s{t}, 0x1000')
    for n_, (src, c, hi) in enumerate(outs):
        a('s_nop 1')
        for pp in range(2):
            for j in range(4): a(f'v_permlane32_swap_b32 v{src+8*pp+j}, v{src+8*pp+4+j}')
        o = (F.AR[0], F.AI[0], F.AR[1], F.AI[1])[n_]
        for pp in range(2):
            for jj in range(4): a(f'v_cvt_pk_bf16_f32 v{o+4*pp+jj}, v{src+8*pp+2*jj}, v{src+8*pp+2*jj+1}')
        a('s_nop 1')
        for k in range(4): a(f'v_permlane16_swap_b32 v{o+k}, v{o+4+k}')
        so = f's{t}' if c else '0'
        a.lines.append(f'buffer_store_dwordx4 v[{o}:{o+3}], v{F.VY}, s[{SY}:{SY+3}], {so} offen offset:{hi} sc1')
        a.lines.append(f'buffer_store_dwordx4 v[{o+4}:{o+7}], v{F.VY}, s[{SY}:{SY+3}], {so} offen offset:{hi + 1024} sc1')
    a(f'v_xor_b32 v{F.RZ0}, 64, v{F.RZ0}'); a(f'v_xor_b32 v{F.RW}, 64, v{F.RW}')
    a(f'v_add_u32 v{F.VY}, {4*8192}, v{F.VY}'); a(f's_add_u32 s{KAP}, s{KAP}, 4')
    a(f's_add_u32 s{PASS}, s{PASS}, 1'); a(f's_cmp_lt_u32 s{PASS}, 2'); a(f's_cbranch_scc1 {col}')
    stamp(a, 13, T)
    a('s_waitcnt vmcnt(0)')
    a('s_barrier')
    publish(a, [f's_lshl_b32 s{t}, s{S.GRP}, 7', f's_add_u32 s{t}, s{t}, {WS_F3}'], t, T)
    stamp(a, 8, T)

def gemm2(a):
    L, T, t = V.LANE, V.T, S.T
    a(f'v_and_b32 v{L}, 63, v0')
    read_addresses(a)
    srd(a, S.A, S.WS, WS_GT, 2304 * 1024)
    a(f's_lshl_b32 s{t+1}, s{S.DT}, 7')
    dma_offsets(a, V.P0, V.P1, 1024, t + 1)
    a(f's_mul_i32 s{S.SOA}, s{S.WAVE}, {16*1024}')
    a(f's_lshl_b32 s{t}, s{S.ROT4}, 16'); a(f's_add_u32 s{S.SOA2}, s{S.SOA}, s{t}'); a(f's_add_u32 s{S.SOA2}, s{S.SOA2}, {28*65536}')
    a(f's_lshl_b32 s{t}, s{S.ROT3}, 16'); a(f's_add_u32 s{S.SOA}, s{S.SOA}, s{t}')
    srd(a, S.C, S.WS, WS_YT, 512 * 4096)
    a(f's_lshl_b32 s{t+1}, s{S.ST}, 7')
    dma_offsets(a, V.Q0, V.Q1, 4096, t + 1)
    a(f's_mul_i32 s{S.SOB}, s{S.WAVE}, {16*4096}')
    a(f's_lshl_b32 s{t}, s{S.ROT4}, 18'); a(f's_add_u32 s{S.SOB}, s{S.SOB}, s{t}')
    V_XO, V_X, V_B2 = 50, 52, 60
    a(f's_lshr_b32 s{t}, s{S.WAVE}, 1'); a(f's_lshl_b32 s{t}, s{t}, 5'); a(f's_lshl_b32 s{t+1}, s{S.ST}, 6'); a(f's_add_u32 s{t}, s{t}, s{t+1}')
    a(f'v_and_b32 v{T}, 31, v{L}'); a(f'v_add_u32 v{T}, s{t}, v{T}'); a(f'v_lshlrev_b32 v{T+1}, 1, v{T}')
    a('s_waitcnt vmcnt(0)')
    a(f'global_load_ushort v{V_B2}, v{T+1}, s[{S.B2}:{S.B2+1}]')
    a(f's_and_b32 s{t}, s{S.WAVE}, 1'); a(f's_lshl_b32 s{t}, s{t}, 6'); a(f's_lshl_b32 s{t+1}, s{S.DT}, 7'); a(f's_add_u32 s{t}, s{t}, s{t+1}')
    a(f'v_lshrrev_b32 v{T+1}, 5, v{L}'); a(f'v_lshlrev_b32 v{T+1}, 4, v{T+1}')
    a(f'v_lshl_add_u32 v{V_XO}, v{T}, 10, v{T+1}'); a(f'v_add_u32 v{V_XO}, s{t}, v{V_XO}')
    a(f'global_load_dwordx4 v[{V_X}:{V_X+3}], v{V_XO}, s[{S.X}:{S.X+1}]')
    a(f'global_load_dwordx4 v[{V_X+4}:{V_X+7}], v{V_XO}, s[{S.X}:{S.X+1}] offset:32')
    VF, VFA = 62, 63
    a(f'v_min_u32 v{VFA}, 31, v{L}'); a(f'v_lshlrev_b32 v{VFA}, 7, v{VFA}'); a(f'v_add_u32 v{VFA}, {WS_F3}, v{VFA}')
    groups = [([f's_lshl_b32 s{t}, s{S.DT}, 12', f's_add_u32 s{t}, s{t}, {WS_F2}'], 28)]
    if not CFG['split3']: groups.append(([f's_mov_b32 s{t}, {WS_F3}'], 32))
    poll(a, groups, 128)
    stamp(a, 9, T)
    hf = {}
    def sample(a):
        a(f'global_load_dword v{VF}, v{VFA}, s[{S.WS}:{S.WS+1}] sc1'); hf['h'] = a.mark()
    def check(a):
        ok, lp = a.label('y_ok'), a.label('y_poll')
        a.wait_vm(hf['h'])
        a(f's_mov_b32 s{t+1}, 0')
        a(f'{lp}:')
        a(f'v_cmp_eq_u32 vcc, s{S.NONCE}, v{VF}')
        a('s_nop 4')
        a('s_cmp_eq_u64 vcc, -1'); a(f's_cbranch_scc1 {ok}')
        a.lines.append(f'global_load_dword v{VF}, v{VFA}, s[{S.WS}:{S.WS+1}] sc1')
        a('s_waitcnt vmcnt(0)')
        a(f's_add_u32 s{t+1}, s{t+1}, 1'); a(f's_cmp_lt_u32 s{t+1}, {CFG["spin"]}'); a(f's_cbranch_scc1 {lp}')
        a(f'{ok}:')
    steps = []
    for u in range(36):
        if u < 28: it = [(0, V.P0, V.P1, S.A, S.SOA, 1024, CFG['dmod'], (28*65536, 28*65536))]
        else: it = [(0, V.P0, V.P1, S.A, S.SOA2, 1024, CFG['dmod'], (36*65536, 8*65536)), (1, V.Q0, V.Q1, S.C, S.SOB, 4096, CFG['dmod'], (8*262144, 8*262144))]
        steps.append(dict(items=it, q=u if u < 28 else None))
    if CFG['split3']:
        steps[CFG['samp3']]['before_issue'] = sample
        steps[28]['before_issue'] = check
    stream_loop(a, steps, CFG.get('depth3', 12))
    stamp(a, 10, T)
    reduce_partials(a)
    VD = V.VD
    a(f'v_lshlrev_b32 v{V_B2}, 16, v{V_B2}')
    for i in range(16): a(f'v_add_f32 v{VD+i}, v{VD+i}, v{V_B2}')
    a('s_nop 1')
    for p in range(2):
        for j in range(4): a(f'v_permlane32_swap_b32 v{VD+8*p+j}, v{VD+8*p+4+j}')
    for p in range(2):
        for jj in range(4):
            xr = V_X + 4*p + jj
            d0 = VD + 8*p + 2*jj; d1 = d0 + 1
            a(f'v_lshlrev_b32 v{T}, 16, v{xr}'); a(f'v_and_b32 v{T+1}, 0xffff0000, v{xr}')
            a(f'v_add_f32 v{d0}, v{d0}, v{T}'); a(f'v_add_f32 v{d1}, v{d1}, v{T+1}')
            a(f'v_cvt_pk_bf16_f32 v{xr}, v{d0}, v{d1}')
    a(f'global_store_dwordx4 v{V_XO}, v[{V_X}:{V_X+3}], s[{S.OUT}:{S.OUT+1}]')
    a(f'global_store_dwordx4 v{V_XO}, v[{V_X+4}:{V_X+7}], s[{S.OUT}:{S.OUT+1}] offset:32')
    if CFG['stamps']:
        a('s_waitcnt vmcnt(0)')
        stamp(a, 11, T)

def mega(a, name):
    kernel_begin(a, name)
    end, fft, p3 = a.label('end'), a.label('fft'), a.label('p3')
    L, T, t = V.LANE, V.T, S.T
    a('s_cmp_ge_u32 s2, 256'); a(f's_cbranch_scc1 {end}')
    a('s_load_dwordx16 s[4:19], s[0:1], 0')
    a('s_load_dwordx4 s[20:23], s[0:1], 64')
    a('s_load_dwordx2 s[24:25], s[0:1], 80')
    a('v_lshrrev_b32 v1, 6, v0')
    a(f's_and_b32 s{S.XCD}, s2, 7'); a(f's_lshr_b32 s{S.J}, s2, 3')
    a(f'v_readfirstlane_b32 s{S.WAVE}, v1')
    a(f'v_and_b32 v{L}, 63, v0')
    a(f's_and_b32 s{t}, s{S.XCD}, 1'); a(f's_lshl_b32 s{t}, s{t}, 2'); a(f's_and_b32 s{t+1}, s{S.J}, 3'); a(f's_add_u32 s{S.DT}, s{t}, s{t+1}')
    a(f's_lshr_b32 s{t}, s{S.XCD}, 1'); a(f's_lshr_b32 s{t+2}, s{S.J}, 2')
    a(f's_lshl_b32 s{t+3}, s{t}, 3'); a(f's_add_u32 s{S.ST}, s{t+3}, s{t+2}')
    a(f's_mul_i32 s{t+3}, s{t}, 7'); a(f's_add_u32 s{S.FT}, s{t+3}, s{t+2}')
    a(f's_lshl_b32 s{t+3}, s{S.XCD}, 2'); a(f's_add_u32 s{S.GRP}, s{t+3}, s{t+1}')
    a(f's_mul_i32 s{S.RING}, s{S.WAVE}, {RINGB}')
    if CFG['rot']:
        a(f's_lshl_b32 s{t+4}, s{t+1}, 3'); a(f's_mul_i32 s{t+5}, s{t+2}, 5'); a(f's_add_u32 s{t+4}, s{t+4}, s{t+5}'); a(f's_and_b32 s{S.ROT1}, s{t+4}, 31')
        a(f's_mul_i32 s{t+4}, s{t+1}, 7'); a(f's_mul_i32 s{t+5}, s{t+2}, 7'); a(f's_lshr_b32 s{t+5}, s{t+5}, 1'); a(f's_add_u32 s{t+4}, s{t+4}, s{t+5}')
        a(f's_cmp_ge_u32 s{t+4}, 28'); a(f's_cselect_b32 s{t+5}, 28, 0'); a(f's_sub_u32 s{S.ROT3}, s{t+4}, s{t+5}')
        a(f's_lshl_b32 s{t+4}, s{t+1}, 1'); a(f's_add_u32 s{t+4}, s{t+4}, s{t+2}'); a(f's_and_b32 s{S.ROT4}, s{t+4}, 7')
    else:
        for r in (S.ROT1, S.ROT3, S.ROT4): a(f's_mov_b32 s{r}, 0')
    a('s_waitcnt lgkmcnt(0)')
    stamp(a, 0, T)
    if CFG.get('clk'):
        a('s_memtime s[80:81]'); a('s_memrealtime s[82:83]'); a('s_waitcnt lgkmcnt(0)')
    nn = a.label('nn')
    a(f's_or_b32 s{t}, s2, s{S.WAVE}'); a(f's_cmp_lg_u32 s{t}, 0'); a(f's_cbranch_scc1 {nn}')
    a(f's_memrealtime s[{t}:{t+1}]'); a('s_waitcnt lgkmcnt(0)'); a(f's_or_b32 s{t}, s{t}, 1')
    a(f'v_mov_b32 v{T}, s{t}'); a(f'v_mov_b32 v{T+1}, 0')
    a('s_mov_b64 exec, 1')
    a.lines.append(f'global_store_dword v{T+1}, v{T}, s[{S.DBG}:{S.DBG+1}] sc1')
    a('s_mov_b64 exec, -1')
    a(f'{nn}:')
    STR64 = t + 14
    read_addresses(a)
    a(f's_cmp_ge_u32 s{S.J}, 28')
    a(f's_cselect_b32 s{S.B}, s{S.W2}, s{S.W1}'); a(f's_cselect_b32 s{S.B+1}, s{S.W2+1}, s{S.W1+1}')
    a(f's_mov_b32 s{S.B+2}, {2048*3584}'); a(f's_mov_b32 s{S.B+3}, 0x20000')
    a(f's_cselect_b32 s{t+1}, s{S.ST}, s{S.FT}'); a(f's_movk_i32 s{t+2}, 3584'); a(f's_cselect_b32 s{t+2}, 4096, s{t+2}')
    a(f's_lshl_b32 s{t+1}, s{t+1}, 7'); a(f's_mov_b32 s{PF_COL}, s{t+1}')
    a(f's_lshl_b32 s{STR64}, s{t+2}, 6')
    a(f'v_lshrrev_b32 v{T}, 3, v{L}'); a(f'v_and_b32 v{T+1}, 7, v{L}'); a(f'v_lshlrev_b32 v{T+2}, 1, v{T}'); a(f'v_and_b32 v{T+2}, 4, v{T+2}')
    a(f'v_xor_b32 v{T+1}, v{T+1}, v{T+2}'); a(f'v_lshlrev_b32 v{T+1}, 4, v{T+1}')
    a(f'v_mad_u32_u24 v{V.Q0}, v{T}, s{t+2}, v{T+1}'); a(f'v_add_u32 v{V.Q0}, s{t+1}, v{V.Q0}')
    a(f's_lshl_b32 s{t+3}, s{t+2}, 3'); a(f's_sub_u32 s{t+3}, s{t+3}, 1024'); a(f'v_add_u32 v{V.Q1}, s{t+3}, v{V.Q0}')
    a(f's_mul_i32 s{S.SOB}, s{S.WAVE}, s{t+2}'); a(f's_lshl_b32 s{S.SOB}, s{S.SOB}, 4')
    a(f's_cmp_ge_u32 s{S.J}, 28'); a(f's_cselect_b32 s{t+4}, s{S.ROT3}, s{S.ROT1}')
    a(f's_mul_i32 s{t+4}, s{t+4}, s{STR64}'); a(f's_add_u32 s{S.SOB}, s{S.SOB}, s{t+4}')
    pre = Preload(32, PRE_SRD, f's{STR64}', CFG['wmod'], range(NRING), wrap=(7340032, 7340032))
    for j in range(4): a(f's_mov_b32 s{PRE_SRD+j}, s{S.B+j}')
    phase1(a, pre)
    pre.drain(a)
    nc = a.label('noc')
    a(f's_cmp_lt_u32 s{S.J}, 28'); a(f's_cbranch_scc1 {nc}')
    fft_consts(a)
    a(f'{nc}:')
    stamp(a, 5, 244)
    poll(a, [([f's_mov_b32 s{t}, {WS_F1}'], 256)], 128)
    stamp(a, 6, 244)
    a(f's_cmp_ge_u32 s{S.J}, 28'); a(f's_cbranch_scc1 {fft}')
    gemm1(a)
    a(f's_branch {p3}')
    a(f'{fft}:')
    fft_role(a)
    a(f'{p3}:')
    gemm2(a)
    if CFG.get('delay'):
        lp = a.label('dly')
        a('s_memtime s[88:89]'); a('s_waitcnt lgkmcnt(0)')
        a(f'{lp}:')
        a('s_memtime s[90:91]'); a('s_waitcnt lgkmcnt(0)'); a('s_sub_u32 s90, s90, s88')
        a(f's_cmp_lt_u32 s90, {CFG["delay"]}'); a(f's_cbranch_scc1 {lp}')
    if CFG.get('clk'):
        sk = a.label('clk')
        a('s_waitcnt vmcnt(0)')
        a('s_memtime s[84:85]'); a('s_memrealtime s[86:87]'); a('s_waitcnt lgkmcnt(0)')
        a('s_sub_u32 s84, s84, s80'); a('s_sub_u32 s86, s86, s82')
        a(f's_and_b32 s{t}, s2, 63'); a(f's_or_b32 s{t}, s{t}, s{S.WAVE}'); a(f's_cmp_lg_u32 s{t}, 0'); a(f's_cbranch_scc1 {sk}')
        a('s_mov_b64 exec, 1')
        a('v_mov_b32 v2, s84'); a('v_mov_b32 v3, s86'); a('s_lshr_b32 s84, s2, 6'); a('s_lshl_b32 s84, s84, 3'); a('s_add_u32 s84, s84, 8'); a('v_mov_b32 v4, s84')
        a(f'global_store_dwordx2 v4, v[2:3], s[{S.DBG}:{S.DBG+1}]')
        a(f'{sk}:')
    a(f'{end}:')
    a('s_endpgm')

PRE_SRD = 76
PF_COL = 92

def tables(a):
    tb.emit(a, 'tab_k1', tb.f32mat('c') + tb.f32mat('ns') + tb.t512() + tb.a2())
    tb.emit(a, 'tab_fft', tb.f32mat('c') + tb.f32mat('s') + tb.f32mat('ns') + tb.t1024() + tb.t2048())

KNAME = 'parallel_sum__spectral_gfnet__mixer_token_mlp__prompt_kernel'
def make(path, **cfg):
    CFG.update(dict(split3=1, samp3=18, rot=1, dmod='', mid=8, pf1=1, stamps=0, early=0, inmod='nt', wmod='nt', wmod2='', spin=1 << 18, pf2=1, depth1=12, depth3=12))
    CFG.update(cfg)
    a = Em()
    a(HEADER + f'; @launch grid=(256,1,1) block=(256,1,1) lds={LDS_TOTAL}\n' + '.amdgcn_target "amdgcn-amd-amdhsa--gfx950"\n.text')
    mega(a, KNAME)
    a('.section .rodata,"a"\n.p2align 6')
    a(descriptor(KNAME, 256, 256))
    open(path, 'w').write(a.text())
    build(path, [(KNAME, (256, 1, 1), (256, 1, 1), LDS_TOTAL)])

if __name__ == '__main__':
    o = dict(x.split('=') for x in sys.argv[2:])
    cfg = {k: (int(v) if v.lstrip('-').isdigit() else v.replace('_', ' ')) for k, v in o.items()}
    make(sys.argv[1], **cfg)
```

```python
import sys, struct
from asm2 import *
import tables as tb

WS_BASE = 0
WS_H    = WS_BASE + 0x000000
WS_GT   = WS_BASE + 0x200000
WS_FINV = WS_GT + 1792 * 1024
WS_ZB   = WS_BASE + 0x480000
WS_WP   = WS_BASE + 0x680000
WS_AL   = WS_BASE + 0x880000
WS_BE   = WS_BASE + 0x882000
WS_F1   = WS_BASE + 0x890000
WS_F2   = WS_BASE + 0x898000
WS_F3   = WS_BASE + 0x8A0000
WS_YT   = WS_BASE + 0x900000
WS_STAMP = 0x10000000 - (16 << 20)
NSLOT = 16

NRING = 18
RINGB = NRING * 2048
LDS_EX = 4 * RINGB
LDS_TOTAL = LDS_EX + 16384
LDS_Z, LDS_W, LDS_X = 0, 65536, 131072

class S:
    WAVE = 3
    X, WR, WI, BX, W1, B1, W2, B2, OUT, DBG, WS = 4, 6, 8, 10, 12, 14, 16, 18, 20, 22, 24
    NONCE, XCD, J, RING = 26, 27, 28, 29
    DT, FT, ST, GRP = 30, 31, 32, 33
    ROT1, ROT3, ROT4, SOA2 = 94, 95, 96, 97
    A, B, C, D = 36, 40, 44, 48
    SOA, SOB = 52, 53
    TAB = 54
    T = 56
    STMP = 72

CFG = dict(stamps=0, early=12, inmod='nt', wmod='nt', spin=1 << 18)

def fb(x): return '0x%08x' % struct.unpack('<I', struct.pack('<f', x))[0]

def srd(a, s, base, off, size):
    with a.atomic():
        if off:
            a(f's_add_u32 s{s}, s{base}, {off}'); a(f's_addc_u32 s{s+1}, s{base+1}, 0')
        else:
            a(f's_mov_b32 s{s}, s{base}'); a(f's_mov_b32 s{s+1}, s{base+1}')
        a(f's_mov_b32 s{s+2}, {size}'); a(f's_mov_b32 s{s+3}, 0x20000')

def stamp(a, slot, vt):
    if CFG.get('echo') == slot:
        with a.atomic():
            a('s_memrealtime s[84:85]'); a('s_waitcnt lgkmcnt(0)'); a('s_sub_u32 s84, s84, s82')
    if not CFG['stamps']: return
    st = S.STMP
    skip = a.label('stamp')
    old = a.in_bg; a.in_bg = True
    a(f's_memrealtime s[{st}:{st+1}]')
    a(f'v_cmp_eq_u32 vcc, 0, v0')
    a(f's_and_saveexec_b64 s[{st+2}:{st+3}], vcc')
    a(f's_waitcnt lgkmcnt(0)')
    a(f's_cbranch_execz {skip}')
    a(f'v_mov_b32 v{vt}, s{st}'); a(f'v_mov_b32 v{vt+1}, s{st+1}')
    a(f's_mul_i32 s{st}, s2, {NSLOT*8}'); a(f's_add_u32 s{st}, s{st}, {WS_STAMP + slot*8}')
    a(f'v_mov_b32 v{vt+2}, s{st}')
    a.lines.append(f'global_store_dwordx2 v{vt+2}, v[{vt}:{vt+1}], s[{S.WS}:{S.WS+1}]')
    a(f'{skip}:')
    a(f's_mov_b64 exec, s[{st+2}:{st+3}]')
    a.in_bg = old
    a.nobg('s_waitcnt vmcnt(0)') if CFG['stamps'] == 2 else None

def table_base(a, s, label):
    l = a.label('pc')
    a(f's_getpc_b64 s[{s}:{s+1}]'); a(f'{l}:')
    a(f's_add_u32 s{s}, s{s}, {label}-{l}'); a(f's_addc_u32 s{s+1}, s{s+1}, 0')

def table_load(a, s, voff, dsts, g0=0):
    cur = 0
    for n, dst in enumerate(dsts):
        g = g0 + n
        while g * 1024 - cur >= 4096:
            a(f'v_add_u32 v{voff}, 4096, v{voff}'); cur += 4096
        a(f'global_load_dwordx4 {dst}, v{voff}, s[{s}:{s+1}] offset:{g*1024-cur}')

def publish(a, off_expr_lines, s_off, vt):
    skip = a.label('pub')
    a(f's_cmp_lg_u32 s{S.WAVE}, 0'); a(f's_cbranch_scc1 {skip}')
    for l in off_expr_lines: a(l)
    a('s_mov_b64 exec, 1')
    a(f'v_mov_b32 v{vt}, s{S.NONCE}'); a(f'v_mov_b32 v{vt+1}, s{s_off}')
    a.lines.append(f'global_store_dword v{vt+1}, v{vt}, s[{S.WS}:{S.WS+1}] sc1')
    a('s_mov_b64 exec, -1')
    a(f'{skip}:')

def poll(a, groups, vt):
    skip, loop, ok = a.label('poll_skip'), a.label('poll'), a.label('poll_ok')
    T = S.T
    a(f's_cmp_lg_u32 s{S.WAVE}, 0'); a(f's_cbranch_scc1 {skip}')
    loads = []
    nv = 0
    for (lines, count) in groups:
        for l in lines: a(l)
        for c0 in range(0, count, 64):
            n = min(64, count - c0)
            va = vt + 2 * nv
            a(f'v_and_b32 v{va}, 63, v0')
            if n < 64: a(f'v_min_u32 v{va}, {n-1}, v{va}')
            a(f'v_lshlrev_b32 v{va}, 7, v{va}')
            a(f'v_add_u32 v{va}, s{T}, v{va}')
            if c0: a(f'v_add_u32 v{va}, {c0*128}, v{va}')
            loads.append(va); nv += 1
    a(f's_mov_b32 s{T+1}, 0')
    a(f'{loop}:')
    for va in loads:
        a.lines.append(f'global_load_dword v{va+1}, v{va}, s[{S.WS}:{S.WS+1}] sc1')
    a('s_waitcnt vmcnt(0)')
    first = True
    for va in loads:
        a(f'v_xor_b32 v{va+1}, s{S.NONCE}, v{va+1}')
        if not first: a(f'v_or_b32 v{loads[0]+1}, v{loads[0]+1}, v{va+1}')
        first = False
    a(f'v_cmp_eq_u32 vcc, 0, v{loads[0]+1}')
    a('s_nop 4')
    a('s_cmp_eq_u64 vcc, -1'); a(f's_cbranch_scc1 {ok}')
    a(f's_add_u32 s{T+1}, s{T+1}, 1'); a(f's_cmp_lt_u32 s{T+1}, {CFG["spin"]}'); a(f's_cbranch_scc1 {loop}')
    a(f'{ok}:')
    a(f'{skip}:')
    a('s_barrier')

class V:
    LANE = 1
    P0, P1, Q0, Q1 = 2, 3, 4, 5
    RA0, RA1, RB0, RB1 = 6, 7, 8, 9
    FR = 12
    FQ = 28
    T = 44
    ACC = 64
    VD = 128

def dma_offsets(a, dst0, dst1, stride, s_col):
    L, T = V.LANE, V.T
    a(f'v_lshrrev_b32 v{T}, 3, v{L}'); a(f'v_and_b32 v{T+1}, 7, v{L}')
    a(f'v_lshlrev_b32 v{T+2}, 1, v{T}'); a(f'v_and_b32 v{T+2}, 4, v{T+2}')
    a(f'v_xor_b32 v{T+1}, v{T+1}, v{T+2}'); a(f'v_lshlrev_b32 v{T+1}, 4, v{T+1}')
    a(f's_mov_b32 s{S.T}, {stride}')
    a(f'v_mad_u32_u24 v{dst0}, v{T}, s{S.T}, v{T+1}')
    a(f'v_add_u32 v{dst0}, s{s_col}, v{dst0}')
    a(f'v_add_u32 v{dst1}, {8*stride-1024}, v{dst0}')

def read_addresses(a):
    L, T = V.LANE, V.T
    a(f'v_lshrrev_b32 v{T}, 5, v{L}'); a(f'v_lshlrev_b32 v{T}, 3, v{T}')
    a(f'v_bfe_u32 v{T+1}, v{L}, 2, 2'); a(f'v_add_u32 v{T}, v{T}, v{T+1}'); a(f'v_lshlrev_b32 v{T}, 7, v{T}')
    a(f'v_bfe_u32 v{T+2}, v{L}, 4, 1'); a(f'v_lshlrev_b32 v{T+2}, 5, v{T+2}')
    a(f'v_and_b32 v{T+3}, 3, v{L}'); a(f'v_lshl_add_u32 v{T+2}, v{T+3}, 3, v{T+2}')
    a(f'v_lshlrev_b32 v{T+1}, 5, v{T+1}'); a(f'v_and_b32 v{T+1}, 64, v{T+1}'); a(f'v_or_b32 v{T+2}, v{T+2}, v{T+1}')
    a(f'v_add3_u32 v{T}, v{T}, v{T+2}, s{S.RING}')
    a(f's_lshl_b32 s{S.T}, s{S.WAVE}, 6'); a(f's_and_b32 s{S.T}, s{S.T}, 64')
    a(f'v_xor_b32 v{V.RA0}, s{S.T}, v{T}'); a(f'v_xor_b32 v{V.RA1}, 64, v{V.RA0}')
    a(f's_lshl_b32 s{S.T}, s{S.WAVE}, 5'); a(f's_and_b32 s{S.T}, s{S.T}, 64')
    a(f'v_xor_b32 v{V.RB0}, s{S.T}, v{T}'); a(f'v_xor_b32 v{V.RB1}, 64, v{V.RB0}')

S_WRAP = 93
def dma_groups(slot, v0, v1, srd_, so, stride, mods, wrap=None):
    g0 = [f's_add_u32 m0, s{S.RING}, {slot*2048}', 's_nop 0',
          f'buffer_load_dwordx4 v{v0}, s[{srd_}:{srd_+3}], s{so} offen {mods} lds']
    g1 = [f'buffer_load_dwordx4 v{v1}, s[{srd_}:{srd_+3}], s{so} offen offset:1024 {mods} lds',
          f's_add_u32 s{so}, s{so}, {stride if isinstance(stride, str) else 64*stride}']
    if wrap:
        g1 += [f's_cmp_ge_u32 s{so}, {wrap[0]}', f's_cselect_b32 s{S_WRAP}, {wrap[1]}, 0', f's_sub_u32 s{so}, s{so}, s{S_WRAP}']
    return g0, g1

def tile_reads(a, slot, side, dst):
    if CFG.get('x_nods') and side == 0: return
    for t in range(2):
        ra = (V.RA0, V.RA1, V.RB0, V.RB1)[side * 2 + t]
        for q in range(2):
            a(f'ds_read_b64_tr_b16 {dst(t, q)}, v{ra} offset:{slot*2048 + q*512}')

def vpair(base): return lambda t, q: f'v[{base+4*t+2*q}:{base+4*t+2*q+1}]'
def apair(base): return lambda t, q: f'a[{base+4*t+2*q}:{base+4*t+2*q+1}]'

class Preload:
    def __init__(self, nsteps, srd_, stride, mods, slots, wrap=None):
        self.wrap = wrap
        self.n, self.srd, self.stride, self.mods, self.slots = nsteps, srd_, stride, mods, list(slots)
        self.issued = 0; self.done = 0; self.h = {}; self.slot = {}; self.free = list(slots)
    def issue_groups(self, k):
        out = []
        for _ in range(k):
            if self.issued >= self.n or not self.free: break
            u = self.issued; self.issued += 1
            sl = self.free.pop(0); self.slot[u] = sl
            g0, g1 = dma_groups(sl, V.Q0, V.Q1, self.srd, S.SOB, self.stride, self.mods, self.wrap)
            def mk(u, g1):
                def f(a):
                    for l in g1: a(l)
                    self.h[u] = a.mark()
                return f
            out += [g0, mk(u, g1)]
        return out
    def issue(self, a, k):
        for g in self.issue_groups(k):
            g(a) if callable(g) else [a(l) for l in g]
    def drain(self, a, upto=None, more_slots=()):
        self.free += list(more_slots)
        upto = self.n if upto is None else upto
        self.issue(a, len(self.free))
        pend = None
        while self.done < upto:
            u = self.done
            a.wait_vm(self.h[u])
            tile_reads(a, self.slot[u], 1, apair(8 * u))
            if pend is not None:
                a('s_waitcnt lgkmcnt(4)')
                self.free.append(self.slot[pend]); self.issue(a, 1)
            pend = u
            self.done += 1
        a('s_waitcnt lgkmcnt(0)')
        if pend is not None: self.free.append(self.slot[pend])

def mfma_step(fs, qreg):
    f = V.FR + 8 * fs
    out = []
    if CFG.get('x_nomfma'): return ['s_nop 0'] * 4
    if CFG.get('x_vq'): qreg = lambda nt: f'v[{V.FQ+4*nt}:{V.FQ+4*nt+3}]'
    for nt in range(2):
        for mt in range(2):
            acc = V.ACC + (nt * 2 + mt) * 16
            out.append(f'v_mfma_f32_32x32x16_bf16 v[{acc}:{acc+15}], v[{f+4*mt}:{f+4*mt+3}], {qreg(nt)}, v[{acc}:{acc+15}]')
    return out

def stream_loop(a, steps, depth, bg_extra=()):
    items = []
    for u, st in enumerate(steps):
        for it in st['items']: items.append((u, it))
    nxt = 0; free = list(range(NRING)); slot = {}; h = {}
    def issue_one():
        nonlocal nxt
        u, it = items[nxt]; key = (u, it[0]); nxt += 1
        sl = free.pop(0); slot[key] = sl
        hook = steps[u].get('before_issue')
        if hook and it is steps[u]['items'][0]: hook(a)
        g0, g1 = dma_groups(sl, it[1], it[2], it[3], it[4], it[5], it[6], it[7] if len(it) > 7 else None)
        for l in g0 + g1: a(l)
        h[key] = a.mark()
    def reads(u):
        fs = u % 2
        for it in steps[u]['items']:
            key = (u, it[0])
            if it[0] == 0: tile_reads(a, slot[key], 0, vpair(V.FR + 8 * fs))
            else: tile_reads(a, slot[key], 1, vpair(V.FQ + 8 * fs))
    def last_handle(u): return max(h[(u, it[0])] for it in steps[u]['items'])
    for i in range(64): a(f'v_mov_b32 v{V.ACC+i}, 0')
    inflight = lambda: NRING - len(free)
    while nxt < len(items) and inflight() < depth: issue_one()
    for g in bg_extra:
        g(a) if callable(g) else [a(l) for l in g]
    a.wait_vm(last_handle(0))
    reads(0)
    n = len(steps)
    for u in range(n):
        fs = u % 2
        q = steps[u]['q']
        qreg = (lambda nt, q=q: f'a[{8*q+4*nt}:{8*q+4*nt+3}]') if q is not None else (lambda nt, fs=fs: f'v[{V.FQ+8*fs+4*nt}:{V.FQ+8*fs+4*nt+3}]')
        m = mfma_step(fs, qreg)
        a('s_waitcnt lgkmcnt(0)')
        a(m[0])
        for it in steps[u]['items']: free.append(slot[(u, it[0])])
        while nxt < len(items) and inflight() < depth and free: issue_one()
        a(m[1])
        if u + 1 < n:
            a.wait_vm(last_handle(u + 1))
            reads(u + 1)
        a(m[2]); a(m[3])

def reduce_partials(a, bg=None):
    L, T = V.LANE, V.T
    a(f'v_lshlrev_b32 v{T}, 4, v{L}')
    a(f'v_add_u32 v{T+1}, s{S.RING}, v{T}')
    for t in range(1, 4):
        a(f's_xor_b32 s{S.T}, s{S.WAVE}, {t}'); a(f's_mul_i32 s{S.T}, s{S.T}, {RINGB}')
        a(f'v_add_u32 v{T+1+t}, s{S.T}, v{T}')
    a('s_nop 7')
    for t in range(1, 4):
        for i in range(4):
            r = V.ACC + t*16 + i*4
            a(f'ds_write_b128 v{T+1}, v[{r}:{r+3}] offset:{(t-1)*4096+i*1024}')
    a('s_waitcnt lgkmcnt(0)')
    a('s_barrier')
    for t in range(1, 4):
        for i in range(4):
            r = V.ACC + t*16 + i*4
            a(f'ds_read_b128 v[{r}:{r+3}], v{T+1+t} offset:{(t-1)*4096+i*1024}')
    a('s_waitcnt lgkmcnt(8)')
    for i in range(16): a(f'v_add_f32 v{V.VD+i}, v{V.ACC+i}, v{V.ACC+16+i}')
    a('s_waitcnt lgkmcnt(4)')
    for i in range(16): a(f'v_add_f32 v{V.VD+i}, v{V.VD+i}, v{V.ACC+32+i}')
    a('s_waitcnt lgkmcnt(0)')
    for i in range(16): a(f'v_add_f32 v{V.VD+i}, v{V.VD+i}, v{V.ACC+48+i}')


def ff(x): return fb(float(x))
def lane_floats(a, fa, fh, tmp):
    L = V.LANE
    a(f'v_and_b32 v{tmp}, 31, v{L}'); a(f'v_cvt_f32_u32 v{fa}, v{tmp}')
    a(f'v_lshrrev_b32 v{tmp}, 5, v{L}'); a(f'v_cvt_f32_u32 v{fh}, v{tmp}')

def gen_f32(a, fa, fh, C, S_, NS, tmp):
    st, ba = tmp, tmp + 1
    a(f'v_mul_f32 v{st}, {ff(1/32)}, v{fa}')
    a(f'v_mul_f32 v{ba}, v{fa}, v{fh}'); a(f'v_mul_f32 v{ba}, {ff(1/8)}, v{ba}')
    for b in range(2):
        for q in range(4):
            r = []
            for e in range(2):
                jj = 2*q + e; kb = 16*b + 8*(jj//4) + jj % 4
                a(f'v_fmamk_f32 v{tmp+2+e}, v{st}, {ff(kb)}, v{ba}')
            for e in range(2):
                a(f'v_sin_f32 v{tmp+4+e}, v{tmp+2+e}')
            for e in range(2):
                a(f'v_cos_f32 v{tmp+2+e}, v{tmp+2+e}')
            if S_ is not None: a(f'v_cvt_pk_bf16_f32 v{S_+4*b+q}, v{tmp+4}, v{tmp+5}')
            if NS is not None: a(f'v_cvt_pk_bf16_f32 v{NS+4*b+q}, -v{tmp+4}, -v{tmp+5}')
            a(f'v_cvt_pk_bf16_f32 v{C+4*b+q}, v{tmp+2}, v{tmp+3}')

def gen_twiddle(a, fa, fh, TC, TS, ns, den, tmp):
    st, ba = tmp, tmp + 1
    a(f'v_mul_f32 v{st}, {ff(1/den)}, v{fa}')
    a(f'v_mul_f32 v{ba}, v{fa}, v{fh}'); a(f'v_mul_f32 v{ba}, {ff(4/den)}, v{ba}')
    for i, n in enumerate(ns):
        a(f'v_fmamk_f32 v{TC+i}, v{st}, {ff(n)}, v{ba}')
        a(f'v_sin_f32 v{TS+i}, v{TC+i}'); a(f'v_cos_f32 v{TC+i}, v{TC+i}')

def gen_t2048(a, fa, fh, UC, US, tmp):
    a(f'v_mul_f32 v{tmp}, {ff(1/64)}, v{fa}'); a(f'v_fmamk_f32 v{tmp}, v{fh}, {ff(4/2048)}, v{tmp}')
    for i in range(4):
        for j in range(4):
            n = 4*i + j
            a(f'v_add_f32 v{UC+n}, {ff((8*i+j)/2048)}, v{tmp}')
            a(f'v_sin_f32 v{US+n}, v{UC+n}'); a(f'v_cos_f32 v{UC+n}, v{UC+n}')

def gen_a2(a, fh, A2R, A2I, tmp):
    L = V.LANE
    k2, c4, st, ba = tmp, tmp + 1, tmp + 2, tmp + 3
    a(f'v_bfe_u32 v{k2}, v{L}, 3, 2'); a(f'v_lshlrev_b32 v{k2}, 2, v{k2}')
    a(f'v_bfe_u32 v{c4}, v{L}, 2, 1'); a(f'v_lshl_add_u32 v{k2}, v{c4}, 1, v{k2}')
    a(f'v_bfe_u32 v{c4}, v{L}, 1, 1'); a(f'v_add_u32 v{k2}, v{k2}, v{c4}'); a(f'v_cvt_f32_u32 v{k2}, v{k2}')
    a(f'v_and_b32 v{c4}, 1, v{L}'); a(f'v_cvt_f32_u32 v{c4}, v{c4}'); a(f'v_mul_f32 v{c4}, 0x3e800000, v{c4}')
    a(f'v_mul_f32 v{st}, {ff(1/16)}, v{k2}')
    a(f'v_mul_f32 v{ba}, v{k2}, v{fh}'); a(f'v_fmamk_f32 v{ba}, v{ba}, {ff(1/4)}, v{c4}')
    for q in range(4):
        for e in range(2):
            jj = 2*q + e; nb = 8*(jj//4) + jj % 4
            a(f'v_fmamk_f32 v{tmp+4+e}, v{st}, {ff(nb)}, v{ba}')
        for e in range(2): a(f'v_sin_f32 v{tmp+6+e}, v{tmp+4+e}')
        for e in range(2): a(f'v_cos_f32 v{tmp+4+e}, v{tmp+4+e}')
        a(f'v_cvt_pk_bf16_f32 v{A2I+q}, v{tmp+6}, v{tmp+7}')
        a(f'v_cvt_pk_bf16_f32 v{A2R+q}, v{tmp+4}, v{tmp+5}')

def row_sum(a, v, t):
    for n in (8, 4, 2, 1):
        a('s_nop 1')
        a(f'v_add_f32_dpp v{v}, v{v}, v{v} row_ror:{n} row_mask:0xf bank_mask:0xf')
    a(f'v_mov_b32 v{t}, v{v}')
    a('s_nop 1')
    a(f'v_permlane32_swap_b32 v{v}, v{t}')
    a('s_nop 0')
    a(f'v_add_f32 v{v}, v{v}, v{t}')

def rbf(a, d, s):
    a(f'v_cvt_pk_bf16_f32 v{d}, v{s}, v{s}')
    a(f'v_lshlrev_b32 v{d}, 16, v{d}')

def layernorm(a, X, P, T, unpack):
    t0, t1, t2, t3 = T, T + 1, T + 2, T + 3
    Pp = lambda x: f'v[{x}:{x+1}]'
    a(f'v_pk_add_f32 {Pp(t0)}, {Pp(X)}, {Pp(X+2)}'); a(f'v_pk_add_f32 {Pp(t2)}, {Pp(X+4)}, {Pp(X+6)}')
    for i in (8, 12):
        a(f'v_pk_add_f32 {Pp(t0)}, {Pp(t0)}, {Pp(X+i)}'); a(f'v_pk_add_f32 {Pp(t2)}, {Pp(t2)}, {Pp(X+i+2)}')
    a(f'v_pk_add_f32 {Pp(t0)}, {Pp(t0)}, {Pp(t2)}')
    a(f'v_add_f32 v{t0}, v{t0}, v{t1}')
    row_sum(a, t0, t1)
    a(f'v_mul_f32 v{t0}, 0x3b000000, v{t0}')
    rbf(a, t2, t0)
    a(f'v_sub_f32 v{t3}, v{t0}, v{t2}')
    for i in range(0, 16, 2):
        a(f'v_pk_add_f32 {Pp(X+i)}, {Pp(X+i)}, {Pp(t2)} op_sel_hi:[1,0] neg_lo:[0,1] neg_hi:[0,1]')
    a(f'v_mul_f32 v{t3}, v{t3}, v{t3}')
    a(f'v_pk_mul_f32 {Pp(t0)}, {Pp(X)}, {Pp(X)}'); a(f'v_pk_mul_f32 {Pp(T+4)}, {Pp(X+2)}, {Pp(X+2)}')
    for i in range(4, 16, 4):
        a(f'v_pk_fma_f32 {Pp(t0)}, {Pp(X+i)}, {Pp(X+i)}, {Pp(t0)}'); a(f'v_pk_fma_f32 {Pp(T+4)}, {Pp(X+i+2)}, {Pp(X+i+2)}, {Pp(T+4)}')
    a(f'v_pk_add_f32 {Pp(t0)}, {Pp(t0)}, {Pp(T+4)}')
    a(f'v_add_f32 v{t0}, v{t0}, v{t1}')
    for n in (8, 4, 2, 1):
        a(f'v_cvt_pk_bf16_f32 v{P+2*[8,4,2,1].index(n)}, v{X+4*[8,4,2,1].index(n)}, v{X+4*[8,4,2,1].index(n)+1}')
        a(f'v_cvt_pk_bf16_f32 v{P+2*[8,4,2,1].index(n)+1}, v{X+4*[8,4,2,1].index(n)+2}, v{X+4*[8,4,2,1].index(n)+3}')
        a(f'v_add_f32_dpp v{t0}, v{t0}, v{t0} row_ror:{n} row_mask:0xf bank_mask:0xf')
    a(f'v_lshlrev_b32 v{X}, 16, v{P}')
    a(f'v_mov_b32 v{t1}, v{t0}')
    a(f'v_and_b32 v{X+1}, 0xffff0000, v{P}'); a(f'v_lshlrev_b32 v{X+2}, 16, v{P+1}')
    a(f'v_permlane32_swap_b32 v{t0}, v{t1}')
    a(f'v_and_b32 v{X+3}, 0xffff0000, v{P+1}')
    a(f'v_add_f32 v{t0}, v{t0}, v{t1}')
    a(f'v_fma_f32 v{t0}, v{t0}, v{T+6}, -v{t3}')
    a(f'v_max_f32 v{t0}, 0, v{t0}')
    rbf(a, t0, t0)
    a(f'v_add_f32 v{t0}, 0x3727c5ac, v{t0}')
    rbf(a, t0, t0)
    a(f'v_sqrt_f32 v{t0}, v{t0}')
    a(f'v_lshlrev_b32 v{X+4}, 16, v{P+2}')
    rbf(a, t0, t0)
    a(f'v_rcp_f32 v{t0}, v{t0}')
    a(f'v_and_b32 v{X+5}, 0xffff0000, v{P+2}')
    for q in range(3, 8):
        a(f'v_lshlrev_b32 v{X+2*q}, 16, v{P+q}'); a(f'v_and_b32 v{X+2*q+1}, 0xffff0000, v{P+q}')
    for i in range(0, 16, 2):
        a(f'v_pk_mul_f32 {Pp(X+i)}, {Pp(X+i)}, {Pp(t0)} op_sel_hi:[1,0]')
    for q in range(8):
        a(f'v_cvt_pk_bf16_f32 v{P+q}, v{X+2*q}, v{X+2*q+1}')
    if unpack:
        for q in range(8):
            a(f'v_lshlrev_b32 v{X+2*q}, 16, v{P+q}'); a(f'v_and_b32 v{X+2*q+1}, 0xffff0000, v{P+q}')

def finv_job(a, R):
    skip = a.label('finv')
    a(f's_cmp_lg_u32 s{S.WAVE}, 3'); a(f's_cbranch_scc1 {skip}')
    srd(a, S.D, S.WS, WS_FINV, 512 * 1024)
    L = V.LANE
    for e in range(2):
        t = S.T
        a(f's_mov_b32 s{t}, s2')
        a(f's_mov_b32 s{t+1}, {128*e}')
        a(f's_mov_b32 s{t+2}, 0x36000000')
        a('s_cmp_eq_u32 s2, 0')
        a(f's_cselect_b32 s{t+2}, 0x35800000, s{t+2}')
        if e == 1:
            a(f's_cselect_b32 s{t}, 0x100, s{t}')
            a(f's_cselect_b32 s{t+1}, 0, s{t+1}')
        a(f'v_lshlrev_b32 v{R}, 3, v{L}')
        a(f'v_mul_u32_u24 v{R}, s{t}, v{R}'); a(f'v_add_u32 v{R}, s{t+1}, v{R}')
        for k in range(8):
            r = R + 2 + k
            a(f'v_and_b32 v{r}, 511, v{R}'); a(f'v_cvt_f32_u32 v{r}, v{r}'); a(f'v_mul_f32 v{r}, 0x3b000000, v{r}')
            a(f'v_cos_f32 v{r}, v{r}'); a(f'v_add_u32 v{R}, s{t}, v{R}'); a(f'v_mul_f32 v{r}, s{t+2}, v{r}')
        o = R + 12 + 4*e
        for q in range(4): a(f'v_cvt_pk_bf16_f32 v{o+q}, v{R+2+2*q}, v{R+3+2*q}')
        a(f's_lshl_b32 s{t+3}, s2, 11'); a(f's_add_u32 s{t+3}, s{t+3}, {1024*e}')
        a(f'v_lshlrev_b32 v{R+1}, 4, v{L}')
        a.lines.append(f'buffer_store_dwordx4 v[{o}:{o+3}], v{R+1}, s[{S.D}:{S.D+3}], s{t+3} offen sc1')
    a(f'{skip}:')

def ab_loads(a, R):
    skip = a.label('abl')
    a(f's_cmp_lg_u32 s{S.WAVE}, 2'); a(f's_cbranch_scc1 {skip}')
    L = V.LANE
    a(f's_lshl_b32 s{S.T}, s2, 3')
    a(f'v_and_b32 v{R}, 7, v{L}'); a(f'v_add_u32 v{R}, s{S.T}, v{R}')
    a(f'v_sub_u32 v{R+1}, 0x800, v{R}'); a(f'v_and_b32 v{R+1}, 0x7ff, v{R+1}')
    a(f's_movk_i32 s{S.T}, 514')
    a(f'v_mul_lo_u32 v{R+2}, v{R}, s{S.T}'); a(f'v_mul_lo_u32 v{R+3}, v{R+1}, s{S.T}')
    for n, (v, s, off) in enumerate([(2, S.B, 0), (3, S.B, 0), (2, S.B, 512), (3, S.B, 512), (2, S.C, 0), (3, S.C, 0), (2, S.C, 512), (3, S.C, 512)]):
        a.lines.append(f'buffer_load_ushort v{R+4+n}, v{R+v}, s[{s}:{s+3}], 0 offen offset:{off}')
    a(f'{skip}:')

def ab_finish(a, R):
    with a.atomic(): ab_finish_(a, R)
def ab_finish_(a, R):
    skip = a.label('abf')
    a(f's_cmp_lg_u32 s{S.WAVE}, 2'); a(f's_cbranch_scc1 {skip}')
    for n in range(8): a(f'v_lshlrev_b32 v{R+4+n}, 16, v{R+4+n}')
    a(f'v_add_f32 v{R+2}, v{R+4}, v{R+5}'); a(f'v_add_f32 v{R+3}, v{R+6}, v{R+7}')
    a(f'v_sub_f32 v{R+4}, v{R+8}, v{R+9}'); a(f'v_sub_f32 v{R+5}, v{R+10}, v{R+11}')
    a(f'v_add_f32 v{R+6}, v{R+2}, v{R+3}'); a(f'v_add_f32 v{R+7}, v{R+4}, v{R+5}')
    a(f'v_sub_f32 v{R+8}, v{R+2}, v{R+3}'); a(f'v_sub_f32 v{R+9}, v{R+4}, v{R+5}')
    for n in range(4): a(f'v_mul_f32 v{R+6+n}, 0x3e800000, v{R+6+n}')
    a(f'v_cvt_pk_bf16_f32 v{R+2}, v{R+6}, v{R+7}'); a(f'v_cvt_pk_bf16_f32 v{R+3}, v{R+8}, v{R+9}')
    a(f'v_and_b32 v{R+4}, 1, v{R}'); a(f'v_lshlrev_b32 v{R+4}, 8, v{R+4}')
    a(f'v_lshrrev_b32 v{R+5}, 8, v{R}'); a(f'v_lshl_add_u32 v{R+4}, v{R+5}, 5, v{R+4}')
    a(f'v_bfe_u32 v{R+5}, v{R}, 1, 5'); a(f'v_add_u32 v{R+4}, v{R+4}, v{R+5}')
    a(f'v_bfe_u32 v{R+5}, v{R}, 6, 2'); a(f'v_lshlrev_b32 v{R+5}, 2, v{R+5}'); a(f'v_lshl_add_u32 v{R+4}, v{R+4}, 4, v{R+5}')
    srd(a, S.D, S.WS, WS_AL, 0x4000)
    a('s_mov_b64 exec, 0xff')
    a.lines.append(f'buffer_store_dword v{R+2}, v{R+4}, s[{S.D}:{S.D+3}], 0 offen sc1')
    a(f'v_add_u32 v{R+4}, {WS_BE-WS_AL}, v{R+4}')
    a.lines.append(f'buffer_store_dword v{R+3}, v{R+4}, s[{S.D}:{S.D+3}], 0 offen sc1')
    a('s_mov_b64 exec, -1')
    a(f'{skip}:')

def phase1(a, pre):
    L = V.LANE
    VO, VT, VE = 10, 11, 44
    X, XA = 128, 144
    C32, NS32, TC, TS, A2R, A2I = 152, 160, 168, 176, 184, 188
    D1R, D1I = 192, 208
    BR, BI = 224, 232
    T = 240
    TW = 248
    WQ = 64
    AB = 96
    FI = 108
    t = S.T
    for i in range(16): a(f'v_mov_b32 v{X+i}, 0')
    a(f's_lshl_b32 s{t+8}, s2, 2'); a(f's_add_u32 s{t+8}, s{t+8}, s{S.WAVE}')
    a(f'v_bfe_u32 v{T}, v{L}, 4, 1'); a(f'v_lshlrev_b32 v{T}, 10, v{T}'); a(f'v_add_u32 v{T}, s{t+8}, v{T}')
    a(f'v_lshlrev_b32 v{T}, 10, v{T}'); a(f'v_and_b32 v{T+1}, 15, v{L}'); a(f'v_lshl_add_u32 v{T}, v{T+1}, 1, v{T}')
    a(f'v_lshrrev_b32 v{T+1}, 5, v{L}'); a(f'v_lshl_add_u32 v{VO}, v{T+1}, 7, v{T}')
    srd(a, S.A, S.X, 0, 2048 * 1024)
    for b in range(2):
        for jj in range(8):
            a(f'buffer_load_short_d16_hi v{X+8*b+jj}, v{VO}, s[{S.A}:{S.A+3}], 0 offen offset:{512*b+256*(jj//4)+32*(jj%4)} {CFG["inmod"]}')
    hx = a.mark()
    srd(a, S.B, S.WR, 0, 2048 * 514); srd(a, S.C, S.WI, 0, 2048 * 514)
    a(f's_lshr_b32 s{t}, s{S.WAVE}, 1'); a(f's_lshl_b32 s{t+1}, s2, 1'); a(f's_add_u32 s{t}, s{t}, s{t+1}')
    a(f's_and_b32 s{t+1}, s{t}, 63'); a(f's_lshr_b32 s{t+2}, s{t}, 6')
    a(f's_lshl_b32 s{t+3}, s{t+2}, 8'); a(f's_add_u32 s{t+3}, s{t+3}, s{t+1}'); a(f's_mul_i32 s{t+3}, s{t+3}, 514')
    a(f's_and_b32 s{t+4}, s{S.WAVE}, 1'); a(f's_lshl_b32 s{t+5}, s{t+4}, 8'); a(f's_add_u32 s{t+3}, s{t+3}, s{t+5}')
    a(f'v_lshlrev_b32 v{WQ}, 2, v{L}'); a(f'v_add_u32 v{WQ}, s{t+3}, v{WQ}')
    for j in range(4):
        a(f's_mov_b32 s{t+5}, {j*64*514}')
        a(f'buffer_load_dword v{WQ+2+j}, v{WQ}, s[{S.B}:{S.B+3}], s{t+5} offen {CFG["inmod"]}')
        a(f'buffer_load_dword v{WQ+6+j}, v{WQ}, s[{S.C}:{S.C+3}], s{t+5} offen {CFG["inmod"]}')
    hw = a.mark()
    a(f's_and_b32 s{t+5}, s{t}, 1'); a(f's_lshl_b32 s{t+5}, s{t+5}, 8'); a(f's_lshl_b32 s{t+6}, s{t+2}, 5'); a(f's_add_u32 s{t+5}, s{t+5}, s{t+6}')
    a(f's_lshr_b32 s{t+6}, s{t+1}, 1'); a(f's_add_u32 s{t+5}, s{t+5}, s{t+6}'); a(f's_lshl_b32 s{t+5}, s{t+5}, 7')
    a(f's_lshl_b32 s{t+6}, s{t+4}, 20'); a(f's_add_u32 s{t+5}, s{t+5}, s{t+6}')
    a(f'v_lshrrev_b32 v{WQ+1}, 3, v{L}'); a(f'v_lshlrev_b32 v{WQ+1}, 16, v{WQ+1}'); a(f'v_and_b32 v{WQ}, 7, v{L}')
    a(f'v_lshl_add_u32 v{WQ+1}, v{WQ}, 4, v{WQ+1}'); a(f'v_add_u32 v{WQ+1}, s{t+5}, v{WQ+1}')
    ab_loads(a, AB)
    def pf1():
        a(f's_and_b32 s{t+12}, s{S.J}, 3'); a(f's_lshl_b32 s{t+12}, s{t+12}, 2'); a(f's_add_u32 s{t+12}, s{t+12}, s{S.WAVE}')
        a(f's_lshl_b32 s{t+12}, s{t+12}, 7')
        a(f'v_add_u32 v{T+7}, s{t+12}, v{L}')
        a(f's_lshr_b32 s{t+13}, s{t+14}, 6')
        a(f'v_mul_lo_u32 v{T+7}, v{T+7}, s{t+13}'); a(f'v_add_u32 v{T+7}, s{PF_COL}, v{T+7}')
        a(f'buffer_load_dword v{VT}, v{T+7}, s[{PRE_SRD}:{PRE_SRD+3}], 0 offen {CFG["wmod"]}')
        a(f'buffer_load_dword v{VT}, v{T+7}, s[{PRE_SRD}:{PRE_SRD+3}], s{t+14} offen {CFG["wmod"]}')
    if CFG['pf1'] == 1: pf1()
    pre.issue(a, CFG['early'])
    finv_job(a, FI)
    lane_floats(a, D1R, D1R + 1, D1R + 2)
    gen_f32(a, D1R, D1R + 1, C32, None, NS32, D1R + 2)
    gen_twiddle(a, D1R, D1R + 1, TC, TS, [0, 1, 2, 3, 8, 9, 10, 11], 512, D1R + 2)
    gen_a2(a, D1R + 1, A2R, A2I, D1R + 2)
    a(f'v_cvt_f32_u32 v{TW}, s{t+8}'); a(f'v_mul_f32 v{TW}, 0x3a000000, v{TW}')
    a(f'v_sin_f32 v{TW+1}, v{TW}'); a(f'v_cos_f32 v{TW}, v{TW}')
    a(f'v_mov_b32 v{T+6}, 0x3b000000')
    a(f's_lshl_b32 s{t+9}, s{S.WAVE}, 12'); a(f's_add_u32 s{t+9}, s{t+9}, {LDS_EX}')
    a(f'v_lshlrev_b32 v{VE}, 4, v{L}'); a(f'v_add_u32 v{VE}, s{t+9}, v{VE}')
    stamp(a, 1, T)
    a.wait_vm(hx)
    stamp(a, 2, T)
    if CFG['pf1'] == 2: pf1()
    layernorm(a, X, XA, T, True)
    for b in range(2):
        c = '0' if b == 0 else f'v[{D1R}:{D1R+15}]'
        a(f'v_mfma_f32_32x32x16_bf16 v[{D1R}:{D1R+15}], v[{XA+4*b}:{XA+4*b+3}], v[{C32+4*b}:{C32+4*b+3}], {c}')
        c = '0' if b == 0 else f'v[{D1I}:{D1I+15}]'
        a(f'v_mfma_f32_32x32x16_bf16 v[{D1I}:{D1I+15}], v[{XA+4*b}:{XA+4*b+3}], v[{NS32+4*b}:{NS32+4*b+3}], {c}')
    HP = XA
    layernorm(a, X, HP, T, False)
    a(f'v_bfe_u32 v{T}, v{L}, 4, 1'); a(f'v_mul_u32_u24 v{T}, 1056, v{T}'); a(f'v_and_b32 v{T+1}, 15, v{L}')
    a(f'v_lshl_add_u32 v{T}, v{T+1}, 1, v{T}'); a(f'v_lshrrev_b32 v{T+1}, 5, v{L}'); a(f'v_lshl_add_u32 v{T}, v{T+1}, 7, v{T}')
    a(f'v_add_u32 v{T}, s{t+9}, v{T}')
    for q in range(8):
        b, jq = q // 4, q % 4
        for e in range(2):
            jj = 2 * jq + e
            op = 'ds_write_b16_d16_hi' if e else 'ds_write_b16'
            a(f'{op} v{T}, v{HP+q} offset:{512*b+256*(jj//4)+32*(jj%4)}')
    a(f'ds_read_b128 v[{WQ+20}:{WQ+23}], v{VE}'); a(f'ds_read_b128 v[{WQ+24}:{WQ+27}], v{VE} offset:1056')
    srd(a, S.D, S.WS, WS_H, 2048 * 1024)
    a(f's_lshl_b32 s{t+5}, s{t+8}, 10'); a(f's_add_u32 s{t+6}, s{t+5}, {1024*1024}')
    a(f'v_lshlrev_b32 v{T+1}, 4, v{L}')
    Pp = lambda x: f'v[{x}:{x+1}]'
    for i in range(4):
        for j in range(0, 4, 2):
            r_, i_ = D1R + 4*i + j, D1I + 4*i + j
            tc, ts = TC + 4*(i % 2) + j, TS + 4*(i % 2) + j
            a(f'v_pk_mul_f32 {Pp(X+j)}, {Pp(r_)}, {Pp(tc)}'); a(f'v_pk_mul_f32 {Pp(X+4+j)}, {Pp(i_)}, {Pp(tc)}')
            a(f'v_pk_fma_f32 {Pp(X+j)}, {Pp(i_)}, {Pp(ts)}, {Pp(X+j)}')
            a(f'v_pk_fma_f32 {Pp(X+4+j)}, {Pp(r_)}, {Pp(ts)}, {Pp(X+4+j)} neg_lo:[1,0,0] neg_hi:[1,0,0]')
        a(f'v_cvt_pk_bf16_f32 v{BR+2*i}, v{X}, v{X+1}');   a(f'v_cvt_pk_bf16_f32 v{BR+2*i+1}, v{X+2}, v{X+3}')
        a(f'v_cvt_pk_bf16_f32 v{BI+2*i}, v{X+4}, v{X+5}'); a(f'v_cvt_pk_bf16_f32 v{BI+2*i+1}, v{X+6}, v{X+7}')
        if i == 0:
            a('s_waitcnt lgkmcnt(0)')
            a(f'buffer_store_dwordx4 v[{WQ+20}:{WQ+23}], v{T+1}, s[{S.D}:{S.D+3}], s{t+5} offen sc1')
            a(f'buffer_store_dwordx4 v[{WQ+24}:{WQ+27}], v{T+1}, s[{S.D}:{S.D+3}], s{t+6} offen sc1')
    a('s_nop 1')
    D2 = (D1R, D1I)
    for r in range(2):
        a(f'v_mfma_f32_32x32x16_bf16 v[{D2[r]}:{D2[r]+15}], v[{A2R}:{A2R+3}], v[{BR+4*r}:{BR+4*r+3}], 0')
    for r in range(2):
        a(f'v_mfma_f32_32x32x16_bf16 v[{D2[r]}:{D2[r]+15}], v[{A2I}:{A2I+3}], v[{BI+4*r}:{BI+4*r+3}], v[{D2[r]}:{D2[r]+15}]')
    a(f'v_and_b32 v{T}, 31, v0'); a(f'v_lshrrev_b32 v{T+1}, 5, v0'); a(f'v_lshrrev_b32 v{T+2}, 2, v{T+1}'); a(f'v_lshlrev_b32 v{T+2}, 10, v{T+2}')
    a(f'v_bfe_u32 v{T+3}, v{T+1}, 1, 1'); a(f'v_lshl_add_u32 v{T}, v{T+3}, 5, v{T}'); a(f'v_lshl_add_u32 v{T}, v{T}, 4, v{T+2}')
    a(f'v_and_b32 v{T+1}, 1, v{T+1}'); a(f'v_lshl_add_u32 v{T}, v{T+1}, 3, v{T}'); a(f'v_add_u32 v{T}, {LDS_EX}, v{T}')
    a(f'v_lshrrev_b32 v{T+1}, 3, v0'); a(f'v_lshlrev_b32 v{T+1}, 15, v{T+1}'); a(f'v_and_b32 v{T+2}, 7, v0')
    a(f'v_lshl_add_u32 v{T+1}, v{T+2}, 4, v{T+1}'); a(f's_lshl_b32 s{t+5}, s2, 7'); a(f'v_add_u32 v{T+1}, s{t+5}, v{T+1}')
    a('s_nop 3')
    a('s_mov_b64 exec, 1')
    a(f'v_mov_b32 v{D2[0]+1}, v{D2[0]+8}'); a(f'v_mov_b32 v{D2[1]+1}, v{D2[1]+8}')
    a('s_mov_b64 exec, -1')
    Z0, DF, Z1 = X, X + 8, XA
    for i in range(0, 8, 2):
        a(f'v_pk_add_f32 {Pp(Z0+i)}, {Pp(D2[0]+i)}, {Pp(D2[1]+i)}')
        a(f'v_pk_add_f32 {Pp(DF+i)}, {Pp(D2[0]+i)}, {Pp(D2[1]+i)} neg_lo:[0,1] neg_hi:[0,1]')
    for i in range(0, 8, 2):
        a(f'v_mul_f32 v{Z1+i}, v{DF+i}, v{TW}'); a(f'v_mul_f32 v{Z1+i+1}, v{DF+i+1}, v{TW}')
        a(f'v_fmac_f32 v{Z1+i}, v{DF+i+1}, v{TW+1}'); a(f'v_fma_f32 v{Z1+i+1}, -v{DF+i}, v{TW+1}, v{Z1+i+1}')
    for ip in range(2):
        a(f'ds_write_b128 v{VE}, v[{Z0+4*ip}:{Z0+4*ip+3}] offset:{ip*1024}')
        a(f'ds_write_b128 v{VE}, v[{Z1+4*ip}:{Z1+4*ip+3}] offset:{2048+ip*1024}')
    srd(a, S.D, S.WS, WS_ZB, 2 * 32 * 256 * 128)
    a('s_waitcnt lgkmcnt(0)')
    a('s_barrier')
    G0 = C32
    for par in range(2):
        for w in range(4):
            a(f'ds_read_b64 v[{G0+16*par+2*w}:{G0+16*par+2*w+1}], v{T} offset:{w*4096+par*2048}')
    a(f's_mov_b32 s{t+5}, {32*256*128}')
    for par in range(2):
        g = G0 + 16 * par; o = g + 8
        a(f's_waitcnt lgkmcnt({4*(1-par)})')
        a(f'v_cvt_pk_bf16_f32 v{o}, v{g}, v{g+2}');     a(f'v_cvt_pk_bf16_f32 v{o+1}, v{g+4}, v{g+6}')
        a(f'v_cvt_pk_bf16_f32 v{o+2}, v{g+1}, v{g+3}'); a(f'v_cvt_pk_bf16_f32 v{o+3}, v{g+5}, v{g+7}')
        so = f's{t+5}' if par else '0'
        a(f'buffer_store_dwordx4 v[{o}:{o+3}], v{T+1}, s[{S.D}:{S.D+3}], {so} offen sc1')
    stamp(a, 3, T + 2)
    a.wait_vm(hw)
    a(f's_mov_b32 s{t+10}, 0x05040100'); a(f's_mov_b32 s{t+11}, 0x07060302')
    for e in range(2):
        for j in range(4):
            a(f'v_perm_b32 v{WQ+10+4*e+j}, v{WQ+6+j}, v{WQ+2+j}, s{t+10+e}')
    a(f'v_lshlrev_b32 v{VE}, 5, v{L}'); a(f'v_add_u32 v{VE}, s{S.RING}, v{VE}')
    a(f'ds_write_b128 v{VE}, v[{WQ+10}:{WQ+13}] offset:{(NRING-1)*2048}'); a(f'ds_write_b128 v{VE}, v[{WQ+14}:{WQ+17}] offset:{(NRING-1)*2048+16}')
    a(f'v_lshlrev_b32 v{VE}, 4, v{L}'); a(f'v_add_u32 v{VE}, s{S.RING}, v{VE}')
    a(f'ds_read_b128 v[{WQ+20}:{WQ+23}], v{VE} offset:{(NRING-1)*2048}'); a(f'ds_read_b128 v[{WQ+24}:{WQ+27}], v{VE} offset:{(NRING-1)*2048+1024}')
    srd(a, S.D, S.WS, WS_WP, 32 * 512 * 128)
    ab_finish(a, AB)
    srd(a, S.D, S.WS, WS_WP, 32 * 512 * 128)
    a(f's_mov_b32 s{t+5}, {8*65536}')
    a('s_waitcnt lgkmcnt(0)')
    a(f'buffer_store_dwordx4 v[{WQ+20}:{WQ+23}], v{WQ+1}, s[{S.D}:{S.D+3}], 0 offen sc1')
    a(f'buffer_store_dwordx4 v[{WQ+24}:{WQ+27}], v{WQ+1}, s[{S.D}:{S.D+3}], s{t+5} offen sc1')
    a(f'v_mov_b32 v{T+2}, 0')
    a(f'global_load_dword v{T+3}, v{T+2}, s[{S.DBG}:{S.DBG+1}] sc1')
    hst = a.mark()
    if CFG['pf1'] == 3: pf1()
    pre.issue(a, CFG['mid'])
    a.wait_vm(hst)
    lp, ok = a.label('nonce'), a.label('nonce_ok')
    a(f's_mov_b32 s{t}, 0')
    a(f'{lp}:')
    a(f'v_readfirstlane_b32 s{S.NONCE}, v{T+3}')
    a('s_nop 3')
    a(f's_cmp_lg_u32 s{S.NONCE}, 0'); a(f's_cbranch_scc1 {ok}')
    a.lines.append(f'global_load_dword v{T+3}, v{T+2}, s[{S.DBG}:{S.DBG+1}] sc1')
    a('s_waitcnt vmcnt(0)')
    a(f's_add_u32 s{t}, s{t}, 1'); a(f's_cmp_lt_u32 s{t}, {CFG["spin"]}'); a(f's_cbranch_scc1 {lp}')
    a(f'{ok}:')
    a('s_barrier')
    publish(a, [f's_lshl_b32 s{t}, s2, 7', f's_add_u32 s{t}, s{t}, {WS_F1}'], t, T)
    stamp(a, 4, T)

def store_tile_rows(a, O, srd_, row0_lines, s_row0, stride_shift):
    L, T, t = V.LANE, V.T, S.T
    a(f's_lshr_b32 s{t}, s{S.WAVE}, 1'); a(f's_lshl_b32 s{t}, s{t}, 5')
    a(f'v_and_b32 v{T}, 31, v{L}'); a(f'v_add_u32 v{T}, s{t}, v{T}'); a(f'v_mul_u32_u24 v{T}, 144, v{T}')
    a(f's_and_b32 s{t}, s{S.WAVE}, 1'); a(f's_lshl_b32 s{t}, s{t}, 6'); a(f's_add_u32 s{t}, s{t}, {LDS_EX}')
    a(f'v_lshrrev_b32 v{T+1}, 5, v{L}'); a(f'v_lshl_add_u32 v{T}, v{T+1}, 4, v{T}'); a(f'v_add_u32 v{T}, s{t}, v{T}')
    a(f'ds_write_b128 v{T}, v[{O}:{O+3}]'); a(f'ds_write_b128 v{T}, v[{O+4}:{O+7}] offset:32')
    a(f'v_lshrrev_b32 v{T+1}, 3, v{L}'); a(f's_lshl_b32 s{t}, s{S.WAVE}, 4'); a(f'v_add_u32 v{T+1}, s{t}, v{T+1}')
    a(f'v_and_b32 v{T+2}, 7, v{L}'); a(f'v_lshlrev_b32 v{T+2}, 4, v{T+2}')
    a(f'v_mul_u32_u24 v{T+3}, 144, v{T+1}'); a(f'v_add_u32 v{T+3}, v{T+3}, v{T+2}'); a(f'v_add_u32 v{T+3}, {LDS_EX}, v{T+3}')
    for l in row0_lines: a(l)
    a(f'v_lshl_add_u32 v{T+1}, v{T+1}, {stride_shift}, v{T+2}'); a(f'v_add_u32 v{T+1}, s{s_row0}, v{T+1}')
    a.nobg('s_waitcnt lgkmcnt(0)')
    a.nobg('s_barrier')
    a(f'ds_read_b128 v[{O}:{O+3}], v{T+3}'); a(f'ds_read_b128 v[{O+4}:{O+7}], v{T+3} offset:{8*144}')
    a(f's_mov_b32 s{t}, {8 << stride_shift}')
    a.nobg('s_waitcnt lgkmcnt(0)')
    a(f'buffer_store_dwordx4 v[{O}:{O+3}], v{T+1}, s[{srd_}:{srd_+3}], 0 offen sc1')
    a(f'buffer_store_dwordx4 v[{O+4}:{O+7}], v{T+1}, s[{srd_}:{srd_+3}], s{t} offen sc1')

def w2_setup(a):
    t = S.T
    srd(a, S.B, S.W2, 0, 1792 * 4096)
    a(f's_lshl_b32 s{t+1}, s{S.ST}, 7')
    dma_offsets(a, V.Q0, V.Q1, 4096, t + 1)
    a(f's_mul_i32 s{S.SOB}, s{S.WAVE}, {16*4096}')
    a(f's_mul_i32 s{t}, s{S.ROT3}, {64*4096}'); a(f's_add_u32 s{S.SOB}, s{S.SOB}, s{t}')

def gemm1(a):
    L, T, t = V.LANE, V.T, S.T
    a('s_waitcnt vmcnt(0)')
    srd(a, S.A, S.WS, WS_H, 2048 * 1024)
    a(f's_lshl_b32 s{t+1}, s{S.DT}, 7')
    dma_offsets(a, V.P0, V.P1, 1024, t + 1)
    a(f's_mul_i32 s{S.SOA}, s{S.WAVE}, {16*1024}')
    a(f's_lshl_b32 s{t}, s{S.ROT1}, 16'); a(f's_add_u32 s{S.SOA}, s{S.SOA}, s{t}')
    V_B1 = 60
    a(f's_lshr_b32 s{t}, s{S.WAVE}, 1'); a(f's_lshl_b32 s{t}, s{t}, 5'); a(f's_lshl_b32 s{t+1}, s{S.FT}, 6'); a(f's_add_u32 s{t}, s{t}, s{t+1}')
    a(f'v_and_b32 v{T}, 31, v{L}'); a(f'v_add_u32 v{T}, s{t}, v{T}'); a(f'v_lshlrev_b32 v{T}, 1, v{T}')
    a(f'global_load_ushort v{V_B1}, v{T}, s[{S.B1}:{S.B1+1}]')
    pf = []
    if CFG.get('pf2', 1):
        srd(a, S.C, S.W2, 0, 1792 * 4096)
        a(f's_lshl_b32 s{t}, s{S.J}, 2'); a(f's_add_u32 s{t}, s{t}, s{S.WAVE}'); a(f's_lshl_b32 s{t}, s{t}, 4')
        a(f'v_lshrrev_b32 v{T}, 3, v{L}'); a(f'v_add_u32 v{T}, s{t}, v{T}'); a(f'v_lshlrev_b32 v{T}, 12, v{T}')
        a(f'v_and_b32 v{T+1}, 7, v{L}'); a(f'v_lshl_add_u32 v{T}, v{T+1}, 7, v{T}')
        a(f's_lshr_b32 s{t}, s{S.XCD}, 1'); a(f's_lshl_b32 s{t}, s{t}, 10'); a(f'v_add_u32 v61, s{t}, v{T}')
        a(f'v_add_u32 v62, {8*4096}, v61')
        pf = [[f'buffer_load_dword v63, v61, s[{S.C}:{S.C+3}], 0 offen {CFG["wmod"]}'],
              [f'buffer_load_dword v63, v62, s[{S.C}:{S.C+3}], 0 offen {CFG["wmod"]}']]
    steps = [dict(items=[(0, V.P0, V.P1, S.A, S.SOA, 1024, CFG['dmod'], (32*65536, 32*65536))], q=u) for u in range(32)]
    stream_loop(a, steps, CFG.get('depth1', 12), bg_extra=pf)
    stamp(a, 7, T)
    w2_setup(a)
    pre2 = Preload(28, S.B, 4096, CFG['wmod2'], range(6, NRING), wrap=(7340032, 7340032))
    reduce_partials(a)
    stamp(a, 12, T)
    VD = V.VD
    a(f'v_lshlrev_b32 v{V_B1}, 16, v{V_B1}')
    c0 = -2.0 * 0.7978845608028654 * 1.4426950408889634
    a(f's_mov_b32 s{t+2}, {fb(c0)}'); a(f's_mov_b32 s{t+3}, {fb(c0 * 0.044715)}')
    a(f'v_mov_b32 v61, s{t+2}')
    for q in range(8):
        d0, d1 = VD + 2*q, VD + 2*q + 1
        a(f'v_cvt_pk_bf16_f32 v{T}, v{d0}, v{d1}')
        a(f'v_lshlrev_b32 v{d0}, 16, v{T}'); a(f'v_and_b32 v{d1}, 0xffff0000, v{T}')
        a(f'v_add_f32 v{d0}, v{d0}, v{V_B1}'); a(f'v_add_f32 v{d1}, v{d1}, v{V_B1}')
        a(f'v_cvt_pk_bf16_f32 v{T}, v{d0}, v{d1}')
        a(f'v_lshlrev_b32 v{d0}, 16, v{T}'); a(f'v_and_b32 v{d1}, 0xffff0000, v{T}')
        a(f'v_mul_f32 v{T+1}, v{d0}, v{d0}'); a(f'v_mul_f32 v{T+2}, v{d1}, v{d1}')
        a(f'v_fma_f32 v{T+1}, v{T+1}, s{t+3}, v61'); a(f'v_fma_f32 v{T+2}, v{T+2}, s{t+3}, v61')
        a(f'v_mul_f32 v{T+1}, v{T+1}, v{d0}'); a(f'v_mul_f32 v{T+2}, v{T+2}, v{d1}')
        a(f'v_exp_f32 v{T+1}, v{T+1}'); a(f'v_exp_f32 v{T+2}, v{T+2}')
        a('s_nop 0')
        a(f'v_add_f32 v{T+1}, 1.0, v{T+1}'); a(f'v_add_f32 v{T+2}, 1.0, v{T+2}')
        a(f'v_rcp_f32 v{T+1}, v{T+1}'); a(f'v_rcp_f32 v{T+2}, v{T+2}')
        a('s_nop 0')
        a(f'v_mul_f32 v{d0}, v{d0}, v{T+1}'); a(f'v_mul_f32 v{d1}, v{d1}, v{T+2}')
    a('s_nop 1')
    for p in range(2):
        for j in range(4):
            a(f'v_permlane32_swap_b32 v{VD+8*p+j}, v{VD+8*p+4+j}')
    O = 52
    for p in range(2):
        for jj in range(4):
            a(f'v_cvt_pk_bf16_f32 v{O+4*p+jj}, v{VD+8*p+2*jj}, v{VD+8*p+2*jj+1}')
    a.bg_flush()
    srd(a, S.D, S.WS, WS_GT, 1792 * 1024)
    store_tile_rows(a, O, S.D, [f's_lshl_b32 s{t+4}, s{S.FT}, 16', f's_lshl_b32 s{t+5}, s{S.DT}, 7', f's_add_u32 s{t+4}, s{t+4}, s{t+5}'], t + 4, 10)
    hst = a.mark()
    stamp(a, 13, T)
    pre2.free += list(range(6))
    pre2.issue(a, CFG['mid'])
    a.wait_vm(hst)
    a('s_barrier')
    publish(a, [f's_lshl_b32 s{t}, s{S.DT}, 5', f's_add_u32 s{t}, s{t}, s{S.FT}', f's_lshl_b32 s{t}, s{t}, 7', f's_add_u32 s{t}, s{t}, {WS_F2}'], t, T)
    stamp(a, 8, T)
    pre2.drain(a)
    stamp(a, 14, T)

class F:
    L = 1; RZ0 = 3; RW = 5; VY = 6; T = 8
    C, S, NS = 24, 32, 40
    TC, TS = 48, 64
    UC, US = 80, 96
    AR = (112, 176); AI = (120, 184); DR = (128, 192); DI = (144, 208); W = (160, 224)
    BE = 240

def stage_mfmas(p, form, conj):
    s_for_re = F.NS if conj else F.S
    s_for_im = F.S if conj else F.NS
    DR, DI, AR, AI = F.DR[p], F.DI[p], F.AR[p], F.AI[p]
    seq = []
    for b in range(2): seq += [(DR, AR + 4*b, F.C + 4*b), (DI, AI + 4*b, F.C + 4*b)]
    for b in range(2): seq += [(DR, AI + 4*b, s_for_re + 4*b), (DI, AR + 4*b, s_for_im + 4*b)]
    seen = set(); out = []
    for (d, x, c) in seq:
        cc = f'v[{d}:{d+15}]' if d in seen else '0'
        seen.add(d)
        if form == 'A': out.append(f'v_mfma_f32_32x32x16_bf16 v[{d}:{d+15}], v[{x}:{x+3}], v[{c}:{c+3}], {cc}')
        else:           out.append(f'v_mfma_f32_32x32x16_bf16 v[{d}:{d+15}], v[{c}:{c+3}], v[{x}:{x+3}], {cc}')
    return out

PP = lambda x: f'v[{x}:{x+1}]'
def pack4(p, i):
    T = F.T
    return [f'v_cvt_pk_bf16_f32 v{F.AR[p]+2*i}, v{T}, v{T+1}', f'v_cvt_pk_bf16_f32 v{F.AR[p]+2*i+1}, v{T+2}, v{T+3}',
            f'v_cvt_pk_bf16_f32 v{F.AI[p]+2*i}, v{T+4}, v{T+5}', f'v_cvt_pk_bf16_f32 v{F.AI[p]+2*i+1}, v{T+6}, v{T+7}']

def twiddle_valu(p, conj):
    T = F.T; out = []
    if not CFG.get('fftpk'):
        for i in range(4):
            for j in range(4):
                n = 4*i + j
                r_, i_, c, s_ = F.DR[p] + n, F.DI[p] + n, F.TC + n, F.TS + n
                out += [f'v_mul_f32 v{T+j}, v{r_}, v{c}', f'v_mul_f32 v{T+4+j}, v{i_}, v{c}']
                if conj: out += [f'v_fma_f32 v{T+j}, -v{i_}, v{s_}, v{T+j}', f'v_fmac_f32 v{T+4+j}, v{r_}, v{s_}']
                else:    out += [f'v_fmac_f32 v{T+j}, v{i_}, v{s_}', f'v_fma_f32 v{T+4+j}, -v{r_}, v{s_}, v{T+4+j}']
            out += pack4(p, i)
        return out
    for i in range(4):
        for j in range(0, 4, 2):
            n = 4*i + j
            r_, i_, c, s_ = F.DR[p] + n, F.DI[p] + n, F.TC + n, F.TS + n
            out += [f'v_pk_mul_f32 {PP(T+j)}, {PP(r_)}, {PP(c)}', f'v_pk_mul_f32 {PP(T+4+j)}, {PP(i_)}, {PP(c)}']
            if conj:
                out += [f'v_pk_fma_f32 {PP(T+j)}, {PP(i_)}, {PP(s_)}, {PP(T+j)} neg_lo:[1,0,0] neg_hi:[1,0,0]',
                        f'v_pk_fma_f32 {PP(T+4+j)}, {PP(r_)}, {PP(s_)}, {PP(T+4+j)}']
            else:
                out += [f'v_pk_fma_f32 {PP(T+j)}, {PP(i_)}, {PP(s_)}, {PP(T+j)}',
                        f'v_pk_fma_f32 {PP(T+4+j)}, {PP(r_)}, {PP(s_)}, {PP(T+4+j)} neg_lo:[1,0,0] neg_hi:[1,0,0]']
        out += pack4(p, i)
    return out

def filter_valu(p):
    T = F.T; out = []
    if not CFG.get('fftpk'):
        for i in range(4):
            for j in range(4):
                n = 4*i + j
                r_, i_, w = F.DR[p] + n, F.DI[p] + n, F.W[p] + n
                t0, t1 = T + 8 + 2*(j % 2), T + 9 + 2*(j % 2)
                out += [f'v_lshlrev_b32 v{t0}, 16, v{w}', f'v_and_b32 v{t1}, 0xffff0000, v{w}',
                        f'v_mul_f32 v{T+j}, v{r_}, v{t0}', f'v_mul_f32 v{T+4+j}, v{i_}, v{t0}',
                        f'v_fma_f32 v{T+j}, -v{i_}, v{t1}, v{T+j}', f'v_fmac_f32 v{T+4+j}, v{r_}, v{t1}']
            out += pack4(p, i)
        return out
    for i in range(4):
        for j in range(0, 4, 2):
            n = 4*i + j
            r_, i_, w = F.DR[p] + n, F.DI[p] + n, F.W[p] + n
            out += [f'v_lshlrev_b32 v{T+8}, 16, v{w}', f'v_lshlrev_b32 v{T+9}, 16, v{w+1}',
                    f'v_and_b32 v{T+10}, 0xffff0000, v{w}', f'v_and_b32 v{T+11}, 0xffff0000, v{w+1}',
                    f'v_pk_mul_f32 {PP(T+j)}, {PP(r_)}, {PP(T+8)}', f'v_pk_mul_f32 {PP(T+4+j)}, {PP(i_)}, {PP(T+8)}',
                    f'v_pk_fma_f32 {PP(T+j)}, {PP(i_)}, {PP(T+10)}, {PP(T+j)} neg_lo:[1,0,0] neg_hi:[1,0,0]',
                    f'v_pk_fma_f32 {PP(T+4+j)}, {PP(r_)}, {PP(T+10)}, {PP(T+4+j)}']
        out += pack4(p, i)
    return out

def merge(a, valu, mfmas):
    n = len(valu)
    span = max(n - 14, 8)
    pos = [2 + (k * (span - 2)) // len(mfmas) for k in range(len(mfmas))]
    k = 0
    for i, v in enumerate(valu):
        while k < len(mfmas) and pos[k] <= i:
            a(mfmas[k]); k += 1
        a(v)
    while k < len(mfmas): a(mfmas[k]); k += 1
    tail = n - pos[-1]
    if tail < 12:
        need = 12 - tail
        while need > 0:
            a(f's_nop {min(need, 8) - 1}'); need -= min(need, 8)

def filter_special(a, p, SAL):
    T = F.T; L = F.L
    DR, DI, W, BE = F.DR[p], F.DI[p], F.W[p], F.BE
    a(f'v_lshlrev_b32 v{T+10}, 4, v{L}'); a(f'v_add_u32 v{T+10}, {p*4096}, v{T+10}')
    for i in range(4):
        a.lines.append(f'global_load_dwordx4 v[{W+4*i}:{W+4*i+3}], v{T+10}, s[{SAL}:{SAL+1}] offset:{i*1024} sc1')
    a(f'v_add_u32 v{T+10}, {WS_BE-WS_AL}, v{T+10}')
    for i in range(4):
        a.lines.append(f'global_load_dwordx4 v[{BE+4*i}:{BE+4*i+3}], v{T+10}, s[{SAL}:{SAL+1}] offset:{i*1024} sc1')
    a(f'v_and_b32 v{T+14}, 31, v{L}'); a(f'v_lshrrev_b32 v{T+15}, 5, v{L}')
    a(f'v_lshl_add_u32 v{T+14}, v{T+15}, 7, v{T+14}')
    a(f'v_lshlrev_b32 v{T+15}, 3, v{T+14}'); a(f'v_add_u32 v{T+15}, {LDS_X}, v{T+15}')
    for i in range(4):
        for j in range(4):
            a(f'ds_write2_b32 v{T+15}, v{DR+4*i+j}, v{DI+4*i+j} offset0:{64*j} offset1:{64*j+1}')
        if i < 3: a(f'v_add_u32 v{T+15}, 2048, v{T+15}')
    top = 1024 if p == 0 else 1023
    if p == 0:
        a('s_mov_b64 exec, 1')
        a(f'v_mov_b32 v{T+15}, {LDS_X + 1024*8}')
        a(f'ds_write2_b32 v{T+15}, v{DR}, v{DI} offset0:0 offset1:1')
        a('s_mov_b64 exec, -1')
    a(f'v_sub_u32 v{T+15}, {top - 96}, v{T+14}')
    a(f'v_lshlrev_b32 v{T+15}, 3, v{T+15}'); a(f'v_add_u32 v{T+15}, {LDS_X}, v{T+15}')
    a('s_waitcnt vmcnt(0) lgkmcnt(0)')
    for i in range(4):
        for jp in range(0, 4, 2):
            for e in range(2):
                a(f'ds_read_b64 v[{T+10+2*e}:{T+11+2*e}], v{T+15} offset:{(3-jp-e)*256}')
            a('s_waitcnt lgkmcnt(0)')
            for e in range(2):
                j = jp + e; n = 4*i + j
                r_, i_, w, be, mr, mi = DR + n, DI + n, W + n, BE + n, T + 10 + 2*e, T + 11 + 2*e
                a(f'v_lshlrev_b32 v{T+8}, 16, v{w}'); a(f'v_and_b32 v{T+9}, 0xffff0000, v{w}')
                a(f'v_mul_f32 v{T+j}, v{r_}, v{T+8}'); a(f'v_mul_f32 v{T+4+j}, v{i_}, v{T+8}')
                a(f'v_fma_f32 v{T+j}, -v{i_}, v{T+9}, v{T+j}'); a(f'v_fmac_f32 v{T+4+j}, v{r_}, v{T+9}')
                a(f'v_lshlrev_b32 v{T+8}, 16, v{be}'); a(f'v_and_b32 v{T+9}, 0xffff0000, v{be}')
                a(f'v_fmac_f32 v{T+j}, v{mr}, v{T+8}'); a(f'v_fmac_f32 v{T+j}, v{mi}, v{T+9}')
                a(f'v_fmac_f32 v{T+4+j}, v{mr}, v{T+9}'); a(f'v_fma_f32 v{T+4+j}, -v{mi}, v{T+8}, v{T+4+j}')
        for l in pack4(p, i): a(l)
        if i < 3: a(f'v_subrev_u32 v{T+15}, 2048, v{T+15}')
    a('s_nop 1')

def fft_consts(a):
    T = F.T
    lane_floats(a, T, T + 1, T + 2)
    gen_f32(a, T, T + 1, F.C, F.S, F.NS, T + 2)
    gen_twiddle(a, T, T + 1, F.TC, F.TS, [8*i + j for i in range(4) for j in range(4)], 1024, T + 2)
    gen_t2048(a, T, T + 1, F.UC, F.US, T + 2)

def fft_role(a):
    L, T, t = F.L, F.T, S.T
    SZ, SW, SY = S.A, S.B, S.C
    KAP, PASS, SAL = t + 8, t + 9, t + 10
    a('s_waitcnt vmcnt(0)')
    srd(a, SZ, S.WS, WS_ZB, 2 * 32 * 256 * 128)
    srd(a, SW, S.WS, WS_WP, 32 * 512 * 128)
    srd(a, SY, S.WS, WS_YT, 512 * 4096)
    a(f'v_lshrrev_b32 v{T}, 3, v{L}'); a(f'v_and_b32 v{T+1}, 7, v{L}')
    a(f'v_xor_b32 v{T+2}, v{T+1}, v{T}')
    a(f'v_lshrrev_b32 v{T+3}, 1, v{T}'); a(f'v_xor_b32 v{T+3}, v{T+1}, v{T+3}')
    a(f'v_lshlrev_b32 v{T}, 7, v{T}')
    a(f's_lshr_b32 s{t}, s{S.WAVE}, 1'); a(f's_lshl_b32 s{t}, s{t}, 5'); a(f's_add_u32 s{t}, s{t}, s{S.GRP}'); a(f's_lshl_b32 s{t}, s{t}, 15')
    a(f's_and_b32 s{t+1}, s{S.WAVE}, 1'); a(f's_lshl_b32 s{t+1}, s{t+1}, 14'); a(f's_add_u32 s{t}, s{t}, s{t+1}')
    a(f's_lshl_b32 s{t+2}, s{S.WAVE}, 14')
    for n in range(16):
        a(f'v_xor_b32 v{T+4}, {n & 7}, v{T+2}'); a(f'v_lshl_add_u32 v{T+4}, v{T+4}, 4, v{T}')
        a(f's_add_u32 m0, s{t+2}, {LDS_Z + n*1024}'); a(f's_add_u32 s{t+3}, s{t}, {n*1024}')
        a(f'buffer_load_dwordx4 v{T+4}, s[{SZ}:{SZ+3}], s{t+3} offen {CFG["dmod"]} lds')
    hz = a.mark()
    a(f's_lshl_b32 s{t}, s{S.GRP}, 16'); a(f's_add_u32 s{t}, s{t}, s{t+2}')
    for n in range(16):
        a(f'v_xor_b32 v{T+4}, {4*(n&1)}, v{T+3}'); a(f'v_lshl_add_u32 v{T+4}, v{T+4}, 4, v{T}')
        a(f's_add_u32 m0, s{t+2}, {LDS_W + n*1024}'); a(f's_add_u32 s{t+3}, s{t}, {n*1024}')
        a(f'buffer_load_dwordx4 v{T+4}, s[{SW}:{SW+3}], s{t+3} offen {CFG["dmod"]} lds')
    a(f'v_lshrrev_b32 v{T}, 5, v{L}'); a(f'v_bfe_u32 v{T+1}, v{L}, 2, 2'); a(f'v_lshl_add_u32 v{T}, v{T}, 2, v{T+1}')
    a(f'v_bfe_u32 v{T+1}, v{L}, 4, 1'); a(f'v_and_b32 v{T+2}, 3, v{L}'); a(f'v_lshl_add_u32 v{T+1}, v{T+1}, 2, v{T+2}')
    a(f'v_xor_b32 v{T+2}, v{T}, v{T+1}'); a(f'v_xor_b32 v{T+2}, s{S.WAVE}, v{T+2}'); a(f'v_lshlrev_b32 v{T+2}, 4, v{T+2}')
    a(f'v_lshl_add_u32 v{T}, v{T}, 3, v{T+1}'); a(f'v_lshl_add_u32 v{F.RZ0}, v{T}, 7, v{T+2}')
    a(f'v_bfe_u32 v{T}, v{L}, 1, 3'); a(f'v_xor_b32 v{T}, s{S.WAVE}, v{T}'); a(f'v_lshlrev_b32 v{T}, 4, v{T}')
    a(f'v_lshl_add_u32 v{F.RW}, v{L}, 7, v{T}'); a(f'v_add_u32 v{F.RW}, {LDS_W}, v{F.RW}')
    a(f's_lshl_b32 s{KAP}, s{S.GRP}, 3'); a(f's_add_u32 s{KAP}, s{KAP}, s{S.WAVE}')
    a(f's_lshl_b32 s{t}, s{KAP}, 13')
    a(f'v_and_b32 v{T}, 15, v{L}'); a(f'v_lshlrev_b32 v{T}, 6, v{T}')
    a(f'v_bfe_u32 v{T+1}, v{L}, 4, 1'); a(f'v_lshl_add_u32 v{T}, v{T+1}, 5, v{T}')
    a(f'v_lshrrev_b32 v{T+1}, 5, v{L}'); a(f'v_lshl_add_u32 v{T}, v{T+1}, 4, v{T}')
    a(f'v_add_u32 v{F.VY}, s{t}, v{T}')
    a(f's_add_u32 s{SAL}, s{S.WS}, {WS_AL}'); a(f's_addc_u32 s{SAL+1}, s{S.WS+1}, 0')
    a(f's_mov_b32 s{PASS}, 0')
    a.wait_vm(hz)
    a('s_barrier')
    stamp(a, 7, T)
    col = a.label('fftcol')
    a(f'{col}:')
    stamp(a, 12, T)
    for p in range(2):
        for c in range(2):
            for b in range(2):
                for q in range(2):
                    r = (F.AI[p] if c else F.AR[p]) + 4*b + 2*q
                    a(f'ds_read_b64_tr_b16 v[{r}:{r+1}], v{F.RZ0} offset:{p*32768 + (16*b+8*q)*8*128 + 8*c}')
        if p == 0: pass
    a('s_waitcnt lgkmcnt(8)')
    for m in stage_mfmas(0, 'A', False): a(m)
    wok = a.label('wok')
    a(f's_cmp_lg_u32 s{PASS}, 0'); a(f's_cbranch_scc1 {wok}')
    a('s_waitcnt vmcnt(0)'); a('s_barrier')
    a(f'{wok}:')
    a('s_waitcnt lgkmcnt(0)')
    for p in range(2):
        for i in range(4):
            a(f'ds_read_b128 v[{F.W[p]+4*i}:{F.W[p]+4*i+3}], v{F.RW} offset:{p*32768 + i*8192}')
    a('s_nop 3')
    merge(a, twiddle_valu(0, False), stage_mfmas(1, 'A', False))
    merge(a, twiddle_valu(1, False), stage_mfmas(0, 'B', False))
    a('s_waitcnt lgkmcnt(0)')
    sp, jn = a.label('spec'), a.label('join')
    a(f's_cmp_eq_u32 s{KAP}, 0'); a(f's_cbranch_scc1 {sp}')
    merge(a, filter_valu(0), stage_mfmas(1, 'B', False))
    merge(a, filter_valu(1), stage_mfmas(0, 'A', True))
    a(f's_branch {jn}')
    a(f'{sp}:')
    for m in stage_mfmas(1, 'B', False): a(m)
    filter_special(a, 0, SAL)
    for m in stage_mfmas(0, 'A', True): a(m)
    filter_special(a, 1, SAL)
    a('s_nop 7'); a('s_nop 3')
    a(f'{jn}:')
    merge(a, twiddle_valu(0, True), stage_mfmas(1, 'A', True))
    merge(a, twiddle_valu(1, True), stage_mfmas(0, 'A', True))
    a('s_nop 1')
    for m in stage_mfmas(1, 'A', True): a(m)
    a('s_nop 7'); a('s_nop 3')
    ER, EI, DR, DI = F.DR[0], F.DI[0], F.DR[1], F.DI[1]
    for n in range(0, 16, 2):
        r_, i_, c, s_ = DR + n, DI + n, F.UC + n, F.US + n
        a(f'v_pk_mul_f32 {PP(T)}, {PP(r_)}, {PP(c)}'); a(f'v_pk_mul_f32 {PP(T+2)}, {PP(i_)}, {PP(c)}')
        a(f'v_pk_fma_f32 {PP(T)}, {PP(i_)}, {PP(s_)}, {PP(T)} neg_lo:[1,0,0] neg_hi:[1,0,0]')
        a(f'v_pk_fma_f32 {PP(T+2)}, {PP(r_)}, {PP(s_)}, {PP(T+2)}')
        a(f'v_pk_add_f32 {PP(r_)}, {PP(ER+n)}, {PP(T)} neg_lo:[0,1] neg_hi:[0,1]')
        a(f'v_pk_add_f32 {PP(i_)}, {PP(EI+n)}, {PP(T+2)} neg_lo:[0,1] neg_hi:[0,1]')
        a(f'v_pk_add_f32 {PP(ER+n)}, {PP(ER+n)}, {PP(T)}'); a(f'v_pk_add_f32 {PP(EI+n)}, {PP(EI+n)}, {PP(T+2)}')
    outs = [(ER, 0, 0), (DR, 0, 2048), (EI, 1, 0), (DI, 1, 2048)]
    a(f's_movk_i32 s{t}, 0x1000')
    for n_, (src, c, hi) in enumerate(outs):
        a('s_nop 1')
        for pp in range(2):
            for j in range(4): a(f'v_permlane32_swap_b32 v{src+8*pp+j}, v{src+8*pp+4+j}')
        o = (F.AR[0], F.AI[0], F.AR[1], F.AI[1])[n_]
        for pp in range(2):
            for jj in range(4): a(f'v_cvt_pk_bf16_f32 v{o+4*pp+jj}, v{src+8*pp+2*jj}, v{src+8*pp+2*jj+1}')
        a('s_nop 1')
        for k in range(4): a(f'v_permlane16_swap_b32 v{o+k}, v{o+4+k}')
        so = f's{t}' if c else '0'
        a.lines.append(f'buffer_store_dwordx4 v[{o}:{o+3}], v{F.VY}, s[{SY}:{SY+3}], {so} offen offset:{hi} sc1')
        a.lines.append(f'buffer_store_dwordx4 v[{o+4}:{o+7}], v{F.VY}, s[{SY}:{SY+3}], {so} offen offset:{hi + 1024} sc1')
    a(f'v_xor_b32 v{F.RZ0}, 64, v{F.RZ0}'); a(f'v_xor_b32 v{F.RW}, 64, v{F.RW}')
    a(f'v_add_u32 v{F.VY}, {4*8192}, v{F.VY}'); a(f's_add_u32 s{KAP}, s{KAP}, 4')
    a(f's_add_u32 s{PASS}, s{PASS}, 1'); a(f's_cmp_lt_u32 s{PASS}, 2'); a(f's_cbranch_scc1 {col}')
    stamp(a, 13, T)
    a('s_waitcnt vmcnt(0)')
    a('s_barrier')
    publish(a, [f's_lshl_b32 s{t}, s{S.GRP}, 7', f's_add_u32 s{t}, s{t}, {WS_F3}'], t, T)
    stamp(a, 8, T)

def gemm2(a):
    L, T, t = V.LANE, V.T, S.T
    a(f'v_and_b32 v{L}, 63, v0')
    read_addresses(a)
    srd(a, S.A, S.WS, WS_GT, 2304 * 1024)
    a(f's_lshl_b32 s{t+1}, s{S.DT}, 7')
    dma_offsets(a, V.P0, V.P1, 1024, t + 1)
    a(f's_mul_i32 s{S.SOA}, s{S.WAVE}, {16*1024}')
    a(f's_lshl_b32 s{t}, s{S.ROT4}, 16'); a(f's_add_u32 s{S.SOA2}, s{S.SOA}, s{t}'); a(f's_add_u32 s{S.SOA2}, s{S.SOA2}, {28*65536}')
    a(f's_lshl_b32 s{t}, s{S.ROT3}, 16'); a(f's_add_u32 s{S.SOA}, s{S.SOA}, s{t}')
    srd(a, S.C, S.WS, WS_YT, 512 * 4096)
    a(f's_lshl_b32 s{t+1}, s{S.ST}, 7')
    dma_offsets(a, V.Q0, V.Q1, 4096, t + 1)
    a(f's_mul_i32 s{S.SOB}, s{S.WAVE}, {16*4096}')
    a(f's_lshl_b32 s{t}, s{S.ROT4}, 18'); a(f's_add_u32 s{S.SOB}, s{S.SOB}, s{t}')
    V_XO, V_X, V_B2 = 50, 52, 60
    a(f's_lshr_b32 s{t}, s{S.WAVE}, 1'); a(f's_lshl_b32 s{t}, s{t}, 5'); a(f's_lshl_b32 s{t+1}, s{S.ST}, 6'); a(f's_add_u32 s{t}, s{t}, s{t+1}')
    a(f'v_and_b32 v{T}, 31, v{L}'); a(f'v_add_u32 v{T}, s{t}, v{T}'); a(f'v_lshlrev_b32 v{T+1}, 1, v{T}')
    a('s_waitcnt vmcnt(0)')
    a(f'global_load_ushort v{V_B2}, v{T+1}, s[{S.B2}:{S.B2+1}]')
    a(f's_and_b32 s{t}, s{S.WAVE}, 1'); a(f's_lshl_b32 s{t}, s{t}, 6'); a(f's_lshl_b32 s{t+1}, s{S.DT}, 7'); a(f's_add_u32 s{t}, s{t}, s{t+1}')
    a(f'v_lshrrev_b32 v{T+1}, 5, v{L}'); a(f'v_lshlrev_b32 v{T+1}, 4, v{T+1}')
    a(f'v_lshl_add_u32 v{V_XO}, v{T}, 10, v{T+1}'); a(f'v_add_u32 v{V_XO}, s{t}, v{V_XO}')
    a(f'global_load_dwordx4 v[{V_X}:{V_X+3}], v{V_XO}, s[{S.X}:{S.X+1}]')
    a(f'global_load_dwordx4 v[{V_X+4}:{V_X+7}], v{V_XO}, s[{S.X}:{S.X+1}] offset:32')
    VF, VFA = 62, 63
    a(f'v_min_u32 v{VFA}, 31, v{L}'); a(f'v_lshlrev_b32 v{VFA}, 7, v{VFA}'); a(f'v_add_u32 v{VFA}, {WS_F3}, v{VFA}')
    groups = [([f's_lshl_b32 s{t}, s{S.DT}, 12', f's_add_u32 s{t}, s{t}, {WS_F2}'], 28)]
    if not CFG['split3']: groups.append(([f's_mov_b32 s{t}, {WS_F3}'], 32))
    poll(a, groups, 128)
    stamp(a, 9, T)
    hf = {}
    def sample(a):
        a(f'global_load_dword v{VF}, v{VFA}, s[{S.WS}:{S.WS+1}] sc1'); hf['h'] = a.mark()
    def check(a):
        ok, lp = a.label('y_ok'), a.label('y_poll')
        a.wait_vm(hf['h'])
        a(f's_mov_b32 s{t+1}, 0')
        a(f'{lp}:')
        a(f'v_cmp_eq_u32 vcc, s{S.NONCE}, v{VF}')
        a('s_nop 4')
        a('s_cmp_eq_u64 vcc, -1'); a(f's_cbranch_scc1 {ok}')
        a.lines.append(f'global_load_dword v{VF}, v{VFA}, s[{S.WS}:{S.WS+1}] sc1')
        a('s_waitcnt vmcnt(0)')
        a(f's_add_u32 s{t+1}, s{t+1}, 1'); a(f's_cmp_lt_u32 s{t+1}, {CFG["spin"]}'); a(f's_cbranch_scc1 {lp}')
        a(f'{ok}:')
    steps = []
    for u in range(36):
        if u < 28: it = [(0, V.P0, V.P1, S.A, S.SOA, 1024, CFG['dmod'], (28*65536, 28*65536))]
        else: it = [(0, V.P0, V.P1, S.A, S.SOA2, 1024, CFG['dmod'], (36*65536, 8*65536)), (1, V.Q0, V.Q1, S.C, S.SOB, 4096, CFG['dmod'], (8*262144, 8*262144))]
        steps.append(dict(items=it, q=u if u < 28 else None))
    if CFG['split3']:
        steps[CFG['samp3']]['before_issue'] = sample
        steps[28]['before_issue'] = check
    stream_loop(a, steps, CFG.get('depth3', 12))
    stamp(a, 10, T)
    reduce_partials(a)
    VD = V.VD
    a(f'v_lshlrev_b32 v{V_B2}, 16, v{V_B2}')
    for i in range(16): a(f'v_add_f32 v{VD+i}, v{VD+i}, v{V_B2}')
    a('s_nop 1')
    for p in range(2):
        for j in range(4): a(f'v_permlane32_swap_b32 v{VD+8*p+j}, v{VD+8*p+4+j}')
    for p in range(2):
        for jj in range(4):
            xr = V_X + 4*p + jj
            d0 = VD + 8*p + 2*jj; d1 = d0 + 1
            a(f'v_lshlrev_b32 v{T}, 16, v{xr}'); a(f'v_and_b32 v{T+1}, 0xffff0000, v{xr}')
            a(f'v_add_f32 v{d0}, v{d0}, v{T}'); a(f'v_add_f32 v{d1}, v{d1}, v{T+1}')
            a(f'v_cvt_pk_bf16_f32 v{xr}, v{d0}, v{d1}')
    a(f'global_store_dwordx4 v{V_XO}, v[{V_X}:{V_X+3}], s[{S.OUT}:{S.OUT+1}]')
    a(f'global_store_dwordx4 v{V_XO}, v[{V_X+4}:{V_X+7}], s[{S.OUT}:{S.OUT+1}] offset:32')
    if CFG['stamps']:
        a('s_waitcnt vmcnt(0)')
        stamp(a, 11, T)

def mega(a, name):
    kernel_begin(a, name)
    end, fft, p3 = a.label('end'), a.label('fft'), a.label('p3')
    L, T, t = V.LANE, V.T, S.T
    a('s_cmp_ge_u32 s2, 256'); a(f's_cbranch_scc1 {end}')
    a('s_load_dwordx16 s[4:19], s[0:1], 0')
    a('s_load_dwordx4 s[20:23], s[0:1], 64')
    a('s_load_dwordx2 s[24:25], s[0:1], 80')
    a('v_lshrrev_b32 v1, 6, v0')
    a(f's_and_b32 s{S.XCD}, s2, 7'); a(f's_lshr_b32 s{S.J}, s2, 3')
    a(f'v_readfirstlane_b32 s{S.WAVE}, v1')
    a(f'v_and_b32 v{L}, 63, v0')
    a(f's_and_b32 s{t}, s{S.XCD}, 1'); a(f's_lshl_b32 s{t}, s{t}, 2'); a(f's_and_b32 s{t+1}, s{S.J}, 3'); a(f's_add_u32 s{S.DT}, s{t}, s{t+1}')
    a(f's_lshr_b32 s{t}, s{S.XCD}, 1'); a(f's_lshr_b32 s{t+2}, s{S.J}, 2')
    a(f's_lshl_b32 s{t+3}, s{t}, 3'); a(f's_add_u32 s{S.ST}, s{t+3}, s{t+2}')
    a(f's_mul_i32 s{t+3}, s{t}, 7'); a(f's_add_u32 s{S.FT}, s{t+3}, s{t+2}')
    a(f's_lshl_b32 s{t+3}, s{S.XCD}, 2'); a(f's_add_u32 s{S.GRP}, s{t+3}, s{t+1}')
    a(f's_mul_i32 s{S.RING}, s{S.WAVE}, {RINGB}')
    if CFG['rot']:
        a(f's_lshl_b32 s{t+4}, s{t+1}, 3'); a(f's_mul_i32 s{t+5}, s{t+2}, 5'); a(f's_add_u32 s{t+4}, s{t+4}, s{t+5}'); a(f's_and_b32 s{S.ROT1}, s{t+4}, 31')
        a(f's_mul_i32 s{t+4}, s{t+1}, 7'); a(f's_mul_i32 s{t+5}, s{t+2}, 7'); a(f's_lshr_b32 s{t+5}, s{t+5}, 1'); a(f's_add_u32 s{t+4}, s{t+4}, s{t+5}')
        a(f's_cmp_ge_u32 s{t+4}, 28'); a(f's_cselect_b32 s{t+5}, 28, 0'); a(f's_sub_u32 s{S.ROT3}, s{t+4}, s{t+5}')
        a(f's_lshl_b32 s{t+4}, s{t+1}, 1'); a(f's_add_u32 s{t+4}, s{t+4}, s{t+2}'); a(f's_and_b32 s{S.ROT4}, s{t+4}, 7')
    else:
        for r in (S.ROT1, S.ROT3, S.ROT4): a(f's_mov_b32 s{r}, 0')
    a('s_waitcnt lgkmcnt(0)')
    stamp(a, 0, T)
    if CFG.get('clk'):
        a('s_memtime s[80:81]'); a('s_memrealtime s[82:83]'); a('s_waitcnt lgkmcnt(0)')
    if CFG.get('echo'):
        a('s_memrealtime s[82:83]'); a('s_waitcnt lgkmcnt(0)')
    nn = a.label('nn')
    a(f's_or_b32 s{t}, s2, s{S.WAVE}'); a(f's_cmp_lg_u32 s{t}, 0'); a(f's_cbranch_scc1 {nn}')
    a(f's_memrealtime s[{t}:{t+1}]'); a('s_waitcnt lgkmcnt(0)'); a(f's_or_b32 s{t}, s{t}, 1')
    a(f'v_mov_b32 v{T}, s{t}'); a(f'v_mov_b32 v{T+1}, 0')
    a('s_mov_b64 exec, 1')
    a.lines.append(f'global_store_dword v{T+1}, v{T}, s[{S.DBG}:{S.DBG+1}] sc1')
    a('s_mov_b64 exec, -1')
    a(f'{nn}:')
    STR64 = t + 14
    read_addresses(a)
    a(f's_cmp_ge_u32 s{S.J}, 28')
    a(f's_cselect_b32 s{S.B}, s{S.W2}, s{S.W1}'); a(f's_cselect_b32 s{S.B+1}, s{S.W2+1}, s{S.W1+1}')
    a(f's_mov_b32 s{S.B+2}, {2048*3584}'); a(f's_mov_b32 s{S.B+3}, 0x20000')
    a(f's_cselect_b32 s{t+1}, s{S.ST}, s{S.FT}'); a(f's_movk_i32 s{t+2}, 3584'); a(f's_cselect_b32 s{t+2}, 4096, s{t+2}')
    a(f's_lshl_b32 s{t+1}, s{t+1}, 7'); a(f's_mov_b32 s{PF_COL}, s{t+1}')
    a(f's_lshl_b32 s{STR64}, s{t+2}, 6')
    a(f'v_lshrrev_b32 v{T}, 3, v{L}'); a(f'v_and_b32 v{T+1}, 7, v{L}'); a(f'v_lshlrev_b32 v{T+2}, 1, v{T}'); a(f'v_and_b32 v{T+2}, 4, v{T+2}')
    a(f'v_xor_b32 v{T+1}, v{T+1}, v{T+2}'); a(f'v_lshlrev_b32 v{T+1}, 4, v{T+1}')
    a(f'v_mad_u32_u24 v{V.Q0}, v{T}, s{t+2}, v{T+1}'); a(f'v_add_u32 v{V.Q0}, s{t+1}, v{V.Q0}')
    a(f's_lshl_b32 s{t+3}, s{t+2}, 3'); a(f's_sub_u32 s{t+3}, s{t+3}, 1024'); a(f'v_add_u32 v{V.Q1}, s{t+3}, v{V.Q0}')
    a(f's_mul_i32 s{S.SOB}, s{S.WAVE}, s{t+2}'); a(f's_lshl_b32 s{S.SOB}, s{S.SOB}, 4')
    a(f's_cmp_ge_u32 s{S.J}, 28'); a(f's_cselect_b32 s{t+4}, s{S.ROT3}, s{S.ROT1}')
    a(f's_mul_i32 s{t+4}, s{t+4}, s{STR64}'); a(f's_add_u32 s{S.SOB}, s{S.SOB}, s{t+4}')
    pre = Preload(32, PRE_SRD, f's{STR64}', CFG['wmod'], range(NRING), wrap=(7340032, 7340032))
    for j in range(4): a(f's_mov_b32 s{PRE_SRD+j}, s{S.B+j}')
    phase1(a, pre)
    pre.drain(a)
    nc = a.label('noc')
    a(f's_cmp_lt_u32 s{S.J}, 28'); a(f's_cbranch_scc1 {nc}')
    fft_consts(a)
    a(f'{nc}:')
    stamp(a, 5, 244)
    poll(a, [([f's_mov_b32 s{t}, {WS_F1}'], 256)], 128)
    stamp(a, 6, 244)
    a(f's_cmp_ge_u32 s{S.J}, 28'); a(f's_cbranch_scc1 {fft}')
    gemm1(a)
    a(f's_branch {p3}')
    a(f'{fft}:')
    fft_role(a)
    a(f'{p3}:')
    gemm2(a)
    if CFG.get('echo'):
        lp = a.label('echo')
        if CFG['echo'] == 11:
            a('s_waitcnt vmcnt(0)'); a('s_memrealtime s[84:85]'); a('s_waitcnt lgkmcnt(0)'); a('s_sub_u32 s84, s84, s82')
        a('s_memrealtime s[88:89]'); a('s_waitcnt lgkmcnt(0)')
        a(f'{lp}:')
        a('s_memrealtime s[90:91]'); a('s_waitcnt lgkmcnt(0)'); a('s_sub_u32 s90, s90, s88')
        a('s_cmp_lt_u32 s90, s84'); a(f's_cbranch_scc1 {lp}')
    if CFG.get('delay'):
        lp = a.label('dly')
        a('s_memtime s[88:89]'); a('s_waitcnt lgkmcnt(0)')
        a(f'{lp}:')
        a('s_memtime s[90:91]'); a('s_waitcnt lgkmcnt(0)'); a('s_sub_u32 s90, s90, s88')
        a(f's_cmp_lt_u32 s90, {CFG["delay"]}'); a(f's_cbranch_scc1 {lp}')
    if CFG.get('clk'):
        sk = a.label('clk')
        a('s_waitcnt vmcnt(0)')
        a('s_memtime s[84:85]'); a('s_memrealtime s[86:87]'); a('s_waitcnt lgkmcnt(0)')
        a('s_sub_u32 s84, s84, s80'); a('s_sub_u32 s86, s86, s82')
        a(f's_and_b32 s{t}, s2, 63'); a(f's_or_b32 s{t}, s{t}, s{S.WAVE}'); a(f's_cmp_lg_u32 s{t}, 0'); a(f's_cbranch_scc1 {sk}')
        a('s_mov_b64 exec, 1')
        a('v_mov_b32 v2, s84'); a('v_mov_b32 v3, s86'); a('s_lshr_b32 s84, s2, 6'); a('s_lshl_b32 s84, s84, 3'); a('s_add_u32 s84, s84, 8'); a('v_mov_b32 v4, s84')
        a(f'global_store_dwordx2 v4, v[2:3], s[{S.DBG}:{S.DBG+1}]')
        a(f'{sk}:')
    a(f'{end}:')
    a('s_endpgm')

PRE_SRD = 76
PF_COL = 92

def tables(a):
    tb.emit(a, 'tab_k1', tb.f32mat('c') + tb.f32mat('ns') + tb.t512() + tb.a2())
    tb.emit(a, 'tab_fft', tb.f32mat('c') + tb.f32mat('s') + tb.f32mat('ns') + tb.t1024() + tb.t2048())

KNAME = 'parallel_sum__spectral_gfnet__mixer_token_mlp__prompt_kernel'
def make(path, **cfg):
    CFG.update(dict(split3=1, samp3=18, rot=1, dmod='', mid=8, pf1=1, stamps=0, early=0, inmod='nt', wmod='nt', wmod2='', spin=1 << 18, pf2=1, depth1=12, depth3=12))
    CFG.update(cfg)
    a = Em()
    a(HEADER + f'; @launch grid=(256,1,1) block=(256,1,1) lds={LDS_TOTAL}\n' + '.amdgcn_target "amdgcn-amd-amdhsa--gfx950"\n.text')
    mega(a, KNAME)
    a('.section .rodata,"a"\n.p2align 6')
    a(descriptor(KNAME, 256, 256))
    open(path, 'w').write(a.text())
    build(path, [(KNAME, (256, 1, 1), (256, 1, 1), LDS_TOTAL)])

if __name__ == '__main__':
    o = dict(x.split('=') for x in sys.argv[2:])
    cfg = {k: (int(v) if v.lstrip('-').isdigit() else v.replace('_', ' ')) for k, v in o.items()}
    make(sys.argv[1], **cfg)
```

```python
import sys, struct
from asm2 import *
import tables as tb

WS_BASE = 0
WS_H    = WS_BASE + 0x000000
WS_GT   = WS_BASE + 0x200000
WS_FINV = WS_GT + 1792 * 1024
WS_ZB   = WS_BASE + 0x480000
WS_WP   = WS_BASE + 0x680000
WS_AL   = WS_BASE + 0x880000
WS_BE   = WS_BASE + 0x882000
WS_F1   = WS_BASE + 0x890000
WS_F2   = WS_BASE + 0x898000
WS_F3   = WS_BASE + 0x8A0000
WS_YT   = WS_BASE + 0x900000
WS_STAMP = 0x10000000 - (16 << 20)
NSLOT = 16

NRING = 18
RINGB = NRING * 2048
LDS_EX = 4 * RINGB
LDS_TOTAL = LDS_EX + 16384
LDS_Z, LDS_W, LDS_X = 0, 65536, 131072

class S:
    WAVE = 3
    X, WR, WI, BX, W1, B1, W2, B2, OUT, DBG, WS = 4, 6, 8, 10, 12, 14, 16, 18, 20, 22, 24
    NONCE, XCD, J, RING = 26, 27, 28, 29
    DT, FT, ST, GRP = 30, 31, 32, 33
    ROT1, ROT3, ROT4, SOA2 = 94, 95, 96, 97
    A, B, C, D = 36, 40, 44, 48
    SOA, SOB = 52, 53
    TAB = 54
    T = 56
    STMP = 72

CFG = dict(stamps=0, early=12, inmod='nt', wmod='nt', spin=1 << 18)

def fb(x): return '0x%08x' % struct.unpack('<I', struct.pack('<f', x))[0]

def srd(a, s, base, off, size):
    with a.atomic():
        if off:
            a(f's_add_u32 s{s}, s{base}, {off}'); a(f's_addc_u32 s{s+1}, s{base+1}, 0')
        else:
            a(f's_mov_b32 s{s}, s{base}'); a(f's_mov_b32 s{s+1}, s{base+1}')
        a(f's_mov_b32 s{s+2}, {size}'); a(f's_mov_b32 s{s+3}, 0x20000')

def stamp(a, slot, vt):
    if CFG.get('echo') == slot:
        with a.atomic():
            a('s_memrealtime s[84:85]'); a('s_waitcnt lgkmcnt(0)'); a('s_sub_u32 s84, s84, s82')
    if not CFG['stamps']: return
    st = S.STMP
    skip = a.label('stamp')
    old = a.in_bg; a.in_bg = True
    a(f's_memrealtime s[{st}:{st+1}]')
    a(f'v_cmp_eq_u32 vcc, 0, v0')
    a(f's_and_saveexec_b64 s[{st+2}:{st+3}], vcc')
    a(f's_waitcnt lgkmcnt(0)')
    a(f's_cbranch_execz {skip}')
    a(f'v_mov_b32 v{vt}, s{st}'); a(f'v_mov_b32 v{vt+1}, s{st+1}')
    a(f's_mul_i32 s{st}, s2, {NSLOT*8}'); a(f's_add_u32 s{st}, s{st}, {WS_STAMP + slot*8}')
    a(f'v_mov_b32 v{vt+2}, s{st}')
    a.lines.append(f'global_store_dwordx2 v{vt+2}, v[{vt}:{vt+1}], s[{S.WS}:{S.WS+1}]')
    a(f'{skip}:')
    a(f's_mov_b64 exec, s[{st+2}:{st+3}]')
    a.in_bg = old
    a.nobg('s_waitcnt vmcnt(0)') if CFG['stamps'] == 2 else None

def table_base(a, s, label):
    l = a.label('pc')
    a(f's_getpc_b64 s[{s}:{s+1}]'); a(f'{l}:')
    a(f's_add_u32 s{s}, s{s}, {label}-{l}'); a(f's_addc_u32 s{s+1}, s{s+1}, 0')

def table_load(a, s, voff, dsts, g0=0):
    cur = 0
    for n, dst in enumerate(dsts):
        g = g0 + n
        while g * 1024 - cur >= 4096:
            a(f'v_add_u32 v{voff}, 4096, v{voff}'); cur += 4096
        a(f'global_load_dwordx4 {dst}, v{voff}, s[{s}:{s+1}] offset:{g*1024-cur}')

def publish(a, off_expr_lines, s_off, vt):
    skip = a.label('pub')
    a(f's_cmp_lg_u32 s{S.WAVE}, 0'); a(f's_cbranch_scc1 {skip}')
    for l in off_expr_lines: a(l)
    a('s_mov_b64 exec, 1')
    a(f'v_mov_b32 v{vt}, s{S.NONCE}'); a(f'v_mov_b32 v{vt+1}, s{s_off}')
    a.lines.append(f'global_store_dword v{vt+1}, v{vt}, s[{S.WS}:{S.WS+1}] sc1')
    a('s_mov_b64 exec, -1')
    a(f'{skip}:')

def poll(a, groups, vt):
    skip, loop, ok = a.label('poll_skip'), a.label('poll'), a.label('poll_ok')
    T = S.T
    a(f's_cmp_lg_u32 s{S.WAVE}, 0'); a(f's_cbranch_scc1 {skip}')
    loads = []
    nv = 0
    for (lines, count) in groups:
        for l in lines: a(l)
        for c0 in range(0, count, 64):
            n = min(64, count - c0)
            va = vt + 2 * nv
            a(f'v_and_b32 v{va}, 63, v0')
            if n < 64: a(f'v_min_u32 v{va}, {n-1}, v{va}')
            a(f'v_lshlrev_b32 v{va}, 7, v{va}')
            a(f'v_add_u32 v{va}, s{T}, v{va}')
            if c0: a(f'v_add_u32 v{va}, {c0*128}, v{va}')
            loads.append(va); nv += 1
    a(f's_mov_b32 s{T+1}, 0')
    a(f'{loop}:')
    for va in loads:
        a.lines.append(f'global_load_dword v{va+1}, v{va}, s[{S.WS}:{S.WS+1}] sc1')
    a('s_waitcnt vmcnt(0)')
    first = True
    for va in loads:
        a(f'v_xor_b32 v{va+1}, s{S.NONCE}, v{va+1}')
        if not first: a(f'v_or_b32 v{loads[0]+1}, v{loads[0]+1}, v{va+1}')
        first = False
    a(f'v_cmp_eq_u32 vcc, 0, v{loads[0]+1}')
    a('s_nop 4')
    a('s_cmp_eq_u64 vcc, -1'); a(f's_cbranch_scc1 {ok}')
    a(f's_add_u32 s{T+1}, s{T+1}, 1'); a(f's_cmp_lt_u32 s{T+1}, {CFG["spin"]}'); a(f's_cbranch_scc1 {loop}')
    a(f'{ok}:')
    a(f'{skip}:')
    a('s_barrier')

class V:
    LANE = 1
    P0, P1, Q0, Q1 = 2, 3, 4, 5
    RA0, RA1, RB0, RB1 = 6, 7, 8, 9
    FR = 12
    FQ = 28
    T = 44
    ACC = 64
    VD = 128

def dma_offsets(a, dst0, dst1, stride, s_col):
    L, T = V.LANE, V.T
    a(f'v_lshrrev_b32 v{T}, 3, v{L}'); a(f'v_and_b32 v{T+1}, 7, v{L}')
    a(f'v_lshlrev_b32 v{T+2}, 1, v{T}'); a(f'v_and_b32 v{T+2}, 4, v{T+2}')
    a(f'v_xor_b32 v{T+1}, v{T+1}, v{T+2}'); a(f'v_lshlrev_b32 v{T+1}, 4, v{T+1}')
    a(f's_mov_b32 s{S.T}, {stride}')
    a(f'v_mad_u32_u24 v{dst0}, v{T}, s{S.T}, v{T+1}')
    a(f'v_add_u32 v{dst0}, s{s_col}, v{dst0}')
    a(f'v_add_u32 v{dst1}, {8*stride-1024}, v{dst0}')

def read_addresses(a):
    L, T = V.LANE, V.T
    a(f'v_lshrrev_b32 v{T}, 5, v{L}'); a(f'v_lshlrev_b32 v{T}, 3, v{T}')
    a(f'v_bfe_u32 v{T+1}, v{L}, 2, 2'); a(f'v_add_u32 v{T}, v{T}, v{T+1}'); a(f'v_lshlrev_b32 v{T}, 7, v{T}')
    a(f'v_bfe_u32 v{T+2}, v{L}, 4, 1'); a(f'v_lshlrev_b32 v{T+2}, 5, v{T+2}')
    a(f'v_and_b32 v{T+3}, 3, v{L}'); a(f'v_lshl_add_u32 v{T+2}, v{T+3}, 3, v{T+2}')
    a(f'v_lshlrev_b32 v{T+1}, 5, v{T+1}'); a(f'v_and_b32 v{T+1}, 64, v{T+1}'); a(f'v_or_b32 v{T+2}, v{T+2}, v{T+1}')
    a(f'v_add3_u32 v{T}, v{T}, v{T+2}, s{S.RING}')
    a(f's_lshl_b32 s{S.T}, s{S.WAVE}, 6'); a(f's_and_b32 s{S.T}, s{S.T}, 64')
    a(f'v_xor_b32 v{V.RA0}, s{S.T}, v{T}'); a(f'v_xor_b32 v{V.RA1}, 64, v{V.RA0}')
    a(f's_lshl_b32 s{S.T}, s{S.WAVE}, 5'); a(f's_and_b32 s{S.T}, s{S.T}, 64')
    a(f'v_xor_b32 v{V.RB0}, s{S.T}, v{T}'); a(f'v_xor_b32 v{V.RB1}, 64, v{V.RB0}')

S_WRAP = 93
def dma_groups(slot, v0, v1, srd_, so, stride, mods, wrap=None):
    g0 = [f's_add_u32 m0, s{S.RING}, {slot*2048}', 's_nop 0',
          f'buffer_load_dwordx4 v{v0}, s[{srd_}:{srd_+3}], s{so} offen {mods} lds']
    g1 = [f'buffer_load_dwordx4 v{v1}, s[{srd_}:{srd_+3}], s{so} offen offset:1024 {mods} lds',
          f's_add_u32 s{so}, s{so}, {stride if isinstance(stride, str) else 64*stride}']
    if wrap:
        g1 += [f's_cmp_ge_u32 s{so}, {wrap[0]}', f's_cselect_b32 s{S_WRAP}, {wrap[1]}, 0', f's_sub_u32 s{so}, s{so}, s{S_WRAP}']
    return g0, g1

def tile_reads(a, slot, side, dst):
    if CFG.get('x_nods') and side == 0: return
    for t in range(2):
        ra = (V.RA0, V.RA1, V.RB0, V.RB1)[side * 2 + t]
        for q in range(2):
            a(f'ds_read_b64_tr_b16 {dst(t, q)}, v{ra} offset:{slot*2048 + q*512}')

def vpair(base): return lambda t, q: f'v[{base+4*t+2*q}:{base+4*t+2*q+1}]'
def apair(base): return lambda t, q: f'a[{base+4*t+2*q}:{base+4*t+2*q+1}]'

class Preload:
    def __init__(self, nsteps, srd_, stride, mods, slots, wrap=None):
        self.wrap = wrap
        self.n, self.srd, self.stride, self.mods, self.slots = nsteps, srd_, stride, mods, list(slots)
        self.issued = 0; self.done = 0; self.h = {}; self.slot = {}; self.free = list(slots)
    def issue_groups(self, k):
        out = []
        for _ in range(k):
            if self.issued >= self.n or not self.free: break
            u = self.issued; self.issued += 1
            sl = self.free.pop(0); self.slot[u] = sl
            g0, g1 = dma_groups(sl, V.Q0, V.Q1, self.srd, S.SOB, self.stride, self.mods, self.wrap)
            def mk(u, g1):
                def f(a):
                    for l in g1: a(l)
                    self.h[u] = a.mark()
                return f
            out += [g0, mk(u, g1)]
        return out
    def issue(self, a, k):
        for g in self.issue_groups(k):
            g(a) if callable(g) else [a(l) for l in g]
    def drain(self, a, upto=None, more_slots=()):
        self.free += list(more_slots)
        upto = self.n if upto is None else upto
        self.issue(a, len(self.free))
        pend = None
        while self.done < upto:
            u = self.done
            a.wait_vm(self.h[u])
            tile_reads(a, self.slot[u], 1, apair(8 * u))
            if pend is not None:
                a('s_waitcnt lgkmcnt(4)')
                self.free.append(self.slot[pend]); self.issue(a, 1)
            pend = u
            self.done += 1
        a('s_waitcnt lgkmcnt(0)')
        if pend is not None: self.free.append(self.slot[pend])

def mfma_step(fs, qreg):
    f = V.FR + 8 * fs
    out = []
    if CFG.get('x_nomfma'): return ['s_nop 0'] * 4
    if CFG.get('x_vq'): qreg = lambda nt: f'v[{V.FQ+4*nt}:{V.FQ+4*nt+3}]'
    for nt in range(2):
        for mt in range(2):
            acc = V.ACC + (nt * 2 + mt) * 16
            out.append(f'v_mfma_f32_32x32x16_bf16 v[{acc}:{acc+15}], v[{f+4*mt}:{f+4*mt+3}], {qreg(nt)}, v[{acc}:{acc+15}]')
    return out

def stream_loop(a, steps, depth, bg_extra=()):
    items = []
    for u, st in enumerate(steps):
        for it in st['items']: items.append((u, it))
    nxt = 0; free = list(range(NRING)); slot = {}; h = {}
    def issue_one():
        nonlocal nxt
        u, it = items[nxt]; key = (u, it[0]); nxt += 1
        sl = free.pop(0); slot[key] = sl
        hook = steps[u].get('before_issue')
        if hook and it is steps[u]['items'][0]: hook(a)
        g0, g1 = dma_groups(sl, it[1], it[2], it[3], it[4], it[5], it[6], it[7] if len(it) > 7 else None)
        for l in g0 + g1: a(l)
        h[key] = a.mark()
    def reads(u):
        fs = u % 2
        for it in steps[u]['items']:
            key = (u, it[0])
            if it[0] == 0: tile_reads(a, slot[key], 0, vpair(V.FR + 8 * fs))
            else: tile_reads(a, slot[key], 1, vpair(V.FQ + 8 * fs))
    def last_handle(u): return max(h[(u, it[0])] for it in steps[u]['items'])
    for i in range(64): a(f'v_mov_b32 v{V.ACC+i}, 0')
    inflight = lambda: NRING - len(free)
    while nxt < len(items) and inflight() < depth: issue_one()
    for g in bg_extra:
        g(a) if callable(g) else [a(l) for l in g]
    a.wait_vm(last_handle(0))
    reads(0)
    n = len(steps)
    for u in range(n):
        fs = u % 2
        q = steps[u]['q']
        qreg = (lambda nt, q=q: f'a[{8*q+4*nt}:{8*q+4*nt+3}]') if q is not None else (lambda nt, fs=fs: f'v[{V.FQ+8*fs+4*nt}:{V.FQ+8*fs+4*nt+3}]')
        m = mfma_step(fs, qreg)
        a('s_waitcnt lgkmcnt(0)')
        a(m[0])
        for it in steps[u]['items']: free.append(slot[(u, it[0])])
        while nxt < len(items) and inflight() < depth and free: issue_one()
        a(m[1])
        if u + 1 < n:
            a.wait_vm(last_handle(u + 1))
            reads(u + 1)
        a(m[2]); a(m[3])

def reduce_partials(a, bg=None):
    L, T = V.LANE, V.T
    a(f'v_lshlrev_b32 v{T}, 4, v{L}')
    a(f'v_add_u32 v{T+1}, s{S.RING}, v{T}')
    for t in range(1, 4):
        a(f's_xor_b32 s{S.T}, s{S.WAVE}, {t}'); a(f's_mul_i32 s{S.T}, s{S.T}, {RINGB}')
        a(f'v_add_u32 v{T+1+t}, s{S.T}, v{T}')
    a('s_nop 7')
    for t in range(1, 4):
        for i in range(4):
            r = V.ACC + t*16 + i*4
            a(f'ds_write_b128 v{T+1}, v[{r}:{r+3}] offset:{(t-1)*4096+i*1024}')
    a('s_waitcnt lgkmcnt(0)')
    a('s_barrier')
    for t in range(1, 4):
        for i in range(4):
            r = V.ACC + t*16 + i*4
            a(f'ds_read_b128 v[{r}:{r+3}], v{T+1+t} offset:{(t-1)*4096+i*1024}')
    a('s_waitcnt lgkmcnt(8)')
    for i in range(16): a(f'v_add_f32 v{V.VD+i}, v{V.ACC+i}, v{V.ACC+16+i}')
    a('s_waitcnt lgkmcnt(4)')
    for i in range(16): a(f'v_add_f32 v{V.VD+i}, v{V.VD+i}, v{V.ACC+32+i}')
    a('s_waitcnt lgkmcnt(0)')
    for i in range(16): a(f'v_add_f32 v{V.VD+i}, v{V.VD+i}, v{V.ACC+48+i}')


def ff(x): return fb(float(x))
def lane_floats(a, fa, fh, tmp):
    L = V.LANE
    a(f'v_and_b32 v{tmp}, 31, v{L}'); a(f'v_cvt_f32_u32 v{fa}, v{tmp}')
    a(f'v_lshrrev_b32 v{tmp}, 5, v{L}'); a(f'v_cvt_f32_u32 v{fh}, v{tmp}')

def gen_f32(a, fa, fh, C, S_, NS, tmp):
    st, ba = tmp, tmp + 1
    a(f'v_mul_f32 v{st}, {ff(1/32)}, v{fa}')
    a(f'v_mul_f32 v{ba}, v{fa}, v{fh}'); a(f'v_mul_f32 v{ba}, {ff(1/8)}, v{ba}')
    for b in range(2):
        for q in range(4):
            r = []
            for e in range(2):
                jj = 2*q + e; kb = 16*b + 8*(jj//4) + jj % 4
                a(f'v_fmamk_f32 v{tmp+2+e}, v{st}, {ff(kb)}, v{ba}')
            for e in range(2):
                a(f'v_sin_f32 v{tmp+4+e}, v{tmp+2+e}')
            for e in range(2):
                a(f'v_cos_f32 v{tmp+2+e}, v{tmp+2+e}')
            if S_ is not None: a(f'v_cvt_pk_bf16_f32 v{S_+4*b+q}, v{tmp+4}, v{tmp+5}')
            if NS is not None: a(f'v_cvt_pk_bf16_f32 v{NS+4*b+q}, -v{tmp+4}, -v{tmp+5}')
            a(f'v_cvt_pk_bf16_f32 v{C+4*b+q}, v{tmp+2}, v{tmp+3}')

def gen_twiddle(a, fa, fh, TC, TS, ns, den, tmp):
    st, ba = tmp, tmp + 1
    a(f'v_mul_f32 v{st}, {ff(1/den)}, v{fa}')
    a(f'v_mul_f32 v{ba}, v{fa}, v{fh}'); a(f'v_mul_f32 v{ba}, {ff(4/den)}, v{ba}')
    for i, n in enumerate(ns):
        a(f'v_fmamk_f32 v{TC+i}, v{st}, {ff(n)}, v{ba}')
        a(f'v_sin_f32 v{TS+i}, v{TC+i}'); a(f'v_cos_f32 v{TC+i}, v{TC+i}')

def gen_t2048(a, fa, fh, UC, US, tmp):
    a(f'v_mul_f32 v{tmp}, {ff(1/64)}, v{fa}'); a(f'v_fmamk_f32 v{tmp}, v{fh}, {ff(4/2048)}, v{tmp}')
    for i in range(4):
        for j in range(4):
            n = 4*i + j
            a(f'v_add_f32 v{UC+n}, {ff((8*i+j)/2048)}, v{tmp}')
            a(f'v_sin_f32 v{US+n}, v{UC+n}'); a(f'v_cos_f32 v{UC+n}, v{UC+n}')

def gen_a2(a, fh, A2R, A2I, tmp):
    L = V.LANE
    k2, c4, st, ba = tmp, tmp + 1, tmp + 2, tmp + 3
    a(f'v_bfe_u32 v{k2}, v{L}, 3, 2'); a(f'v_lshlrev_b32 v{k2}, 2, v{k2}')
    a(f'v_bfe_u32 v{c4}, v{L}, 2, 1'); a(f'v_lshl_add_u32 v{k2}, v{c4}, 1, v{k2}')
    a(f'v_bfe_u32 v{c4}, v{L}, 1, 1'); a(f'v_add_u32 v{k2}, v{k2}, v{c4}'); a(f'v_cvt_f32_u32 v{k2}, v{k2}')
    a(f'v_and_b32 v{c4}, 1, v{L}'); a(f'v_cvt_f32_u32 v{c4}, v{c4}'); a(f'v_mul_f32 v{c4}, 0x3e800000, v{c4}')
    a(f'v_mul_f32 v{st}, {ff(1/16)}, v{k2}')
    a(f'v_mul_f32 v{ba}, v{k2}, v{fh}'); a(f'v_fmamk_f32 v{ba}, v{ba}, {ff(1/4)}, v{c4}')
    for q in range(4):
        for e in range(2):
            jj = 2*q + e; nb = 8*(jj//4) + jj % 4
            a(f'v_fmamk_f32 v{tmp+4+e}, v{st}, {ff(nb)}, v{ba}')
        for e in range(2): a(f'v_sin_f32 v{tmp+6+e}, v{tmp+4+e}')
        for e in range(2): a(f'v_cos_f32 v{tmp+4+e}, v{tmp+4+e}')
        a(f'v_cvt_pk_bf16_f32 v{A2I+q}, v{tmp+6}, v{tmp+7}')
        a(f'v_cvt_pk_bf16_f32 v{A2R+q}, v{tmp+4}, v{tmp+5}')

def row_sum(a, v, t):
    for n in (8, 4, 2, 1):
        a('s_nop 1')
        a(f'v_add_f32_dpp v{v}, v{v}, v{v} row_ror:{n} row_mask:0xf bank_mask:0xf')
    a(f'v_mov_b32 v{t}, v{v}')
    a('s_nop 1')
    a(f'v_permlane32_swap_b32 v{v}, v{t}')
    a('s_nop 0')
    a(f'v_add_f32 v{v}, v{v}, v{t}')

def rbf(a, d, s):
    a(f'v_cvt_pk_bf16_f32 v{d}, v{s}, v{s}')
    a(f'v_lshlrev_b32 v{d}, 16, v{d}')

def layernorm(a, X, P, T, unpack):
    t0, t1, t2, t3 = T, T + 1, T + 2, T + 3
    Pp = lambda x: f'v[{x}:{x+1}]'
    a(f'v_pk_add_f32 {Pp(t0)}, {Pp(X)}, {Pp(X+2)}'); a(f'v_pk_add_f32 {Pp(t2)}, {Pp(X+4)}, {Pp(X+6)}')
    for i in (8, 12):
        a(f'v_pk_add_f32 {Pp(t0)}, {Pp(t0)}, {Pp(X+i)}'); a(f'v_pk_add_f32 {Pp(t2)}, {Pp(t2)}, {Pp(X+i+2)}')
    a(f'v_pk_add_f32 {Pp(t0)}, {Pp(t0)}, {Pp(t2)}')
    a(f'v_add_f32 v{t0}, v{t0}, v{t1}')
    row_sum(a, t0, t1)
    a(f'v_mul_f32 v{t0}, 0x3b000000, v{t0}')
    rbf(a, t2, t0)
    a(f'v_sub_f32 v{t3}, v{t0}, v{t2}')
    for i in range(0, 16, 2):
        a(f'v_pk_add_f32 {Pp(X+i)}, {Pp(X+i)}, {Pp(t2)} op_sel_hi:[1,0] neg_lo:[0,1] neg_hi:[0,1]')
    a(f'v_mul_f32 v{t3}, v{t3}, v{t3}')
    a(f'v_pk_mul_f32 {Pp(t0)}, {Pp(X)}, {Pp(X)}'); a(f'v_pk_mul_f32 {Pp(T+4)}, {Pp(X+2)}, {Pp(X+2)}')
    for i in range(4, 16, 4):
        a(f'v_pk_fma_f32 {Pp(t0)}, {Pp(X+i)}, {Pp(X+i)}, {Pp(t0)}'); a(f'v_pk_fma_f32 {Pp(T+4)}, {Pp(X+i+2)}, {Pp(X+i+2)}, {Pp(T+4)}')
    a(f'v_pk_add_f32 {Pp(t0)}, {Pp(t0)}, {Pp(T+4)}')
    a(f'v_add_f32 v{t0}, v{t0}, v{t1}')
    for n in (8, 4, 2, 1):
        a(f'v_cvt_pk_bf16_f32 v{P+2*[8,4,2,1].index(n)}, v{X+4*[8,4,2,1].index(n)}, v{X+4*[8,4,2,1].index(n)+1}')
        a(f'v_cvt_pk_bf16_f32 v{P+2*[8,4,2,1].index(n)+1}, v{X+4*[8,4,2,1].index(n)+2}, v{X+4*[8,4,2,1].index(n)+3}')
        a(f'v_add_f32_dpp v{t0}, v{t0}, v{t0} row_ror:{n} row_mask:0xf bank_mask:0xf')
    a(f'v_lshlrev_b32 v{X}, 16, v{P}')
    a(f'v_mov_b32 v{t1}, v{t0}')
    a(f'v_and_b32 v{X+1}, 0xffff0000, v{P}'); a(f'v_lshlrev_b32 v{X+2}, 16, v{P+1}')
    a(f'v_permlane32_swap_b32 v{t0}, v{t1}')
    a(f'v_and_b32 v{X+3}, 0xffff0000, v{P+1}')
    a(f'v_add_f32 v{t0}, v{t0}, v{t1}')
    a(f'v_fma_f32 v{t0}, v{t0}, v{T+6}, -v{t3}')
    a(f'v_max_f32 v{t0}, 0, v{t0}')
    rbf(a, t0, t0)
    a(f'v_add_f32 v{t0}, 0x3727c5ac, v{t0}')
    rbf(a, t0, t0)
    a(f'v_sqrt_f32 v{t0}, v{t0}')
    a(f'v_lshlrev_b32 v{X+4}, 16, v{P+2}')
    rbf(a, t0, t0)
    a(f'v_rcp_f32 v{t0}, v{t0}')
    a(f'v_and_b32 v{X+5}, 0xffff0000, v{P+2}')
    for q in range(3, 8):
        a(f'v_lshlrev_b32 v{X+2*q}, 16, v{P+q}'); a(f'v_and_b32 v{X+2*q+1}, 0xffff0000, v{P+q}')
    for i in range(0, 16, 2):
        a(f'v_pk_mul_f32 {Pp(X+i)}, {Pp(X+i)}, {Pp(t0)} op_sel_hi:[1,0]')
    for q in range(8):
        a(f'v_cvt_pk_bf16_f32 v{P+q}, v{X+2*q}, v{X+2*q+1}')
    if unpack:
        for q in range(8):
            a(f'v_lshlrev_b32 v{X+2*q}, 16, v{P+q}'); a(f'v_and_b32 v{X+2*q+1}, 0xffff0000, v{P+q}')

def finv_job(a, R):
    skip = a.label('finv')
    a(f's_cmp_lg_u32 s{S.WAVE}, 3'); a(f's_cbranch_scc1 {skip}')
    srd(a, S.D, S.WS, WS_FINV, 512 * 1024)
    L = V.LANE
    for e in range(2):
        t = S.T
        a(f's_mov_b32 s{t}, s2')
        a(f's_mov_b32 s{t+1}, {128*e}')
        a(f's_mov_b32 s{t+2}, 0x36000000')
        a('s_cmp_eq_u32 s2, 0')
        a(f's_cselect_b32 s{t+2}, 0x35800000, s{t+2}')
        if e == 1:
            a(f's_cselect_b32 s{t}, 0x100, s{t}')
            a(f's_cselect_b32 s{t+1}, 0, s{t+1}')
        a(f'v_lshlrev_b32 v{R}, 3, v{L}')
        a(f'v_mul_u32_u24 v{R}, s{t}, v{R}'); a(f'v_add_u32 v{R}, s{t+1}, v{R}')
        for k in range(8):
            r = R + 2 + k
            a(f'v_and_b32 v{r}, 511, v{R}'); a(f'v_cvt_f32_u32 v{r}, v{r}'); a(f'v_mul_f32 v{r}, 0x3b000000, v{r}')
            a(f'v_cos_f32 v{r}, v{r}'); a(f'v_add_u32 v{R}, s{t}, v{R}'); a(f'v_mul_f32 v{r}, s{t+2}, v{r}')
        o = R + 12 + 4*e
        for q in range(4): a(f'v_cvt_pk_bf16_f32 v{o+q}, v{R+2+2*q}, v{R+3+2*q}')
        a(f's_lshl_b32 s{t+3}, s2, 11'); a(f's_add_u32 s{t+3}, s{t+3}, {1024*e}')
        a(f'v_lshlrev_b32 v{R+1}, 4, v{L}')
        a.lines.append(f'buffer_store_dwordx4 v[{o}:{o+3}], v{R+1}, s[{S.D}:{S.D+3}], s{t+3} offen sc1')
    a(f'{skip}:')

def ab_loads(a, R):
    skip = a.label('abl')
    a(f's_cmp_lg_u32 s{S.WAVE}, 2'); a(f's_cbranch_scc1 {skip}')
    L = V.LANE
    a(f's_lshl_b32 s{S.T}, s2, 3')
    a(f'v_and_b32 v{R}, 7, v{L}'); a(f'v_add_u32 v{R}, s{S.T}, v{R}')
    a(f'v_sub_u32 v{R+1}, 0x800, v{R}'); a(f'v_and_b32 v{R+1}, 0x7ff, v{R+1}')
    a(f's_movk_i32 s{S.T}, 514')
    a(f'v_mul_lo_u32 v{R+2}, v{R}, s{S.T}'); a(f'v_mul_lo_u32 v{R+3}, v{R+1}, s{S.T}')
    for n, (v, s, off) in enumerate([(2, S.B, 0), (3, S.B, 0), (2, S.B, 512), (3, S.B, 512), (2, S.C, 0), (3, S.C, 0), (2, S.C, 512), (3, S.C, 512)]):
        a.lines.append(f'buffer_load_ushort v{R+4+n}, v{R+v}, s[{s}:{s+3}], 0 offen offset:{off}')
    a(f'{skip}:')

def ab_finish(a, R):
    with a.atomic(): ab_finish_(a, R)
def ab_finish_(a, R):
    skip = a.label('abf')
    a(f's_cmp_lg_u32 s{S.WAVE}, 2'); a(f's_cbranch_scc1 {skip}')
    for n in range(8): a(f'v_lshlrev_b32 v{R+4+n}, 16, v{R+4+n}')
    a(f'v_add_f32 v{R+2}, v{R+4}, v{R+5}'); a(f'v_add_f32 v{R+3}, v{R+6}, v{R+7}')
    a(f'v_sub_f32 v{R+4}, v{R+8}, v{R+9}'); a(f'v_sub_f32 v{R+5}, v{R+10}, v{R+11}')
    a(f'v_add_f32 v{R+6}, v{R+2}, v{R+3}'); a(f'v_add_f32 v{R+7}, v{R+4}, v{R+5}')
    a(f'v_sub_f32 v{R+8}, v{R+2}, v{R+3}'); a(f'v_sub_f32 v{R+9}, v{R+4}, v{R+5}')
    for n in range(4): a(f'v_mul_f32 v{R+6+n}, 0x3e800000, v{R+6+n}')
    a(f'v_cvt_pk_bf16_f32 v{R+2}, v{R+6}, v{R+7}'); a(f'v_cvt_pk_bf16_f32 v{R+3}, v{R+8}, v{R+9}')
    a(f'v_and_b32 v{R+4}, 1, v{R}'); a(f'v_lshlrev_b32 v{R+4}, 8, v{R+4}')
    a(f'v_lshrrev_b32 v{R+5}, 8, v{R}'); a(f'v_lshl_add_u32 v{R+4}, v{R+5}, 5, v{R+4}')
    a(f'v_bfe_u32 v{R+5}, v{R}, 1, 5'); a(f'v_add_u32 v{R+4}, v{R+4}, v{R+5}')
    a(f'v_bfe_u32 v{R+5}, v{R}, 6, 2'); a(f'v_lshlrev_b32 v{R+5}, 2, v{R+5}'); a(f'v_lshl_add_u32 v{R+4}, v{R+4}, 4, v{R+5}')
    srd(a, S.D, S.WS, WS_AL, 0x4000)
    a('s_mov_b64 exec, 0xff')
    a.lines.append(f'buffer_store_dword v{R+2}, v{R+4}, s[{S.D}:{S.D+3}], 0 offen sc1')
    a(f'v_add_u32 v{R+4}, {WS_BE-WS_AL}, v{R+4}')
    a.lines.append(f'buffer_store_dword v{R+3}, v{R+4}, s[{S.D}:{S.D+3}], 0 offen sc1')
    a('s_mov_b64 exec, -1')
    a(f'{skip}:')

def phase1(a, pre):
    L = V.LANE
    VO, VT, VE = 10, 11, 44
    X, XA = 128, 144
    C32, NS32, TC, TS, A2R, A2I = 152, 160, 168, 176, 184, 188
    D1R, D1I = 192, 208
    BR, BI = 224, 232
    T = 240
    TW = 248
    WQ = 64
    AB = 96
    FI = 108
    t = S.T
    for i in range(16): a(f'v_mov_b32 v{X+i}, 0')
    a(f's_lshl_b32 s{t+8}, s2, 2'); a(f's_add_u32 s{t+8}, s{t+8}, s{S.WAVE}')
    a(f'v_bfe_u32 v{T}, v{L}, 4, 1'); a(f'v_lshlrev_b32 v{T}, 10, v{T}'); a(f'v_add_u32 v{T}, s{t+8}, v{T}')
    a(f'v_lshlrev_b32 v{T}, 10, v{T}'); a(f'v_and_b32 v{T+1}, 15, v{L}'); a(f'v_lshl_add_u32 v{T}, v{T+1}, 1, v{T}')
    a(f'v_lshrrev_b32 v{T+1}, 5, v{L}'); a(f'v_lshl_add_u32 v{VO}, v{T+1}, 7, v{T}')
    srd(a, S.A, S.X, 0, 2048 * 1024)
    for b in range(2):
        for jj in range(8):
            a(f'buffer_load_short_d16_hi v{X+8*b+jj}, v{VO}, s[{S.A}:{S.A+3}], 0 offen offset:{512*b+256*(jj//4)+32*(jj%4)} {CFG["inmod"]}')
    hx = a.mark()
    srd(a, S.B, S.WR, 0, 2048 * 514); srd(a, S.C, S.WI, 0, 2048 * 514)
    a(f's_lshr_b32 s{t}, s{S.WAVE}, 1'); a(f's_lshl_b32 s{t+1}, s2, 1'); a(f's_add_u32 s{t}, s{t}, s{t+1}')
    a(f's_and_b32 s{t+1}, s{t}, 63'); a(f's_lshr_b32 s{t+2}, s{t}, 6')
    a(f's_lshl_b32 s{t+3}, s{t+2}, 8'); a(f's_add_u32 s{t+3}, s{t+3}, s{t+1}'); a(f's_mul_i32 s{t+3}, s{t+3}, 514')
    a(f's_and_b32 s{t+4}, s{S.WAVE}, 1'); a(f's_lshl_b32 s{t+5}, s{t+4}, 8'); a(f's_add_u32 s{t+3}, s{t+3}, s{t+5}')
    a(f'v_lshlrev_b32 v{WQ}, 2, v{L}'); a(f'v_add_u32 v{WQ}, s{t+3}, v{WQ}')
    for j in range(4):
        a(f's_mov_b32 s{t+5}, {j*64*514}')
        a(f'buffer_load_dword v{WQ+2+j}, v{WQ}, s[{S.B}:{S.B+3}], s{t+5} offen {CFG["inmod"]}')
        a(f'buffer_load_dword v{WQ+6+j}, v{WQ}, s[{S.C}:{S.C+3}], s{t+5} offen {CFG["inmod"]}')
    hw = a.mark()
    a(f's_and_b32 s{t+5}, s{t}, 1'); a(f's_lshl_b32 s{t+5}, s{t+5}, 8'); a(f's_lshl_b32 s{t+6}, s{t+2}, 5'); a(f's_add_u32 s{t+5}, s{t+5}, s{t+6}')
    a(f's_lshr_b32 s{t+6}, s{t+1}, 1'); a(f's_add_u32 s{t+5}, s{t+5}, s{t+6}'); a(f's_lshl_b32 s{t+5}, s{t+5}, 7')
    a(f's_lshl_b32 s{t+6}, s{t+4}, 20'); a(f's_add_u32 s{t+5}, s{t+5}, s{t+6}')
    a(f'v_lshrrev_b32 v{WQ+1}, 3, v{L}'); a(f'v_lshlrev_b32 v{WQ+1}, 16, v{WQ+1}'); a(f'v_and_b32 v{WQ}, 7, v{L}')
    a(f'v_lshl_add_u32 v{WQ+1}, v{WQ}, 4, v{WQ+1}'); a(f'v_add_u32 v{WQ+1}, s{t+5}, v{WQ+1}')
    ab_loads(a, AB)
    def pf1():
        a(f's_and_b32 s{t+12}, s{S.J}, 3'); a(f's_lshl_b32 s{t+12}, s{t+12}, 2'); a(f's_add_u32 s{t+12}, s{t+12}, s{S.WAVE}')
        a(f's_lshl_b32 s{t+12}, s{t+12}, 7')
        a(f'v_add_u32 v{T+7}, s{t+12}, v{L}')
        a(f's_lshr_b32 s{t+13}, s{t+14}, 6')
        a(f'v_mul_lo_u32 v{T+7}, v{T+7}, s{t+13}'); a(f'v_add_u32 v{T+7}, s{PF_COL}, v{T+7}')
        a(f'buffer_load_dword v{VT}, v{T+7}, s[{PRE_SRD}:{PRE_SRD+3}], 0 offen {CFG["wmod"]}')
        a(f'buffer_load_dword v{VT}, v{T+7}, s[{PRE_SRD}:{PRE_SRD+3}], s{t+14} offen {CFG["wmod"]}')
    if CFG['pf1'] == 1: pf1()
    pre.issue(a, CFG['early'])
    finv_job(a, FI)
    lane_floats(a, D1R, D1R + 1, D1R + 2)
    gen_f32(a, D1R, D1R + 1, C32, None, NS32, D1R + 2)
    gen_twiddle(a, D1R, D1R + 1, TC, TS, [0, 1, 2, 3, 8, 9, 10, 11], 512, D1R + 2)
    gen_a2(a, D1R + 1, A2R, A2I, D1R + 2)
    a(f'v_cvt_f32_u32 v{TW}, s{t+8}'); a(f'v_mul_f32 v{TW}, 0x3a000000, v{TW}')
    a(f'v_sin_f32 v{TW+1}, v{TW}'); a(f'v_cos_f32 v{TW}, v{TW}')
    a(f'v_mov_b32 v{T+6}, 0x3b000000')
    a(f's_lshl_b32 s{t+9}, s{S.WAVE}, 12'); a(f's_add_u32 s{t+9}, s{t+9}, {LDS_EX}')
    a(f'v_lshlrev_b32 v{VE}, 4, v{L}'); a(f'v_add_u32 v{VE}, s{t+9}, v{VE}')
    stamp(a, 1, T)
    a.wait_vm(hx)
    stamp(a, 2, T)
    if CFG['pf1'] == 2: pf1()
    layernorm(a, X, XA, T, True)
    for b in range(2):
        c = '0' if b == 0 else f'v[{D1R}:{D1R+15}]'
        a(f'v_mfma_f32_32x32x16_bf16 v[{D1R}:{D1R+15}], v[{XA+4*b}:{XA+4*b+3}], v[{C32+4*b}:{C32+4*b+3}], {c}')
        c = '0' if b == 0 else f'v[{D1I}:{D1I+15}]'
        a(f'v_mfma_f32_32x32x16_bf16 v[{D1I}:{D1I+15}], v[{XA+4*b}:{XA+4*b+3}], v[{NS32+4*b}:{NS32+4*b+3}], {c}')
    HP = XA
    layernorm(a, X, HP, T, False)
    a(f'v_bfe_u32 v{T}, v{L}, 4, 1'); a(f'v_mul_u32_u24 v{T}, 1056, v{T}'); a(f'v_and_b32 v{T+1}, 15, v{L}')
    a(f'v_lshl_add_u32 v{T}, v{T+1}, 1, v{T}'); a(f'v_lshrrev_b32 v{T+1}, 5, v{L}'); a(f'v_lshl_add_u32 v{T}, v{T+1}, 7, v{T}')
    a(f'v_add_u32 v{T}, s{t+9}, v{T}')
    for q in range(8):
        b, jq = q // 4, q % 4
        for e in range(2):
            jj = 2 * jq + e
            op = 'ds_write_b16_d16_hi' if e else 'ds_write_b16'
            a(f'{op} v{T}, v{HP+q} offset:{512*b+256*(jj//4)+32*(jj%4)}')
    a(f'ds_read_b128 v[{WQ+20}:{WQ+23}], v{VE}'); a(f'ds_read_b128 v[{WQ+24}:{WQ+27}], v{VE} offset:1056')
    srd(a, S.D, S.WS, WS_H, 2048 * 1024)
    a(f's_lshl_b32 s{t+5}, s{t+8}, 10'); a(f's_add_u32 s{t+6}, s{t+5}, {1024*1024}')
    a(f'v_lshlrev_b32 v{T+1}, 4, v{L}')
    Pp = lambda x: f'v[{x}:{x+1}]'
    for i in range(4):
        for j in range(0, 4, 2):
            r_, i_ = D1R + 4*i + j, D1I + 4*i + j
            tc, ts = TC + 4*(i % 2) + j, TS + 4*(i % 2) + j
            a(f'v_pk_mul_f32 {Pp(X+j)}, {Pp(r_)}, {Pp(tc)}'); a(f'v_pk_mul_f32 {Pp(X+4+j)}, {Pp(i_)}, {Pp(tc)}')
            a(f'v_pk_fma_f32 {Pp(X+j)}, {Pp(i_)}, {Pp(ts)}, {Pp(X+j)}')
            a(f'v_pk_fma_f32 {Pp(X+4+j)}, {Pp(r_)}, {Pp(ts)}, {Pp(X+4+j)} neg_lo:[1,0,0] neg_hi:[1,0,0]')
        a(f'v_cvt_pk_bf16_f32 v{BR+2*i}, v{X}, v{X+1}');   a(f'v_cvt_pk_bf16_f32 v{BR+2*i+1}, v{X+2}, v{X+3}')
        a(f'v_cvt_pk_bf16_f32 v{BI+2*i}, v{X+4}, v{X+5}'); a(f'v_cvt_pk_bf16_f32 v{BI+2*i+1}, v{X+6}, v{X+7}')
        if i == 0:
            a('s_waitcnt lgkmcnt(0)')
            a(f'buffer_store_dwordx4 v[{WQ+20}:{WQ+23}], v{T+1}, s[{S.D}:{S.D+3}], s{t+5} offen sc1')
            a(f'buffer_store_dwordx4 v[{WQ+24}:{WQ+27}], v{T+1}, s[{S.D}:{S.D+3}], s{t+6} offen sc1')
    a('s_nop 1')
    D2 = (D1R, D1I)
    for r in range(2):
        a(f'v_mfma_f32_32x32x16_bf16 v[{D2[r]}:{D2[r]+15}], v[{A2R}:{A2R+3}], v[{BR+4*r}:{BR+4*r+3}], 0')
    for r in range(2):
        a(f'v_mfma_f32_32x32x16_bf16 v[{D2[r]}:{D2[r]+15}], v[{A2I}:{A2I+3}], v[{BI+4*r}:{BI+4*r+3}], v[{D2[r]}:{D2[r]+15}]')
    a(f'v_and_b32 v{T}, 31, v0'); a(f'v_lshrrev_b32 v{T+1}, 5, v0'); a(f'v_lshrrev_b32 v{T+2}, 2, v{T+1}'); a(f'v_lshlrev_b32 v{T+2}, 10, v{T+2}')
    a(f'v_bfe_u32 v{T+3}, v{T+1}, 1, 1'); a(f'v_lshl_add_u32 v{T}, v{T+3}, 5, v{T}'); a(f'v_lshl_add_u32 v{T}, v{T}, 4, v{T+2}')
    a(f'v_and_b32 v{T+1}, 1, v{T+1}'); a(f'v_lshl_add_u32 v{T}, v{T+1}, 3, v{T}'); a(f'v_add_u32 v{T}, {LDS_EX}, v{T}')
    a(f'v_lshrrev_b32 v{T+1}, 3, v0'); a(f'v_lshlrev_b32 v{T+1}, 15, v{T+1}'); a(f'v_and_b32 v{T+2}, 7, v0')
    a(f'v_lshl_add_u32 v{T+1}, v{T+2}, 4, v{T+1}'); a(f's_lshl_b32 s{t+5}, s2, 7'); a(f'v_add_u32 v{T+1}, s{t+5}, v{T+1}')
    a('s_nop 3')
    a('s_mov_b64 exec, 1')
    a(f'v_mov_b32 v{D2[0]+1}, v{D2[0]+8}'); a(f'v_mov_b32 v{D2[1]+1}, v{D2[1]+8}')
    a('s_mov_b64 exec, -1')
    Z0, DF, Z1 = X, X + 8, XA
    for i in range(0, 8, 2):
        a(f'v_pk_add_f32 {Pp(Z0+i)}, {Pp(D2[0]+i)}, {Pp(D2[1]+i)}')
        a(f'v_pk_add_f32 {Pp(DF+i)}, {Pp(D2[0]+i)}, {Pp(D2[1]+i)} neg_lo:[0,1] neg_hi:[0,1]')
    for i in range(0, 8, 2):
        a(f'v_mul_f32 v{Z1+i}, v{DF+i}, v{TW}'); a(f'v_mul_f32 v{Z1+i+1}, v{DF+i+1}, v{TW}')
        a(f'v_fmac_f32 v{Z1+i}, v{DF+i+1}, v{TW+1}'); a(f'v_fma_f32 v{Z1+i+1}, -v{DF+i}, v{TW+1}, v{Z1+i+1}')
    for ip in range(2):
        a(f'ds_write_b128 v{VE}, v[{Z0+4*ip}:{Z0+4*ip+3}] offset:{ip*1024}')
        a(f'ds_write_b128 v{VE}, v[{Z1+4*ip}:{Z1+4*ip+3}] offset:{2048+ip*1024}')
    srd(a, S.D, S.WS, WS_ZB, 2 * 32 * 256 * 128)
    a('s_waitcnt lgkmcnt(0)')
    a('s_barrier')
    G0 = C32
    for par in range(2):
        for w in range(4):
            a(f'ds_read_b64 v[{G0+16*par+2*w}:{G0+16*par+2*w+1}], v{T} offset:{w*4096+par*2048}')
    a(f's_mov_b32 s{t+5}, {32*256*128}')
    for par in range(2):
        g = G0 + 16 * par; o = g + 8
        a(f's_waitcnt lgkmcnt({4*(1-par)})')
        a(f'v_cvt_pk_bf16_f32 v{o}, v{g}, v{g+2}');     a(f'v_cvt_pk_bf16_f32 v{o+1}, v{g+4}, v{g+6}')
        a(f'v_cvt_pk_bf16_f32 v{o+2}, v{g+1}, v{g+3}'); a(f'v_cvt_pk_bf16_f32 v{o+3}, v{g+5}, v{g+7}')
        so = f's{t+5}' if par else '0'
        a(f'buffer_store_dwordx4 v[{o}:{o+3}], v{T+1}, s[{S.D}:{S.D+3}], {so} offen sc1')
    stamp(a, 3, T + 2)
    a.wait_vm(hw)
    a(f's_mov_b32 s{t+10}, 0x05040100'); a(f's_mov_b32 s{t+11}, 0x07060302')
    for e in range(2):
        for j in range(4):
            a(f'v_perm_b32 v{WQ+10+4*e+j}, v{WQ+6+j}, v{WQ+2+j}, s{t+10+e}')
    a(f'v_lshlrev_b32 v{VE}, 5, v{L}'); a(f'v_add_u32 v{VE}, s{S.RING}, v{VE}')
    a(f'ds_write_b128 v{VE}, v[{WQ+10}:{WQ+13}] offset:{(NRING-1)*2048}'); a(f'ds_write_b128 v{VE}, v[{WQ+14}:{WQ+17}] offset:{(NRING-1)*2048+16}')
    a(f'v_lshlrev_b32 v{VE}, 4, v{L}'); a(f'v_add_u32 v{VE}, s{S.RING}, v{VE}')
    a(f'ds_read_b128 v[{WQ+20}:{WQ+23}], v{VE} offset:{(NRING-1)*2048}'); a(f'ds_read_b128 v[{WQ+24}:{WQ+27}], v{VE} offset:{(NRING-1)*2048+1024}')
    srd(a, S.D, S.WS, WS_WP, 32 * 512 * 128)
    ab_finish(a, AB)
    srd(a, S.D, S.WS, WS_WP, 32 * 512 * 128)
    a(f's_mov_b32 s{t+5}, {8*65536}')
    a('s_waitcnt lgkmcnt(0)')
    a(f'buffer_store_dwordx4 v[{WQ+20}:{WQ+23}], v{WQ+1}, s[{S.D}:{S.D+3}], 0 offen sc1')
    a(f'buffer_store_dwordx4 v[{WQ+24}:{WQ+27}], v{WQ+1}, s[{S.D}:{S.D+3}], s{t+5} offen sc1')
    a(f'v_mov_b32 v{T+2}, 0')
    a(f'global_load_dword v{T+3}, v{T+2}, s[{S.DBG}:{S.DBG+1}] sc1')
    hst = a.mark()
    if CFG['pf1'] == 3: pf1()
    pre.issue(a, CFG['mid'])
    a.wait_vm(hst)
    lp, ok = a.label('nonce'), a.label('nonce_ok')
    a(f's_mov_b32 s{t}, 0')
    a(f'{lp}:')
    a(f'v_readfirstlane_b32 s{S.NONCE}, v{T+3}')
    a('s_nop 3')
    a(f's_cmp_lg_u32 s{S.NONCE}, 0'); a(f's_cbranch_scc1 {ok}')
    a.lines.append(f'global_load_dword v{T+3}, v{T+2}, s[{S.DBG}:{S.DBG+1}] sc1')
    a('s_waitcnt vmcnt(0)')
    a(f's_add_u32 s{t}, s{t}, 1'); a(f's_cmp_lt_u32 s{t}, {CFG["spin"]}'); a(f's_cbranch_scc1 {lp}')
    a(f'{ok}:')
    a('s_barrier')
    publish(a, [f's_lshl_b32 s{t}, s2, 7', f's_add_u32 s{t}, s{t}, {WS_F1}'], t, T)
    stamp(a, 4, T)

def store_tile_rows(a, O, srd_, row0_lines, s_row0, stride_shift):
    L, T, t = V.LANE, V.T, S.T
    a(f's_lshr_b32 s{t}, s{S.WAVE}, 1'); a(f's_lshl_b32 s{t}, s{t}, 5')
    a(f'v_and_b32 v{T}, 31, v{L}'); a(f'v_add_u32 v{T}, s{t}, v{T}'); a(f'v_mul_u32_u24 v{T}, 144, v{T}')
    a(f's_and_b32 s{t}, s{S.WAVE}, 1'); a(f's_lshl_b32 s{t}, s{t}, 6'); a(f's_add_u32 s{t}, s{t}, {LDS_EX}')
    a(f'v_lshrrev_b32 v{T+1}, 5, v{L}'); a(f'v_lshl_add_u32 v{T}, v{T+1}, 4, v{T}'); a(f'v_add_u32 v{T}, s{t}, v{T}')
    a(f'ds_write_b128 v{T}, v[{O}:{O+3}]'); a(f'ds_write_b128 v{T}, v[{O+4}:{O+7}] offset:32')
    a(f'v_lshrrev_b32 v{T+1}, 3, v{L}'); a(f's_lshl_b32 s{t}, s{S.WAVE}, 4'); a(f'v_add_u32 v{T+1}, s{t}, v{T+1}')
    a(f'v_and_b32 v{T+2}, 7, v{L}'); a(f'v_lshlrev_b32 v{T+2}, 4, v{T+2}')
    a(f'v_mul_u32_u24 v{T+3}, 144, v{T+1}'); a(f'v_add_u32 v{T+3}, v{T+3}, v{T+2}'); a(f'v_add_u32 v{T+3}, {LDS_EX}, v{T+3}')
    for l in row0_lines: a(l)
    a(f'v_lshl_add_u32 v{T+1}, v{T+1}, {stride_shift}, v{T+2}'); a(f'v_add_u32 v{T+1}, s{s_row0}, v{T+1}')
    a.nobg('s_waitcnt lgkmcnt(0)')
    a.nobg('s_barrier')
    a(f'ds_read_b128 v[{O}:{O+3}], v{T+3}'); a(f'ds_read_b128 v[{O+4}:{O+7}], v{T+3} offset:{8*144}')
    a(f's_mov_b32 s{t}, {8 << stride_shift}')
    a.nobg('s_waitcnt lgkmcnt(0)')
    a(f'buffer_store_dwordx4 v[{O}:{O+3}], v{T+1}, s[{srd_}:{srd_+3}], 0 offen sc1')
    a(f'buffer_store_dwordx4 v[{O+4}:{O+7}], v{T+1}, s[{srd_}:{srd_+3}], s{t} offen sc1')

def w2_setup(a):
    t = S.T
    srd(a, S.B, S.W2, 0, 1792 * 4096)
    a(f's_lshl_b32 s{t+1}, s{S.ST}, 7')
    dma_offsets(a, V.Q0, V.Q1, 4096, t + 1)
    a(f's_mul_i32 s{S.SOB}, s{S.WAVE}, {16*4096}')
    a(f's_mul_i32 s{t}, s{S.ROT3}, {64*4096}'); a(f's_add_u32 s{S.SOB}, s{S.SOB}, s{t}')

def gemm1(a):
    L, T, t = V.LANE, V.T, S.T
    a('s_waitcnt vmcnt(0)')
    srd(a, S.A, S.WS, WS_H, 2048 * 1024)
    a(f's_lshl_b32 s{t+1}, s{S.DT}, 7')
    dma_offsets(a, V.P0, V.P1, 1024, t + 1)
    a(f's_mul_i32 s{S.SOA}, s{S.WAVE}, {16*1024}')
    a(f's_lshl_b32 s{t}, s{S.ROT1}, 16'); a(f's_add_u32 s{S.SOA}, s{S.SOA}, s{t}')
    V_B1 = 60
    a(f's_lshr_b32 s{t}, s{S.WAVE}, 1'); a(f's_lshl_b32 s{t}, s{t}, 5'); a(f's_lshl_b32 s{t+1}, s{S.FT}, 6'); a(f's_add_u32 s{t}, s{t}, s{t+1}')
    a(f'v_and_b32 v{T}, 31, v{L}'); a(f'v_add_u32 v{T}, s{t}, v{T}'); a(f'v_lshlrev_b32 v{T}, 1, v{T}')
    a(f'global_load_ushort v{V_B1}, v{T}, s[{S.B1}:{S.B1+1}]')
    pf = []
    if CFG.get('pf2', 1):
        srd(a, S.C, S.W2, 0, 1792 * 4096)
        a(f's_lshl_b32 s{t}, s{S.J}, 2'); a(f's_add_u32 s{t}, s{t}, s{S.WAVE}'); a(f's_lshl_b32 s{t}, s{t}, 4')
        a(f'v_lshrrev_b32 v{T}, 3, v{L}'); a(f'v_add_u32 v{T}, s{t}, v{T}'); a(f'v_lshlrev_b32 v{T}, 12, v{T}')
        a(f'v_and_b32 v{T+1}, 7, v{L}'); a(f'v_lshl_add_u32 v{T}, v{T+1}, 7, v{T}')
        a(f's_lshr_b32 s{t}, s{S.XCD}, 1'); a(f's_lshl_b32 s{t}, s{t}, 10'); a(f'v_add_u32 v61, s{t}, v{T}')
        a(f'v_add_u32 v62, {8*4096}, v61')
        pf = [[f'buffer_load_dword v63, v61, s[{S.C}:{S.C+3}], 0 offen {CFG["wmod"]}'],
              [f'buffer_load_dword v63, v62, s[{S.C}:{S.C+3}], 0 offen {CFG["wmod"]}']]
    steps = [dict(items=[(0, V.P0, V.P1, S.A, S.SOA, 1024, CFG['dmod'], (32*65536, 32*65536))], q=u) for u in range(32)]
    stream_loop(a, steps, CFG.get('depth1', 12), bg_extra=pf)
    stamp(a, 7, T)
    w2_setup(a)
    pre2 = Preload(28, S.B, 4096, CFG['wmod2'], range(6, NRING), wrap=(7340032, 7340032))
    reduce_partials(a)
    stamp(a, 12, T)
    VD = V.VD
    a(f'v_lshlrev_b32 v{V_B1}, 16, v{V_B1}')
    c0 = -2.0 * 0.7978845608028654 * 1.4426950408889634
    a(f's_mov_b32 s{t+2}, {fb(c0)}'); a(f's_mov_b32 s{t+3}, {fb(c0 * 0.044715)}')
    a(f'v_mov_b32 v61, s{t+2}')
    for q in range(8):
        d0, d1 = VD + 2*q, VD + 2*q + 1
        a(f'v_cvt_pk_bf16_f32 v{T}, v{d0}, v{d1}')
        a(f'v_lshlrev_b32 v{d0}, 16, v{T}'); a(f'v_and_b32 v{d1}, 0xffff0000, v{T}')
        a(f'v_add_f32 v{d0}, v{d0}, v{V_B1}'); a(f'v_add_f32 v{d1}, v{d1}, v{V_B1}')
        a(f'v_cvt_pk_bf16_f32 v{T}, v{d0}, v{d1}')
        a(f'v_lshlrev_b32 v{d0}, 16, v{T}'); a(f'v_and_b32 v{d1}, 0xffff0000, v{T}')
        a(f'v_mul_f32 v{T+1}, v{d0}, v{d0}'); a(f'v_mul_f32 v{T+2}, v{d1}, v{d1}')
        a(f'v_fma_f32 v{T+1}, v{T+1}, s{t+3}, v61'); a(f'v_fma_f32 v{T+2}, v{T+2}, s{t+3}, v61')
        a(f'v_mul_f32 v{T+1}, v{T+1}, v{d0}'); a(f'v_mul_f32 v{T+2}, v{T+2}, v{d1}')
        a(f'v_exp_f32 v{T+1}, v{T+1}'); a(f'v_exp_f32 v{T+2}, v{T+2}')
        a('s_nop 0')
        a(f'v_add_f32 v{T+1}, 1.0, v{T+1}'); a(f'v_add_f32 v{T+2}, 1.0, v{T+2}')
        a(f'v_rcp_f32 v{T+1}, v{T+1}'); a(f'v_rcp_f32 v{T+2}, v{T+2}')
        a('s_nop 0')
        a(f'v_mul_f32 v{d0}, v{d0}, v{T+1}'); a(f'v_mul_f32 v{d1}, v{d1}, v{T+2}')
    a('s_nop 1')
    for p in range(2):
        for j in range(4):
            a(f'v_permlane32_swap_b32 v{VD+8*p+j}, v{VD+8*p+4+j}')
    O = 52
    for p in range(2):
        for jj in range(4):
            a(f'v_cvt_pk_bf16_f32 v{O+4*p+jj}, v{VD+8*p+2*jj}, v{VD+8*p+2*jj+1}')
    a.bg_flush()
    srd(a, S.D, S.WS, WS_GT, 1792 * 1024)
    store_tile_rows(a, O, S.D, [f's_lshl_b32 s{t+4}, s{S.FT}, 16', f's_lshl_b32 s{t+5}, s{S.DT}, 7', f's_add_u32 s{t+4}, s{t+4}, s{t+5}'], t + 4, 10)
    hst = a.mark()
    stamp(a, 13, T)
    pre2.free += list(range(6))
    pre2.issue(a, CFG['mid'])
    a.wait_vm(hst)
    a('s_barrier')
    publish(a, [f's_lshl_b32 s{t}, s{S.DT}, 5', f's_add_u32 s{t}, s{t}, s{S.FT}', f's_lshl_b32 s{t}, s{t}, 7', f's_add_u32 s{t}, s{t}, {WS_F2}'], t, T)
    stamp(a, 8, T)
    pre2.drain(a)
    stamp(a, 14, T)

class F:
    L = 1; RZ0 = 3; RW = 5; VY = 6; T = 8
    C, S, NS = 24, 32, 40
    TC, TS = 48, 64
    UC, US = 80, 96
    AR = (112, 176); AI = (120, 184); DR = (128, 192); DI = (144, 208); W = (160, 224)
    BE = 240

def stage_mfmas(p, form, conj):
    s_for_re = F.NS if conj else F.S
    s_for_im = F.S if conj else F.NS
    DR, DI, AR, AI = F.DR[p], F.DI[p], F.AR[p], F.AI[p]
    seq = []
    for b in range(2): seq += [(DR, AR + 4*b, F.C + 4*b), (DI, AI + 4*b, F.C + 4*b)]
    for b in range(2): seq += [(DR, AI + 4*b, s_for_re + 4*b), (DI, AR + 4*b, s_for_im + 4*b)]
    seen = set(); out = []
    for (d, x, c) in seq:
        cc = f'v[{d}:{d+15}]' if d in seen else '0'
        seen.add(d)
        if form == 'A': out.append(f'v_mfma_f32_32x32x16_bf16 v[{d}:{d+15}], v[{x}:{x+3}], v[{c}:{c+3}], {cc}')
        else:           out.append(f'v_mfma_f32_32x32x16_bf16 v[{d}:{d+15}], v[{c}:{c+3}], v[{x}:{x+3}], {cc}')
    return out

PP = lambda x: f'v[{x}:{x+1}]'
def pack4(p, i):
    T = F.T
    return [f'v_cvt_pk_bf16_f32 v{F.AR[p]+2*i}, v{T}, v{T+1}', f'v_cvt_pk_bf16_f32 v{F.AR[p]+2*i+1}, v{T+2}, v{T+3}',
            f'v_cvt_pk_bf16_f32 v{F.AI[p]+2*i}, v{T+4}, v{T+5}', f'v_cvt_pk_bf16_f32 v{F.AI[p]+2*i+1}, v{T+6}, v{T+7}']

def twiddle_valu(p, conj):
    T = F.T; out = []
    if not CFG.get('fftpk'):
        for i in range(4):
            for j in range(4):
                n = 4*i + j
                r_, i_, c, s_ = F.DR[p] + n, F.DI[p] + n, F.TC + n, F.TS + n
                out += [f'v_mul_f32 v{T+j}, v{r_}, v{c}', f'v_mul_f32 v{T+4+j}, v{i_}, v{c}']
                if conj: out += [f'v_fma_f32 v{T+j}, -v{i_}, v{s_}, v{T+j}', f'v_fmac_f32 v{T+4+j}, v{r_}, v{s_}']
                else:    out += [f'v_fmac_f32 v{T+j}, v{i_}, v{s_}', f'v_fma_f32 v{T+4+j}, -v{r_}, v{s_}, v{T+4+j}']
            out += pack4(p, i)
        return out
    for i in range(4):
        for j in range(0, 4, 2):
            n = 4*i + j
            r_, i_, c, s_ = F.DR[p] + n, F.DI[p] + n, F.TC + n, F.TS + n
            out += [f'v_pk_mul_f32 {PP(T+j)}, {PP(r_)}, {PP(c)}', f'v_pk_mul_f32 {PP(T+4+j)}, {PP(i_)}, {PP(c)}']
            if conj:
                out += [f'v_pk_fma_f32 {PP(T+j)}, {PP(i_)}, {PP(s_)}, {PP(T+j)} neg_lo:[1,0,0] neg_hi:[1,0,0]',
                        f'v_pk_fma_f32 {PP(T+4+j)}, {PP(r_)}, {PP(s_)}, {PP(T+4+j)}']
            else:
                out += [f'v_pk_fma_f32 {PP(T+j)}, {PP(i_)}, {PP(s_)}, {PP(T+j)}',
                        f'v_pk_fma_f32 {PP(T+4+j)}, {PP(r_)}, {PP(s_)}, {PP(T+4+j)} neg_lo:[1,0,0] neg_hi:[1,0,0]']
        out += pack4(p, i)
    return out

def filter_valu(p):
    T = F.T; out = []
    if not CFG.get('fftpk'):
        for i in range(4):
            for j in range(4):
                n = 4*i + j
                r_, i_, w = F.DR[p] + n, F.DI[p] + n, F.W[p] + n
                t0, t1 = T + 8 + 2*(j % 2), T + 9 + 2*(j % 2)
                out += [f'v_lshlrev_b32 v{t0}, 16, v{w}', f'v_and_b32 v{t1}, 0xffff0000, v{w}',
                        f'v_mul_f32 v{T+j}, v{r_}, v{t0}', f'v_mul_f32 v{T+4+j}, v{i_}, v{t0}',
                        f'v_fma_f32 v{T+j}, -v{i_}, v{t1}, v{T+j}', f'v_fmac_f32 v{T+4+j}, v{r_}, v{t1}']
            out += pack4(p, i)
        return out
    for i in range(4):
        for j in range(0, 4, 2):
            n = 4*i + j
            r_, i_, w = F.DR[p] + n, F.DI[p] + n, F.W[p] + n
            out += [f'v_lshlrev_b32 v{T+8}, 16, v{w}', f'v_lshlrev_b32 v{T+9}, 16, v{w+1}',
                    f'v_and_b32 v{T+10}, 0xffff0000, v{w}', f'v_and_b32 v{T+11}, 0xffff0000, v{w+1}',
                    f'v_pk_mul_f32 {PP(T+j)}, {PP(r_)}, {PP(T+8)}', f'v_pk_mul_f32 {PP(T+4+j)}, {PP(i_)}, {PP(T+8)}',
                    f'v_pk_fma_f32 {PP(T+j)}, {PP(i_)}, {PP(T+10)}, {PP(T+j)} neg_lo:[1,0,0] neg_hi:[1,0,0]',
                    f'v_pk_fma_f32 {PP(T+4+j)}, {PP(r_)}, {PP(T+10)}, {PP(T+4+j)}']
        out += pack4(p, i)
    return out

def merge(a, valu, mfmas):
    n = len(valu)
    span = max(n - 14, 8)
    pos = [2 + (k * (span - 2)) // len(mfmas) for k in range(len(mfmas))]
    k = 0
    for i, v in enumerate(valu):
        while k < len(mfmas) and pos[k] <= i:
            a(mfmas[k]); k += 1
        a(v)
    while k < len(mfmas): a(mfmas[k]); k += 1
    tail = n - pos[-1]
    if tail < 12:
        need = 12 - tail
        while need > 0:
            a(f's_nop {min(need, 8) - 1}'); need -= min(need, 8)

def filter_special(a, p, SAL):
    T = F.T; L = F.L
    DR, DI, W, BE = F.DR[p], F.DI[p], F.W[p], F.BE
    a(f'v_lshlrev_b32 v{T+10}, 4, v{L}'); a(f'v_add_u32 v{T+10}, {p*4096}, v{T+10}')
    for i in range(4):
        a.lines.append(f'global_load_dwordx4 v[{W+4*i}:{W+4*i+3}], v{T+10}, s[{SAL}:{SAL+1}] offset:{i*1024} sc1')
    a(f'v_add_u32 v{T+10}, {WS_BE-WS_AL}, v{T+10}')
    for i in range(4):
        a.lines.append(f'global_load_dwordx4 v[{BE+4*i}:{BE+4*i+3}], v{T+10}, s[{SAL}:{SAL+1}] offset:{i*1024} sc1')
    a(f'v_and_b32 v{T+14}, 31, v{L}'); a(f'v_lshrrev_b32 v{T+15}, 5, v{L}')
    a(f'v_lshl_add_u32 v{T+14}, v{T+15}, 7, v{T+14}')
    a(f'v_lshlrev_b32 v{T+15}, 3, v{T+14}'); a(f'v_add_u32 v{T+15}, {LDS_X}, v{T+15}')
    for i in range(4):
        for j in range(4):
            a(f'ds_write2_b32 v{T+15}, v{DR+4*i+j}, v{DI+4*i+j} offset0:{64*j} offset1:{64*j+1}')
        if i < 3: a(f'v_add_u32 v{T+15}, 2048, v{T+15}')
    top = 1024 if p == 0 else 1023
    if p == 0:
        a('s_mov_b64 exec, 1')
        a(f'v_mov_b32 v{T+15}, {LDS_X + 1024*8}')
        a(f'ds_write2_b32 v{T+15}, v{DR}, v{DI} offset0:0 offset1:1')
        a('s_mov_b64 exec, -1')
    a(f'v_sub_u32 v{T+15}, {top - 96}, v{T+14}')
    a(f'v_lshlrev_b32 v{T+15}, 3, v{T+15}'); a(f'v_add_u32 v{T+15}, {LDS_X}, v{T+15}')
    a('s_waitcnt vmcnt(0) lgkmcnt(0)')
    for i in range(4):
        for jp in range(0, 4, 2):
            for e in range(2):
                a(f'ds_read_b64 v[{T+10+2*e}:{T+11+2*e}], v{T+15} offset:{(3-jp-e)*256}')
            a('s_waitcnt lgkmcnt(0)')
            for e in range(2):
                j = jp + e; n = 4*i + j
                r_, i_, w, be, mr, mi = DR + n, DI + n, W + n, BE + n, T + 10 + 2*e, T + 11 + 2*e
                a(f'v_lshlrev_b32 v{T+8}, 16, v{w}'); a(f'v_and_b32 v{T+9}, 0xffff0000, v{w}')
                a(f'v_mul_f32 v{T+j}, v{r_}, v{T+8}'); a(f'v_mul_f32 v{T+4+j}, v{i_}, v{T+8}')
                a(f'v_fma_f32 v{T+j}, -v{i_}, v{T+9}, v{T+j}'); a(f'v_fmac_f32 v{T+4+j}, v{r_}, v{T+9}')
                a(f'v_lshlrev_b32 v{T+8}, 16, v{be}'); a(f'v_and_b32 v{T+9}, 0xffff0000, v{be}')
                a(f'v_fmac_f32 v{T+j}, v{mr}, v{T+8}'); a(f'v_fmac_f32 v{T+j}, v{mi}, v{T+9}')
                a(f'v_fmac_f32 v{T+4+j}, v{mr}, v{T+9}'); a(f'v_fma_f32 v{T+4+j}, -v{mi}, v{T+8}, v{T+4+j}')
        for l in pack4(p, i): a(l)
        if i < 3: a(f'v_subrev_u32 v{T+15}, 2048, v{T+15}')
    a('s_nop 1')

def fft_consts(a):
    T = F.T
    lane_floats(a, T, T + 1, T + 2)
    gen_f32(a, T, T + 1, F.C, F.S, F.NS, T + 2)
    gen_twiddle(a, T, T + 1, F.TC, F.TS, [8*i + j for i in range(4) for j in range(4)], 1024, T + 2)
    gen_t2048(a, T, T + 1, F.UC, F.US, T + 2)

def fft_role(a):
    L, T, t = F.L, F.T, S.T
    SZ, SW, SY = S.A, S.B, S.C
    KAP, PASS, SAL = t + 8, t + 9, t + 10
    a('s_waitcnt vmcnt(0)')
    srd(a, SZ, S.WS, WS_ZB, 2 * 32 * 256 * 128)
    srd(a, SW, S.WS, WS_WP, 32 * 512 * 128)
    srd(a, SY, S.WS, WS_YT, 512 * 4096)
    a(f'v_lshrrev_b32 v{T}, 3, v{L}'); a(f'v_and_b32 v{T+1}, 7, v{L}')
    a(f'v_xor_b32 v{T+2}, v{T+1}, v{T}')
    a(f'v_lshrrev_b32 v{T+3}, 1, v{T}'); a(f'v_xor_b32 v{T+3}, v{T+1}, v{T+3}')
    a(f'v_lshlrev_b32 v{T}, 7, v{T}')
    a(f's_lshr_b32 s{t}, s{S.WAVE}, 1'); a(f's_lshl_b32 s{t}, s{t}, 5'); a(f's_add_u32 s{t}, s{t}, s{S.GRP}'); a(f's_lshl_b32 s{t}, s{t}, 15')
    a(f's_and_b32 s{t+1}, s{S.WAVE}, 1'); a(f's_lshl_b32 s{t+1}, s{t+1}, 14'); a(f's_add_u32 s{t}, s{t}, s{t+1}')
    a(f's_lshl_b32 s{t+2}, s{S.WAVE}, 14')
    for n in range(16):
        a(f'v_xor_b32 v{T+4}, {n & 7}, v{T+2}'); a(f'v_lshl_add_u32 v{T+4}, v{T+4}, 4, v{T}')
        a(f's_add_u32 m0, s{t+2}, {LDS_Z + n*1024}'); a(f's_add_u32 s{t+3}, s{t}, {n*1024}')
        a(f'buffer_load_dwordx4 v{T+4}, s[{SZ}:{SZ+3}], s{t+3} offen {CFG["dmod"]} lds')
    hz = a.mark()
    a(f's_lshl_b32 s{t}, s{S.GRP}, 16'); a(f's_add_u32 s{t}, s{t}, s{t+2}')
    for n in range(16):
        a(f'v_xor_b32 v{T+4}, {4*(n&1)}, v{T+3}'); a(f'v_lshl_add_u32 v{T+4}, v{T+4}, 4, v{T}')
        a(f's_add_u32 m0, s{t+2}, {LDS_W + n*1024}'); a(f's_add_u32 s{t+3}, s{t}, {n*1024}')
        a(f'buffer_load_dwordx4 v{T+4}, s[{SW}:{SW+3}], s{t+3} offen {CFG["dmod"]} lds')
    a(f'v_lshrrev_b32 v{T}, 5, v{L}'); a(f'v_bfe_u32 v{T+1}, v{L}, 2, 2'); a(f'v_lshl_add_u32 v{T}, v{T}, 2, v{T+1}')
    a(f'v_bfe_u32 v{T+1}, v{L}, 4, 1'); a(f'v_and_b32 v{T+2}, 3, v{L}'); a(f'v_lshl_add_u32 v{T+1}, v{T+1}, 2, v{T+2}')
    a(f'v_xor_b32 v{T+2}, v{T}, v{T+1}'); a(f'v_xor_b32 v{T+2}, s{S.WAVE}, v{T+2}'); a(f'v_lshlrev_b32 v{T+2}, 4, v{T+2}')
    a(f'v_lshl_add_u32 v{T}, v{T}, 3, v{T+1}'); a(f'v_lshl_add_u32 v{F.RZ0}, v{T}, 7, v{T+2}')
    a(f'v_bfe_u32 v{T}, v{L}, 1, 3'); a(f'v_xor_b32 v{T}, s{S.WAVE}, v{T}'); a(f'v_lshlrev_b32 v{T}, 4, v{T}')
    a(f'v_lshl_add_u32 v{F.RW}, v{L}, 7, v{T}'); a(f'v_add_u32 v{F.RW}, {LDS_W}, v{F.RW}')
    a(f's_lshl_b32 s{KAP}, s{S.GRP}, 3'); a(f's_add_u32 s{KAP}, s{KAP}, s{S.WAVE}')
    a(f's_lshl_b32 s{t}, s{KAP}, 13')
    a(f'v_and_b32 v{T}, 15, v{L}'); a(f'v_lshlrev_b32 v{T}, 6, v{T}')
    a(f'v_bfe_u32 v{T+1}, v{L}, 4, 1'); a(f'v_lshl_add_u32 v{T}, v{T+1}, 5, v{T}')
    a(f'v_lshrrev_b32 v{T+1}, 5, v{L}'); a(f'v_lshl_add_u32 v{T}, v{T+1}, 4, v{T}')
    a(f'v_add_u32 v{F.VY}, s{t}, v{T}')
    a(f's_add_u32 s{SAL}, s{S.WS}, {WS_AL}'); a(f's_addc_u32 s{SAL+1}, s{S.WS+1}, 0')
    a(f's_mov_b32 s{PASS}, 0')
    a.wait_vm(hz)
    a('s_barrier')
    stamp(a, 7, T)
    col = a.label('fftcol')
    a(f'{col}:')
    stamp(a, 12, T)
    for p in range(2):
        for c in range(2):
            for b in range(2):
                for q in range(2):
                    r = (F.AI[p] if c else F.AR[p]) + 4*b + 2*q
                    a(f'ds_read_b64_tr_b16 v[{r}:{r+1}], v{F.RZ0} offset:{p*32768 + (16*b+8*q)*8*128 + 8*c}')
        if p == 0: pass
    a('s_waitcnt lgkmcnt(8)')
    for m in stage_mfmas(0, 'A', False): a(m)
    wok = a.label('wok')
    a(f's_cmp_lg_u32 s{PASS}, 0'); a(f's_cbranch_scc1 {wok}')
    a('s_waitcnt vmcnt(0)'); a('s_barrier')
    a(f'{wok}:')
    a('s_waitcnt lgkmcnt(0)')
    for p in range(2):
        for i in range(4):
            a(f'ds_read_b128 v[{F.W[p]+4*i}:{F.W[p]+4*i+3}], v{F.RW} offset:{p*32768 + i*8192}')
    a('s_nop 3')
    merge(a, twiddle_valu(0, False), stage_mfmas(1, 'A', False))
    merge(a, twiddle_valu(1, False), stage_mfmas(0, 'B', False))
    a('s_waitcnt lgkmcnt(0)')
    sp, jn = a.label('spec'), a.label('join')
    a(f's_cmp_eq_u32 s{KAP}, 0'); a(f's_cbranch_scc1 {sp}')
    merge(a, filter_valu(0), stage_mfmas(1, 'B', False))
    merge(a, filter_valu(1), stage_mfmas(0, 'A', True))
    a(f's_branch {jn}')
    a(f'{sp}:')
    for m in stage_mfmas(1, 'B', False): a(m)
    filter_special(a, 0, SAL)
    for m in stage_mfmas(0, 'A', True): a(m)
    filter_special(a, 1, SAL)
    a('s_nop 7'); a('s_nop 3')
    a(f'{jn}:')
    merge(a, twiddle_valu(0, True), stage_mfmas(1, 'A', True))
    merge(a, twiddle_valu(1, True), stage_mfmas(0, 'A', True))
    a('s_nop 1')
    for m in stage_mfmas(1, 'A', True): a(m)
    a('s_nop 7'); a('s_nop 3')
    ER, EI, DR, DI = F.DR[0], F.DI[0], F.DR[1], F.DI[1]
    for n in range(0, 16, 2):
        r_, i_, c, s_ = DR + n, DI + n, F.UC + n, F.US + n
        a(f'v_pk_mul_f32 {PP(T)}, {PP(r_)}, {PP(c)}'); a(f'v_pk_mul_f32 {PP(T+2)}, {PP(i_)}, {PP(c)}')
        a(f'v_pk_fma_f32 {PP(T)}, {PP(i_)}, {PP(s_)}, {PP(T)} neg_lo:[1,0,0] neg_hi:[1,0,0]')
        a(f'v_pk_fma_f32 {PP(T+2)}, {PP(r_)}, {PP(s_)}, {PP(T+2)}')
        a(f'v_pk_add_f32 {PP(r_)}, {PP(ER+n)}, {PP(T)} neg_lo:[0,1] neg_hi:[0,1]')
        a(f'v_pk_add_f32 {PP(i_)}, {PP(EI+n)}, {PP(T+2)} neg_lo:[0,1] neg_hi:[0,1]')
        a(f'v_pk_add_f32 {PP(ER+n)}, {PP(ER+n)}, {PP(T)}'); a(f'v_pk_add_f32 {PP(EI+n)}, {PP(EI+n)}, {PP(T+2)}')
    outs = [(ER, 0, 0), (DR, 0, 2048), (EI, 1, 0), (DI, 1, 2048)]
    a(f's_movk_i32 s{t}, 0x1000')
    for n_, (src, c, hi) in enumerate(outs):
        a('s_nop 1')
        for pp in range(2):
            for j in range(4): a(f'v_permlane32_swap_b32 v{src+8*pp+j}, v{src+8*pp+4+j}')
        o = (F.AR[0], F.AI[0], F.AR[1], F.AI[1])[n_]
        for pp in range(2):
            for jj in range(4): a(f'v_cvt_pk_bf16_f32 v{o+4*pp+jj}, v{src+8*pp+2*jj}, v{src+8*pp+2*jj+1}')
        a('s_nop 1')
        for k in range(4): a(f'v_permlane16_swap_b32 v{o+k}, v{o+4+k}')
        so = f's{t}' if c else '0'
        a.lines.append(f'buffer_store_dwordx4 v[{o}:{o+3}], v{F.VY}, s[{SY}:{SY+3}], {so} offen offset:{hi} sc1')
        a.lines.append(f'buffer_store_dwordx4 v[{o+4}:{o+7}], v{F.VY}, s[{SY}:{SY+3}], {so} offen offset:{hi + 1024} sc1')
    a(f'v_xor_b32 v{F.RZ0}, 64, v{F.RZ0}'); a(f'v_xor_b32 v{F.RW}, 64, v{F.RW}')
    a(f'v_add_u32 v{F.VY}, {4*8192}, v{F.VY}'); a(f's_add_u32 s{KAP}, s{KAP}, 4')
    a(f's_add_u32 s{PASS}, s{PASS}, 1'); a(f's_cmp_lt_u32 s{PASS}, 2'); a(f's_cbranch_scc1 {col}')
    stamp(a, 13, T)
    a('s_waitcnt vmcnt(0)')
    a('s_barrier')
    publish(a, [f's_lshl_b32 s{t}, s{S.GRP}, 7', f's_add_u32 s{t}, s{t}, {WS_F3}'], t, T)
    stamp(a, 8, T)

def gemm2(a):
    L, T, t = V.LANE, V.T, S.T
    a(f'v_and_b32 v{L}, 63, v0')
    read_addresses(a)
    srd(a, S.A, S.WS, WS_GT, 2304 * 1024)
    a(f's_lshl_b32 s{t+1}, s{S.DT}, 7')
    dma_offsets(a, V.P0, V.P1, 1024, t + 1)
    a(f's_mul_i32 s{S.SOA}, s{S.WAVE}, {16*1024}')
    a(f's_lshl_b32 s{t}, s{S.ROT4}, 16'); a(f's_add_u32 s{S.SOA2}, s{S.SOA}, s{t}'); a(f's_add_u32 s{S.SOA2}, s{S.SOA2}, {28*65536}')
    a(f's_lshl_b32 s{t}, s{S.ROT3}, 16'); a(f's_add_u32 s{S.SOA}, s{S.SOA}, s{t}')
    srd(a, S.C, S.WS, WS_YT, 512 * 4096)
    a(f's_lshl_b32 s{t+1}, s{S.ST}, 7')
    dma_offsets(a, V.Q0, V.Q1, 4096, t + 1)
    a(f's_mul_i32 s{S.SOB}, s{S.WAVE}, {16*4096}')
    a(f's_lshl_b32 s{t}, s{S.ROT4}, 18'); a(f's_add_u32 s{S.SOB}, s{S.SOB}, s{t}')
    V_XO, V_X, V_B2 = 50, 52, 60
    a(f's_lshr_b32 s{t}, s{S.WAVE}, 1'); a(f's_lshl_b32 s{t}, s{t}, 5'); a(f's_lshl_b32 s{t+1}, s{S.ST}, 6'); a(f's_add_u32 s{t}, s{t}, s{t+1}')
    a(f'v_and_b32 v{T}, 31, v{L}'); a(f'v_add_u32 v{T}, s{t}, v{T}'); a(f'v_lshlrev_b32 v{T+1}, 1, v{T}')
    a('s_waitcnt vmcnt(0)')
    a(f'global_load_ushort v{V_B2}, v{T+1}, s[{S.B2}:{S.B2+1}]')
    a(f's_and_b32 s{t}, s{S.WAVE}, 1'); a(f's_lshl_b32 s{t}, s{t}, 6'); a(f's_lshl_b32 s{t+1}, s{S.DT}, 7'); a(f's_add_u32 s{t}, s{t}, s{t+1}')
    a(f'v_lshrrev_b32 v{T+1}, 5, v{L}'); a(f'v_lshlrev_b32 v{T+1}, 4, v{T+1}')
    a(f'v_lshl_add_u32 v{V_XO}, v{T}, 10, v{T+1}'); a(f'v_add_u32 v{V_XO}, s{t}, v{V_XO}')
    a(f'global_load_dwordx4 v[{V_X}:{V_X+3}], v{V_XO}, s[{S.X}:{S.X+1}]')
    a(f'global_load_dwordx4 v[{V_X+4}:{V_X+7}], v{V_XO}, s[{S.X}:{S.X+1}] offset:32')
    VF, VFA = 62, 63
    a(f'v_min_u32 v{VFA}, 31, v{L}'); a(f'v_lshlrev_b32 v{VFA}, 7, v{VFA}'); a(f'v_add_u32 v{VFA}, {WS_F3}, v{VFA}')
    groups = [([f's_lshl_b32 s{t}, s{S.DT}, 12', f's_add_u32 s{t}, s{t}, {WS_F2}'], 28)]
    if not CFG['split3']: groups.append(([f's_mov_b32 s{t}, {WS_F3}'], 32))
    poll(a, groups, 128)
    stamp(a, 9, T)
    hf = {}
    def sample(a):
        a(f'global_load_dword v{VF}, v{VFA}, s[{S.WS}:{S.WS+1}] sc1'); hf['h'] = a.mark()
    def check(a):
        ok, lp = a.label('y_ok'), a.label('y_poll')
        a.wait_vm(hf['h'])
        a(f's_mov_b32 s{t+1}, 0')
        a(f'{lp}:')
        a(f'v_cmp_eq_u32 vcc, s{S.NONCE}, v{VF}')
        a('s_nop 4')
        a('s_cmp_eq_u64 vcc, -1'); a(f's_cbranch_scc1 {ok}')
        a.lines.append(f'global_load_dword v{VF}, v{VFA}, s[{S.WS}:{S.WS+1}] sc1')
        a('s_waitcnt vmcnt(0)')
        a(f's_add_u32 s{t+1}, s{t+1}, 1'); a(f's_cmp_lt_u32 s{t+1}, {CFG["spin"]}'); a(f's_cbranch_scc1 {lp}')
        a(f'{ok}:')
    steps = []
    for u in range(36):
        if u < 28: it = [(0, V.P0, V.P1, S.A, S.SOA, 1024, CFG['dmod'], (28*65536, 28*65536))]
        else: it = [(0, V.P0, V.P1, S.A, S.SOA2, 1024, CFG['dmod'], (36*65536, 8*65536)), (1, V.Q0, V.Q1, S.C, S.SOB, 4096, CFG['dmod'], (8*262144, 8*262144))]
        steps.append(dict(items=it, q=u if u < 28 else None))
    if CFG['split3']:
        steps[CFG['samp3']]['before_issue'] = sample
        steps[28]['before_issue'] = check
    stream_loop(a, steps, CFG.get('depth3', 12))
    stamp(a, 10, T)
    reduce_partials(a)
    VD = V.VD
    a(f'v_lshlrev_b32 v{V_B2}, 16, v{V_B2}')
    for i in range(16): a(f'v_add_f32 v{VD+i}, v{VD+i}, v{V_B2}')
    a('s_nop 1')
    for p in range(2):
        for j in range(4): a(f'v_permlane32_swap_b32 v{VD+8*p+j}, v{VD+8*p+4+j}')
    for p in range(2):
        for jj in range(4):
            xr = V_X + 4*p + jj
            d0 = VD + 8*p + 2*jj; d1 = d0 + 1
            a(f'v_lshlrev_b32 v{T}, 16, v{xr}'); a(f'v_and_b32 v{T+1}, 0xffff0000, v{xr}')
            a(f'v_add_f32 v{d0}, v{d0}, v{T}'); a(f'v_add_f32 v{d1}, v{d1}, v{T+1}')
            a(f'v_cvt_pk_bf16_f32 v{xr}, v{d0}, v{d1}')
    a(f'global_store_dwordx4 v{V_XO}, v[{V_X}:{V_X+3}], s[{S.OUT}:{S.OUT+1}]')
    a(f'global_store_dwordx4 v{V_XO}, v[{V_X+4}:{V_X+7}], s[{S.OUT}:{S.OUT+1}] offset:32')
    if CFG['stamps']:
        a('s_waitcnt vmcnt(0)')
        stamp(a, 11, T)

def mega(a, name):
    kernel_begin(a, name)
    end, fft, p3 = a.label('end'), a.label('fft'), a.label('p3')
    L, T, t = V.LANE, V.T, S.T
    a('s_cmp_ge_u32 s2, 256'); a(f's_cbranch_scc1 {end}')
    a('s_load_dwordx16 s[4:19], s[0:1], 0')
    a('s_load_dwordx4 s[20:23], s[0:1], 64')
    a('s_load_dwordx2 s[24:25], s[0:1], 80')
    a('v_lshrrev_b32 v1, 6, v0')
    a(f's_and_b32 s{S.XCD}, s2, 7'); a(f's_lshr_b32 s{S.J}, s2, 3')
    a(f'v_readfirstlane_b32 s{S.WAVE}, v1')
    a(f'v_and_b32 v{L}, 63, v0')
    a(f's_and_b32 s{t}, s{S.XCD}, 1'); a(f's_lshl_b32 s{t}, s{t}, 2'); a(f's_and_b32 s{t+1}, s{S.J}, 3'); a(f's_add_u32 s{S.DT}, s{t}, s{t+1}')
    a(f's_lshr_b32 s{t}, s{S.XCD}, 1'); a(f's_lshr_b32 s{t+2}, s{S.J}, 2')
    a(f's_lshl_b32 s{t+3}, s{t}, 3'); a(f's_add_u32 s{S.ST}, s{t+3}, s{t+2}')
    a(f's_mul_i32 s{t+3}, s{t}, 7'); a(f's_add_u32 s{S.FT}, s{t+3}, s{t+2}')
    a(f's_lshl_b32 s{t+3}, s{S.XCD}, 2'); a(f's_add_u32 s{S.GRP}, s{t+3}, s{t+1}')
    a(f's_mul_i32 s{S.RING}, s{S.WAVE}, {RINGB}')
    if CFG['rot']:
        a(f's_lshl_b32 s{t+4}, s{t+1}, 3'); a(f's_mul_i32 s{t+5}, s{t+2}, 5'); a(f's_add_u32 s{t+4}, s{t+4}, s{t+5}'); a(f's_and_b32 s{S.ROT1}, s{t+4}, 31')
        a(f's_mul_i32 s{t+4}, s{t+1}, 7'); a(f's_mul_i32 s{t+5}, s{t+2}, 7'); a(f's_lshr_b32 s{t+5}, s{t+5}, 1'); a(f's_add_u32 s{t+4}, s{t+4}, s{t+5}')
        a(f's_cmp_ge_u32 s{t+4}, 28'); a(f's_cselect_b32 s{t+5}, 28, 0'); a(f's_sub_u32 s{S.ROT3}, s{t+4}, s{t+5}')
        a(f's_lshl_b32 s{t+4}, s{t+1}, 1'); a(f's_add_u32 s{t+4}, s{t+4}, s{t+2}'); a(f's_and_b32 s{S.ROT4}, s{t+4}, 7')
    else:
        for r in (S.ROT1, S.ROT3, S.ROT4): a(f's_mov_b32 s{r}, 0')
    a('s_waitcnt lgkmcnt(0)')
    stamp(a, 0, T)
    if CFG.get('clk'):
        a('s_memtime s[80:81]'); a('s_memrealtime s[82:83]'); a('s_waitcnt lgkmcnt(0)')
    if CFG.get('echo'):
        a('s_memrealtime s[82:83]'); a('s_waitcnt lgkmcnt(0)')
    nn = a.label('nn')
    a(f's_or_b32 s{t}, s2, s{S.WAVE}'); a(f's_cmp_lg_u32 s{t}, 0'); a(f's_cbranch_scc1 {nn}')
    a(f's_memrealtime s[{t}:{t+1}]'); a('s_waitcnt lgkmcnt(0)'); a(f's_or_b32 s{t}, s{t}, 1')
    a(f'v_mov_b32 v{T}, s{t}'); a(f'v_mov_b32 v{T+1}, 0')
    a('s_mov_b64 exec, 1')
    a.lines.append(f'global_store_dword v{T+1}, v{T}, s[{S.DBG}:{S.DBG+1}] sc1')
    a('s_mov_b64 exec, -1')
    a(f'{nn}:')
    STR64 = t + 14
    read_addresses(a)
    a(f's_cmp_ge_u32 s{S.J}, 28')
    a(f's_cselect_b32 s{S.B}, s{S.W2}, s{S.W1}'); a(f's_cselect_b32 s{S.B+1}, s{S.W2+1}, s{S.W1+1}')
    a(f's_mov_b32 s{S.B+2}, {2048*3584}'); a(f's_mov_b32 s{S.B+3}, 0x20000')
    a(f's_cselect_b32 s{t+1}, s{S.ST}, s{S.FT}'); a(f's_movk_i32 s{t+2}, 3584'); a(f's_cselect_b32 s{t+2}, 4096, s{t+2}')
    a(f's_lshl_b32 s{t+1}, s{t+1}, 7'); a(f's_mov_b32 s{PF_COL}, s{t+1}')
    a(f's_lshl_b32 s{STR64}, s{t+2}, 6')
    a(f'v_lshrrev_b32 v{T}, 3, v{L}'); a(f'v_and_b32 v{T+1}, 7, v{L}'); a(f'v_lshlrev_b32 v{T+2}, 1, v{T}'); a(f'v_and_b32 v{T+2}, 4, v{T+2}')
    a(f'v_xor_b32 v{T+1}, v{T+1}, v{T+2}'); a(f'v_lshlrev_b32 v{T+1}, 4, v{T+1}')
    a(f'v_mad_u32_u24 v{V.Q0}, v{T}, s{t+2}, v{T+1}'); a(f'v_add_u32 v{V.Q0}, s{t+1}, v{V.Q0}')
    a(f's_lshl_b32 s{t+3}, s{t+2}, 3'); a(f's_sub_u32 s{t+3}, s{t+3}, 1024'); a(f'v_add_u32 v{V.Q1}, s{t+3}, v{V.Q0}')
    a(f's_mul_i32 s{S.SOB}, s{S.WAVE}, s{t+2}'); a(f's_lshl_b32 s{S.SOB}, s{S.SOB}, 4')
    a(f's_cmp_ge_u32 s{S.J}, 28'); a(f's_cselect_b32 s{t+4}, s{S.ROT3}, s{S.ROT1}')
    a(f's_mul_i32 s{t+4}, s{t+4}, s{STR64}'); a(f's_add_u32 s{S.SOB}, s{S.SOB}, s{t+4}')
    pre = Preload(32, PRE_SRD, f's{STR64}', CFG['wmod'], range(NRING), wrap=(7340032, 7340032))
    for j in range(4): a(f's_mov_b32 s{PRE_SRD+j}, s{S.B+j}')
    phase1(a, pre)
    pre.drain(a)
    nc = a.label('noc')
    a(f's_cmp_lt_u32 s{S.J}, 28'); a(f's_cbranch_scc1 {nc}')
    fft_consts(a)
    a(f'{nc}:')
    stamp(a, 5, 244)
    poll(a, [([f's_mov_b32 s{t}, {WS_F1}'], 256)], 128)
    stamp(a, 6, 244)
    a(f's_cmp_ge_u32 s{S.J}, 28'); a(f's_cbranch_scc1 {fft}')
    gemm1(a)
    a(f's_branch {p3}')
    a(f'{fft}:')
    fft_role(a)
    a(f'{p3}:')
    gemm2(a)
    if CFG.get('echo'):
        lp = a.label('echo')
        if CFG['echo'] == 11:
            a('s_waitcnt vmcnt(0)'); a('s_memrealtime s[84:85]'); a('s_waitcnt lgkmcnt(0)'); a('s_sub_u32 s84, s84, s82')
        a('s_memrealtime s[88:89]'); a('s_waitcnt lgkmcnt(0)')
        a(f'{lp}:')
        a('s_memrealtime s[90:91]'); a('s_waitcnt lgkmcnt(0)'); a('s_sub_u32 s90, s90, s88')
        a('s_cmp_lt_u32 s90, s84'); a(f's_cbranch_scc1 {lp}')
    if CFG.get('delay'):
        lp = a.label('dly')
        a('s_memtime s[88:89]'); a('s_waitcnt lgkmcnt(0)')
        a(f'{lp}:')
        a('s_memtime s[90:91]'); a('s_waitcnt lgkmcnt(0)'); a('s_sub_u32 s90, s90, s88')
        a(f's_cmp_lt_u32 s90, {CFG["delay"]}'); a(f's_cbranch_scc1 {lp}')
    if CFG.get('clk'):
        sk = a.label('clk')
        a('s_waitcnt vmcnt(0)')
        a('s_memtime s[84:85]'); a('s_memrealtime s[86:87]'); a('s_waitcnt lgkmcnt(0)')
        a('s_sub_u32 s84, s84, s80'); a('s_sub_u32 s86, s86, s82')
        a(f's_and_b32 s{t}, s2, 63'); a(f's_or_b32 s{t}, s{t}, s{S.WAVE}'); a(f's_cmp_lg_u32 s{t}, 0'); a(f's_cbranch_scc1 {sk}')
        a('s_mov_b64 exec, 1')
        a('v_mov_b32 v2, s84'); a('v_mov_b32 v3, s86'); a('s_lshr_b32 s84, s2, 6'); a('s_lshl_b32 s84, s84, 3'); a('s_add_u32 s84, s84, 8'); a('v_mov_b32 v4, s84')
        a(f'global_store_dwordx2 v4, v[2:3], s[{S.DBG}:{S.DBG+1}]')
        a(f'{sk}:')
    a(f'{end}:')
    a('s_endpgm')

PRE_SRD = 76
PF_COL = 92

def tables(a):
    tb.emit(a, 'tab_k1', tb.f32mat('c') + tb.f32mat('ns') + tb.t512() + tb.a2())
    tb.emit(a, 'tab_fft', tb.f32mat('c') + tb.f32mat('s') + tb.f32mat('ns') + tb.t1024() + tb.t2048())

KNAME = 'parallel_sum__spectral_gfnet__mixer_token_mlp__prompt_kernel'
def make(path, **cfg):
    CFG.update(dict(split3=1, samp3=18, rot=1, dmod='', mid=8, pf1=1, stamps=0, early=0, inmod='nt', wmod='nt', wmod2='', spin=1 << 18, pf2=1, depth1=12, depth3=12))
    CFG.update(cfg)
    a = Em()
    lst = CFG.get('aslist', 0)
    if lst:
        launches = [('empty_kernel', (256, 1, 1), (64, 1, 1), 0)] * (lst - 1) + [('mega_kernel', (256, 1, 1), (256, 1, 1), LDS_TOTAL)]
        a(HEADER + launch_lines(launches) + '.amdgcn_target "amdgcn-amd-amdhsa--gfx950"\n.text')
        mega(a, 'mega_kernel')
        if lst > 1:
            kernel_begin(a, 'empty_kernel'); a('s_endpgm')
        a('.section .rodata,"a"\n.p2align 6')
        a(descriptor('mega_kernel', 256, 256))
        if lst > 1: a(descriptor('empty_kernel', 8))
        open(path, 'w').write(a.text())
        build(path, launches)
        return
    a(HEADER + f'; @launch grid=(256,1,1) block=(256,1,1) lds={LDS_TOTAL}\n' + '.amdgcn_target "amdgcn-amd-amdhsa--gfx950"\n.text')
    mega(a, KNAME)
    a('.section .rodata,"a"\n.p2align 6')
    a(descriptor(KNAME, 256, 256))
    open(path, 'w').write(a.text())
    build(path, [(KNAME, (256, 1, 1), (256, 1, 1), LDS_TOTAL)])

if __name__ == '__main__':
    o = dict(x.split('=') for x in sys.argv[2:])
    cfg = {k: (int(v) if v.lstrip('-').isdigit() else v.replace('_', ' ')) for k, v in o.items()}
    make(sys.argv[1], **cfg)
```

```python
import sys, struct
from asm2 import *
import tables as tb

WS_BASE = 0
WS_H    = WS_BASE + 0x000000
WS_GT   = WS_BASE + 0x200000
WS_FINV = WS_GT + 1792 * 1024
WS_ZB   = WS_BASE + 0x480000
WS_WP   = WS_BASE + 0x680000
WS_AL   = WS_BASE + 0x880000
WS_BE   = WS_BASE + 0x882000
WS_F1   = WS_BASE + 0x890000
WS_F2   = WS_BASE + 0x898000
WS_F3   = WS_BASE + 0x8A0000
WS_YT   = WS_BASE + 0x900000
WS_STAMP = 0x10000000 - (16 << 20)
NSLOT = 16

NRING = 18
RINGB = NRING * 2048
LDS_EX = 4 * RINGB
LDS_TOTAL = LDS_EX + 16384
LDS_Z, LDS_W, LDS_X = 0, 65536, 131072

class S:
    WAVE = 3
    X, WR, WI, BX, W1, B1, W2, B2, OUT, DBG, WS = 4, 6, 8, 10, 12, 14, 16, 18, 20, 22, 24
    NONCE, XCD, J, RING = 26, 27, 28, 29
    DT, FT, ST, GRP = 30, 31, 32, 33
    ROT1, ROT3, ROT4, SOA2 = 94, 95, 96, 97
    A, B, C, D = 36, 40, 44, 48
    SOA, SOB = 52, 53
    TAB = 54
    T = 56
    STMP = 72

CFG = dict(stamps=0, early=12, inmod='nt', wmod='nt', spin=1 << 18)

def fb(x): return '0x%08x' % struct.unpack('<I', struct.pack('<f', x))[0]

def srd(a, s, base, off, size):
    with a.atomic():
        if off:
            a(f's_add_u32 s{s}, s{base}, {off}'); a(f's_addc_u32 s{s+1}, s{base+1}, 0')
        else:
            a(f's_mov_b32 s{s}, s{base}'); a(f's_mov_b32 s{s+1}, s{base+1}')
        a(f's_mov_b32 s{s+2}, {size}'); a(f's_mov_b32 s{s+3}, 0x20000')

def stamp(a, slot, vt):
    if CFG.get('echo') == slot:
        with a.atomic():
            a('s_memrealtime s[84:85]'); a('s_waitcnt lgkmcnt(0)'); a('s_sub_u32 s84, s84, s82')
    if not CFG['stamps']: return
    st = S.STMP
    skip = a.label('stamp')
    old = a.in_bg; a.in_bg = True
    a(f's_memrealtime s[{st}:{st+1}]')
    a(f'v_cmp_eq_u32 vcc, 0, v0')
    a(f's_and_saveexec_b64 s[{st+2}:{st+3}], vcc')
    a(f's_waitcnt lgkmcnt(0)')
    a(f's_cbranch_execz {skip}')
    a(f'v_mov_b32 v{vt}, s{st}'); a(f'v_mov_b32 v{vt+1}, s{st+1}')
    a(f's_mul_i32 s{st}, s2, {NSLOT*8}'); a(f's_add_u32 s{st}, s{st}, {WS_STAMP + slot*8}')
    a(f'v_mov_b32 v{vt+2}, s{st}')
    a.lines.append(f'global_store_dwordx2 v{vt+2}, v[{vt}:{vt+1}], s[{S.WS}:{S.WS+1}]')
    a(f'{skip}:')
    a(f's_mov_b64 exec, s[{st+2}:{st+3}]')
    a.in_bg = old
    a.nobg('s_waitcnt vmcnt(0)') if CFG['stamps'] == 2 else None

def table_base(a, s, label):
    l = a.label('pc')
    a(f's_getpc_b64 s[{s}:{s+1}]'); a(f'{l}:')
    a(f's_add_u32 s{s}, s{s}, {label}-{l}'); a(f's_addc_u32 s{s+1}, s{s+1}, 0')

def table_load(a, s, voff, dsts, g0=0):
    cur = 0
    for n, dst in enumerate(dsts):
        g = g0 + n
        while g * 1024 - cur >= 4096:
            a(f'v_add_u32 v{voff}, 4096, v{voff}'); cur += 4096
        a(f'global_load_dwordx4 {dst}, v{voff}, s[{s}:{s+1}] offset:{g*1024-cur}')

def publish(a, off_expr_lines, s_off, vt):
    skip = a.label('pub')
    a(f's_cmp_lg_u32 s{S.WAVE}, 0'); a(f's_cbranch_scc1 {skip}')
    for l in off_expr_lines: a(l)
    a('s_mov_b64 exec, 1')
    a(f'v_mov_b32 v{vt}, s{S.NONCE}'); a(f'v_mov_b32 v{vt+1}, s{s_off}')
    a.lines.append(f'global_store_dword v{vt+1}, v{vt}, s[{S.WS}:{S.WS+1}] sc1')
    a('s_mov_b64 exec, -1')
    a(f'{skip}:')

def poll(a, groups, vt):
    skip, loop, ok = a.label('poll_skip'), a.label('poll'), a.label('poll_ok')
    T = S.T
    a(f's_cmp_lg_u32 s{S.WAVE}, 0'); a(f's_cbranch_scc1 {skip}')
    loads = []
    nv = 0
    for (lines, count) in groups:
        for l in lines: a(l)
        for c0 in range(0, count, 64):
            n = min(64, count - c0)
            va = vt + 2 * nv
            a(f'v_and_b32 v{va}, 63, v0')
            if n < 64: a(f'v_min_u32 v{va}, {n-1}, v{va}')
            a(f'v_lshlrev_b32 v{va}, 7, v{va}')
            a(f'v_add_u32 v{va}, s{T}, v{va}')
            if c0: a(f'v_add_u32 v{va}, {c0*128}, v{va}')
            loads.append(va); nv += 1
    a(f's_mov_b32 s{T+1}, 0')
    a(f'{loop}:')
    for va in loads:
        a.lines.append(f'global_load_dword v{va+1}, v{va}, s[{S.WS}:{S.WS+1}] sc1')
    a('s_waitcnt vmcnt(0)')
    first = True
    for va in loads:
        a(f'v_xor_b32 v{va+1}, s{S.NONCE}, v{va+1}')
        if not first: a(f'v_or_b32 v{loads[0]+1}, v{loads[0]+1}, v{va+1}')
        first = False
    a(f'v_cmp_eq_u32 vcc, 0, v{loads[0]+1}')
    a('s_nop 4')
    a('s_cmp_eq_u64 vcc, -1'); a(f's_cbranch_scc1 {ok}')
    a(f's_add_u32 s{T+1}, s{T+1}, 1'); a(f's_cmp_lt_u32 s{T+1}, {CFG["spin"]}'); a(f's_cbranch_scc1 {loop}')
    a(f'{ok}:')
    a(f'{skip}:')
    a('s_barrier')

class V:
    LANE = 1
    P0, P1, Q0, Q1 = 2, 3, 4, 5
    RA0, RA1, RB0, RB1 = 6, 7, 8, 9
    FR = 12
    FQ = 144
    T = 44
    ACC = 64
    VD = 128

def dma_offsets(a, dst0, dst1, stride, s_col):
    L, T = V.LANE, V.T
    a(f'v_lshrrev_b32 v{T}, 3, v{L}'); a(f'v_and_b32 v{T+1}, 7, v{L}')
    a(f'v_lshlrev_b32 v{T+2}, 1, v{T}'); a(f'v_and_b32 v{T+2}, 4, v{T+2}')
    a(f'v_xor_b32 v{T+1}, v{T+1}, v{T+2}'); a(f'v_lshlrev_b32 v{T+1}, 4, v{T+1}')
    a(f's_mov_b32 s{S.T}, {stride}')
    a(f'v_mad_u32_u24 v{dst0}, v{T}, s{S.T}, v{T+1}')
    a(f'v_add_u32 v{dst0}, s{s_col}, v{dst0}')
    a(f'v_add_u32 v{dst1}, {8*stride-1024}, v{dst0}')

def read_addresses(a):
    L, T = V.LANE, V.T
    a(f'v_lshrrev_b32 v{T}, 5, v{L}'); a(f'v_lshlrev_b32 v{T}, 3, v{T}')
    a(f'v_bfe_u32 v{T+1}, v{L}, 2, 2'); a(f'v_add_u32 v{T}, v{T}, v{T+1}'); a(f'v_lshlrev_b32 v{T}, 7, v{T}')
    a(f'v_bfe_u32 v{T+2}, v{L}, 4, 1'); a(f'v_lshlrev_b32 v{T+2}, 5, v{T+2}')
    a(f'v_and_b32 v{T+3}, 3, v{L}'); a(f'v_lshl_add_u32 v{T+2}, v{T+3}, 3, v{T+2}')
    a(f'v_lshlrev_b32 v{T+1}, 5, v{T+1}'); a(f'v_and_b32 v{T+1}, 64, v{T+1}'); a(f'v_or_b32 v{T+2}, v{T+2}, v{T+1}')
    a(f'v_add3_u32 v{T}, v{T}, v{T+2}, s{S.RING}')
    a(f's_lshl_b32 s{S.T}, s{S.WAVE}, 6'); a(f's_and_b32 s{S.T}, s{S.T}, 64')
    a(f'v_xor_b32 v{V.RA0}, s{S.T}, v{T}'); a(f'v_xor_b32 v{V.RA1}, 64, v{V.RA0}')
    a(f's_lshl_b32 s{S.T}, s{S.WAVE}, 5'); a(f's_and_b32 s{S.T}, s{S.T}, 64')
    a(f'v_xor_b32 v{V.RB0}, s{S.T}, v{T}'); a(f'v_xor_b32 v{V.RB1}, 64, v{V.RB0}')

S_WRAP = 93
def dma_groups(slot, v0, v1, srd_, so, stride, mods, wrap=None):
    g0 = [f's_add_u32 m0, s{S.RING}, {slot*2048}', 's_nop 0',
          f'buffer_load_dwordx4 v{v0}, s[{srd_}:{srd_+3}], s{so} offen {mods} lds']
    g1 = [f'buffer_load_dwordx4 v{v1}, s[{srd_}:{srd_+3}], s{so} offen offset:1024 {mods} lds',
          f's_add_u32 s{so}, s{so}, {stride if isinstance(stride, str) else 64*stride}']
    if wrap:
        g1 += [f's_cmp_ge_u32 s{so}, {wrap[0]}', f's_cselect_b32 s{S_WRAP}, {wrap[1]}, 0', f's_sub_u32 s{so}, s{so}, s{S_WRAP}']
    return g0, g1

def tile_reads(a, slot, side, dst):
    if CFG.get('x_nods') and side == 0: return
    for t in range(2):
        ra = (V.RA0, V.RA1, V.RB0, V.RB1)[side * 2 + t]
        for q in range(2):
            a(f'ds_read_b64_tr_b16 {dst(t, q)}, v{ra} offset:{slot*2048 + q*512}')

def vpair(base): return lambda t, q: f'v[{base+4*t+2*q}:{base+4*t+2*q+1}]'
def apair(base): return lambda t, q: f'a[{base+4*t+2*q}:{base+4*t+2*q+1}]'

class Preload:
    def __init__(self, nsteps, srd_, stride, mods, slots, wrap=None):
        self.wrap = wrap
        self.n, self.srd, self.stride, self.mods, self.slots = nsteps, srd_, stride, mods, list(slots)
        self.issued = 0; self.done = 0; self.h = {}; self.slot = {}; self.free = list(slots)
    def issue_groups(self, k):
        out = []
        for _ in range(k):
            if self.issued >= self.n or not self.free: break
            u = self.issued; self.issued += 1
            sl = self.free.pop(0); self.slot[u] = sl
            g0, g1 = dma_groups(sl, V.Q0, V.Q1, self.srd, S.SOB, self.stride, self.mods, self.wrap)
            def mk(u, g1):
                def f(a):
                    for l in g1: a(l)
                    self.h[u] = a.mark()
                return f
            out += [g0, mk(u, g1)]
        return out
    def parts(self, a, sl):
        u = self.issued; self.issued += 1; self.slot[u] = sl
        g0, g1 = dma_groups(sl, V.Q0, V.Q1, self.srd, S.SOB, self.stride, self.mods, self.wrap)
        def p0():
            for l in g0: a(l)
        def p1():
            for l in g1: a(l)
            self.h[u] = a.mark()
        return p0, p1
    def issue(self, a, k):
        for g in self.issue_groups(k):
            g(a) if callable(g) else [a(l) for l in g]
    def drain(self, a, upto=None, more_slots=()):
        self.free += list(more_slots)
        upto = self.n if upto is None else upto
        self.issue(a, len(self.free))
        pend = None
        while self.done < upto:
            u = self.done
            a.wait_vm(self.h[u])
            tile_reads(a, self.slot[u], 1, apair(8 * u))
            if pend is not None:
                a('s_waitcnt lgkmcnt(4)')
                self.free.append(self.slot[pend]); self.issue(a, 1)
            pend = u
            self.done += 1
        a('s_waitcnt lgkmcnt(0)')
        if pend is not None: self.free.append(self.slot[pend])

def mfma_step(fs, qreg):
    f = V.FR + 8 * fs
    out = []
    if CFG.get('x_nomfma'): return ['s_nop 0'] * 4
    if CFG.get('x_vq'): qreg = lambda nt: f'v[{V.FQ+4*nt}:{V.FQ+4*nt+3}]'
    for nt in range(2):
        for mt in range(2):
            acc = V.ACC + (nt * 2 + mt) * 16
            out.append(f'v_mfma_f32_32x32x16_bf16 v[{acc}:{acc+15}], v[{f+4*mt}:{f+4*mt+3}], {qreg(nt)}, v[{acc}:{acc+15}]')
    return out

def stream_loop(a, steps, depth, bg_extra=(), tail=None, marks=None):
    NS = 3
    items = []
    for u, st in enumerate(steps):
        for it in st['items']: items.append((u, it))
    nxt = 0; free = list(range(NRING)); slot = {}; h = {}
    def issue_parts():
        nonlocal nxt
        u, it = items[nxt]; key = (u, it[0]); nxt += 1
        sl = free.pop(0); slot[key] = sl
        hook = steps[u].get('before_issue')
        g0, g1 = dma_groups(sl, it[1], it[2], it[3], it[4], it[5], it[6], it[7] if len(it) > 7 else None)
        def p0():
            if hook and it is steps[u]['items'][0]: hook(a)
            for l in g0: a(l)
        def p1():
            for l in g1: a(l)
            h[key] = a.mark()
        return p0, p1
    def read_list(u):
        fs = u % NS; out = []
        for it in steps[u]['items']:
            key = (u, it[0])
            for t in range(2):
                ra = (V.RA0, V.RA1, V.RB0, V.RB1)[it[0] * 2 + t]
                base = (V.FR if it[0] == 0 else V.FQ) + 8 * fs
                for q in range(2):
                    if CFG.get('x_nods'): continue
                    out.append(f'ds_read_b64_tr_b16 v[{base+4*t+2*q}:{base+4*t+2*q+1}], v{ra} offset:{slot[key]*2048 + q*512}')
        return out
    def last_handle(u): return max(h[(u, it[0])] for it in steps[u]['items'])
    for i in range(64): a(f'v_mov_b32 v{V.ACC+i}, 0')
    inflight = lambda: NRING - len(free)
    while nxt < len(items) and inflight() < depth:
        p0, p1 = issue_parts(); p0(); p1()
    for g in bg_extra:
        g(a) if callable(g) else [a(l) for l in g]
    n = len(steps)
    nreads = {}
    for u in range(min(2, n)):
        a.wait_vm(last_handle(u))
        rl = read_list(u); nreads[u] = len(rl)
        for l in rl: a(l)
    for u in range(n):
        fs = u % NS
        q = steps[u]['q']
        qreg = (lambda nt, q=q: f'a[{8*q+4*nt}:{8*q+4*nt+3}]') if q is not None else (lambda nt, fs=fs: f'v[{V.FQ+8*fs+4*nt}:{V.FQ+8*fs+4*nt+3}]')
        m = mfma_step(fs, qreg)
        if marks and u in marks: stamp(a, marks[u], 240)
        a(f's_waitcnt lgkmcnt({nreads.get(u+1, 0) if u + 1 < n else 0})')
        a(m[0])
        for it in steps[u]['items']: free.append(slot[(u, it[0])])
        parts = []
        while nxt < len(items) and inflight() < depth and free:
            parts.append(issue_parts())
        if nxt >= len(items) and not parts and tail:
            tp = tail(a, free)
            if tp: parts.append(tp)
        if parts: parts[0][0]()
        a(m[1])
        if parts: parts[0][1]()
        for p0, p1 in parts[1:]:
            p0(); p1()
        rl = []
        if u + 2 < n:
            a.wait_vm(last_handle(u + 2))
            rl = read_list(u + 2); nreads[u + 2] = len(rl)
        a(m[2])
        for l in rl[:len(rl)//2]: a(l)
        a(m[3])
        for l in rl[len(rl)//2:]: a(l)
    return free

def reduce_partials(a, bg=None):
    L, T = V.LANE, V.T
    a(f'v_lshlrev_b32 v{T}, 4, v{L}')
    a(f'v_add_u32 v{T+1}, s{S.RING}, v{T}')
    for t in range(1, 4):
        a(f's_xor_b32 s{S.T}, s{S.WAVE}, {t}'); a(f's_mul_i32 s{S.T}, s{S.T}, {RINGB}')
        a(f'v_add_u32 v{T+1+t}, s{S.T}, v{T}')
    a('s_nop 7')
    for t in range(1, 4):
        for i in range(4):
            r = V.ACC + t*16 + i*4
            a(f'ds_write_b128 v{T+1}, v[{r}:{r+3}] offset:{(t-1)*4096+i*1024}')
    a('s_waitcnt lgkmcnt(0)')
    a('s_barrier')
    for t in range(1, 4):
        for i in range(4):
            r = V.ACC + t*16 + i*4
            a(f'ds_read_b128 v[{r}:{r+3}], v{T+1+t} offset:{(t-1)*4096+i*1024}')
    a('s_waitcnt lgkmcnt(8)')
    for i in range(16): a(f'v_add_f32 v{V.VD+i}, v{V.ACC+i}, v{V.ACC+16+i}')
    a('s_waitcnt lgkmcnt(4)')
    for i in range(16): a(f'v_add_f32 v{V.VD+i}, v{V.VD+i}, v{V.ACC+32+i}')
    a('s_waitcnt lgkmcnt(0)')
    for i in range(16): a(f'v_add_f32 v{V.VD+i}, v{V.VD+i}, v{V.ACC+48+i}')


def ff(x): return fb(float(x))
def lane_floats(a, fa, fh, tmp):
    L = V.LANE
    a(f'v_and_b32 v{tmp}, 31, v{L}'); a(f'v_cvt_f32_u32 v{fa}, v{tmp}')
    a(f'v_lshrrev_b32 v{tmp}, 5, v{L}'); a(f'v_cvt_f32_u32 v{fh}, v{tmp}')

def gen_f32(a, fa, fh, C, S_, NS, tmp):
    st, ba = tmp, tmp + 1
    a(f'v_mul_f32 v{st}, {ff(1/32)}, v{fa}')
    a(f'v_mul_f32 v{ba}, v{fa}, v{fh}'); a(f'v_mul_f32 v{ba}, {ff(1/8)}, v{ba}')
    for b in range(2):
        for q in range(4):
            r = []
            for e in range(2):
                jj = 2*q + e; kb = 16*b + 8*(jj//4) + jj % 4
                a(f'v_fmamk_f32 v{tmp+2+e}, v{st}, {ff(kb)}, v{ba}')
            for e in range(2):
                a(f'v_sin_f32 v{tmp+4+e}, v{tmp+2+e}')
            for e in range(2):
                a(f'v_cos_f32 v{tmp+2+e}, v{tmp+2+e}')
            if S_ is not None: a(f'v_cvt_pk_bf16_f32 v{S_+4*b+q}, v{tmp+4}, v{tmp+5}')
            if NS is not None: a(f'v_cvt_pk_bf16_f32 v{NS+4*b+q}, -v{tmp+4}, -v{tmp+5}')
            a(f'v_cvt_pk_bf16_f32 v{C+4*b+q}, v{tmp+2}, v{tmp+3}')

def gen_twiddle(a, fa, fh, TC, TS, ns, den, tmp):
    st, ba = tmp, tmp + 1
    a(f'v_mul_f32 v{st}, {ff(1/den)}, v{fa}')
    a(f'v_mul_f32 v{ba}, v{fa}, v{fh}'); a(f'v_mul_f32 v{ba}, {ff(4/den)}, v{ba}')
    for i, n in enumerate(ns):
        a(f'v_fmamk_f32 v{TC+i}, v{st}, {ff(n)}, v{ba}')
        a(f'v_sin_f32 v{TS+i}, v{TC+i}'); a(f'v_cos_f32 v{TC+i}, v{TC+i}')

def gen_t2048(a, fa, fh, UC, US, tmp):
    a(f'v_mul_f32 v{tmp}, {ff(1/64)}, v{fa}'); a(f'v_fmamk_f32 v{tmp}, v{fh}, {ff(4/2048)}, v{tmp}')
    for i in range(4):
        for j in range(4):
            n = 4*i + j
            a(f'v_add_f32 v{UC+n}, {ff((8*i+j)/2048)}, v{tmp}')
            a(f'v_sin_f32 v{US+n}, v{UC+n}'); a(f'v_cos_f32 v{UC+n}, v{UC+n}')

def gen_a2(a, fh, A2R, A2I, tmp):
    L = V.LANE
    k2, c4, st, ba = tmp, tmp + 1, tmp + 2, tmp + 3
    a(f'v_bfe_u32 v{k2}, v{L}, 3, 2'); a(f'v_lshlrev_b32 v{k2}, 2, v{k2}')
    a(f'v_bfe_u32 v{c4}, v{L}, 2, 1'); a(f'v_lshl_add_u32 v{k2}, v{c4}, 1, v{k2}')
    a(f'v_bfe_u32 v{c4}, v{L}, 1, 1'); a(f'v_add_u32 v{k2}, v{k2}, v{c4}'); a(f'v_cvt_f32_u32 v{k2}, v{k2}')
    a(f'v_and_b32 v{c4}, 1, v{L}'); a(f'v_cvt_f32_u32 v{c4}, v{c4}'); a(f'v_mul_f32 v{c4}, 0x3e800000, v{c4}')
    a(f'v_mul_f32 v{st}, {ff(1/16)}, v{k2}')
    a(f'v_mul_f32 v{ba}, v{k2}, v{fh}'); a(f'v_fmamk_f32 v{ba}, v{ba}, {ff(1/4)}, v{c4}')
    for q in range(4):
        for e in range(2):
            jj = 2*q + e; nb = 8*(jj//4) + jj % 4
            a(f'v_fmamk_f32 v{tmp+4+e}, v{st}, {ff(nb)}, v{ba}')
        for e in range(2): a(f'v_sin_f32 v{tmp+6+e}, v{tmp+4+e}')
        for e in range(2): a(f'v_cos_f32 v{tmp+4+e}, v{tmp+4+e}')
        a(f'v_cvt_pk_bf16_f32 v{A2I+q}, v{tmp+6}, v{tmp+7}')
        a(f'v_cvt_pk_bf16_f32 v{A2R+q}, v{tmp+4}, v{tmp+5}')

def row_sum(a, v, t):
    for n in (8, 4, 2, 1):
        a('s_nop 1')
        a(f'v_add_f32_dpp v{v}, v{v}, v{v} row_ror:{n} row_mask:0xf bank_mask:0xf')
    a(f'v_mov_b32 v{t}, v{v}')
    a('s_nop 1')
    a(f'v_permlane32_swap_b32 v{v}, v{t}')
    a('s_nop 0')
    a(f'v_add_f32 v{v}, v{v}, v{t}')

def rbf(a, d, s):
    a(f'v_cvt_pk_bf16_f32 v{d}, v{s}, v{s}')
    a(f'v_lshlrev_b32 v{d}, 16, v{d}')

def layernorm(a, X, P, T, unpack):
    t0, t1, t2, t3 = T, T + 1, T + 2, T + 3
    Pp = lambda x: f'v[{x}:{x+1}]'
    a(f'v_pk_add_f32 {Pp(t0)}, {Pp(X)}, {Pp(X+2)}'); a(f'v_pk_add_f32 {Pp(t2)}, {Pp(X+4)}, {Pp(X+6)}')
    for i in (8, 12):
        a(f'v_pk_add_f32 {Pp(t0)}, {Pp(t0)}, {Pp(X+i)}'); a(f'v_pk_add_f32 {Pp(t2)}, {Pp(t2)}, {Pp(X+i+2)}')
    a(f'v_pk_add_f32 {Pp(t0)}, {Pp(t0)}, {Pp(t2)}')
    a(f'v_add_f32 v{t0}, v{t0}, v{t1}')
    row_sum(a, t0, t1)
    a(f'v_mul_f32 v{t0}, 0x3b000000, v{t0}')
    rbf(a, t2, t0)
    a(f'v_sub_f32 v{t3}, v{t0}, v{t2}')
    for i in range(0, 16, 2):
        a(f'v_pk_add_f32 {Pp(X+i)}, {Pp(X+i)}, {Pp(t2)} op_sel_hi:[1,0] neg_lo:[0,1] neg_hi:[0,1]')
    a(f'v_mul_f32 v{t3}, v{t3}, v{t3}')
    a(f'v_pk_mul_f32 {Pp(t0)}, {Pp(X)}, {Pp(X)}'); a(f'v_pk_mul_f32 {Pp(T+4)}, {Pp(X+2)}, {Pp(X+2)}')
    for i in range(4, 16, 4):
        a(f'v_pk_fma_f32 {Pp(t0)}, {Pp(X+i)}, {Pp(X+i)}, {Pp(t0)}'); a(f'v_pk_fma_f32 {Pp(T+4)}, {Pp(X+i+2)}, {Pp(X+i+2)}, {Pp(T+4)}')
    a(f'v_pk_add_f32 {Pp(t0)}, {Pp(t0)}, {Pp(T+4)}')
    a(f'v_add_f32 v{t0}, v{t0}, v{t1}')
    for n in (8, 4, 2, 1):
        a(f'v_cvt_pk_bf16_f32 v{P+2*[8,4,2,1].index(n)}, v{X+4*[8,4,2,1].index(n)}, v{X+4*[8,4,2,1].index(n)+1}')
        a(f'v_cvt_pk_bf16_f32 v{P+2*[8,4,2,1].index(n)+1}, v{X+4*[8,4,2,1].index(n)+2}, v{X+4*[8,4,2,1].index(n)+3}')
        a(f'v_add_f32_dpp v{t0}, v{t0}, v{t0} row_ror:{n} row_mask:0xf bank_mask:0xf')
    a(f'v_lshlrev_b32 v{X}, 16, v{P}')
    a(f'v_mov_b32 v{t1}, v{t0}')
    a(f'v_and_b32 v{X+1}, 0xffff0000, v{P}'); a(f'v_lshlrev_b32 v{X+2}, 16, v{P+1}')
    a(f'v_permlane32_swap_b32 v{t0}, v{t1}')
    a(f'v_and_b32 v{X+3}, 0xffff0000, v{P+1}')
    a(f'v_add_f32 v{t0}, v{t0}, v{t1}')
    a(f'v_fma_f32 v{t0}, v{t0}, v{T+6}, -v{t3}')
    a(f'v_max_f32 v{t0}, 0, v{t0}')
    rbf(a, t0, t0)
    a(f'v_add_f32 v{t0}, 0x3727c5ac, v{t0}')
    rbf(a, t0, t0)
    a(f'v_sqrt_f32 v{t0}, v{t0}')
    a(f'v_lshlrev_b32 v{X+4}, 16, v{P+2}')
    rbf(a, t0, t0)
    a(f'v_rcp_f32 v{t0}, v{t0}')
    a(f'v_and_b32 v{X+5}, 0xffff0000, v{P+2}')
    for q in range(3, 8):
        a(f'v_lshlrev_b32 v{X+2*q}, 16, v{P+q}'); a(f'v_and_b32 v{X+2*q+1}, 0xffff0000, v{P+q}')
    for i in range(0, 16, 2):
        a(f'v_pk_mul_f32 {Pp(X+i)}, {Pp(X+i)}, {Pp(t0)} op_sel_hi:[1,0]')
    for q in range(8):
        a(f'v_cvt_pk_bf16_f32 v{P+q}, v{X+2*q}, v{X+2*q+1}')
    if unpack:
        for q in range(8):
            a(f'v_lshlrev_b32 v{X+2*q}, 16, v{P+q}'); a(f'v_and_b32 v{X+2*q+1}, 0xffff0000, v{P+q}')

def finv_job(a, R):
    skip = a.label('finv')
    a(f's_cmp_lg_u32 s{S.WAVE}, 3'); a(f's_cbranch_scc1 {skip}')
    srd(a, S.D, S.WS, WS_FINV, 512 * 1024)
    L = V.LANE
    for e in range(2):
        t = S.T
        a(f's_mov_b32 s{t}, s2')
        a(f's_mov_b32 s{t+1}, {128*e}')
        a(f's_mov_b32 s{t+2}, 0x36000000')
        a('s_cmp_eq_u32 s2, 0')
        a(f's_cselect_b32 s{t+2}, 0x35800000, s{t+2}')
        if e == 1:
            a(f's_cselect_b32 s{t}, 0x100, s{t}')
            a(f's_cselect_b32 s{t+1}, 0, s{t+1}')
        a(f'v_lshlrev_b32 v{R}, 3, v{L}')
        a(f'v_mul_u32_u24 v{R}, s{t}, v{R}'); a(f'v_add_u32 v{R}, s{t+1}, v{R}')
        for k in range(8):
            r = R + 2 + k
            a(f'v_and_b32 v{r}, 511, v{R}'); a(f'v_cvt_f32_u32 v{r}, v{r}'); a(f'v_mul_f32 v{r}, 0x3b000000, v{r}')
            a(f'v_cos_f32 v{r}, v{r}'); a(f'v_add_u32 v{R}, s{t}, v{R}'); a(f'v_mul_f32 v{r}, s{t+2}, v{r}')
        o = R + 12 + 4*e
        for q in range(4): a(f'v_cvt_pk_bf16_f32 v{o+q}, v{R+2+2*q}, v{R+3+2*q}')
        a(f's_lshl_b32 s{t+3}, s2, 11'); a(f's_add_u32 s{t+3}, s{t+3}, {1024*e}')
        a(f'v_lshlrev_b32 v{R+1}, 4, v{L}')
        a.lines.append(f'buffer_store_dwordx4 v[{o}:{o+3}], v{R+1}, s[{S.D}:{S.D+3}], s{t+3} offen sc1')
    a(f'{skip}:')

def ab_loads(a, R):
    skip = a.label('abl')
    a(f's_cmp_lg_u32 s{S.WAVE}, 2'); a(f's_cbranch_scc1 {skip}')
    L = V.LANE
    a(f's_lshl_b32 s{S.T}, s2, 3')
    a(f'v_and_b32 v{R}, 7, v{L}'); a(f'v_add_u32 v{R}, s{S.T}, v{R}')
    a(f'v_sub_u32 v{R+1}, 0x800, v{R}'); a(f'v_and_b32 v{R+1}, 0x7ff, v{R+1}')
    a(f's_movk_i32 s{S.T}, 514')
    a(f'v_mul_lo_u32 v{R+2}, v{R}, s{S.T}'); a(f'v_mul_lo_u32 v{R+3}, v{R+1}, s{S.T}')
    for n, (v, s, off) in enumerate([(2, S.B, 0), (3, S.B, 0), (2, S.B, 512), (3, S.B, 512), (2, S.C, 0), (3, S.C, 0), (2, S.C, 512), (3, S.C, 512)]):
        a.lines.append(f'buffer_load_ushort v{R+4+n}, v{R+v}, s[{s}:{s+3}], 0 offen offset:{off}')
    a(f'{skip}:')

def ab_finish(a, R):
    with a.atomic(): ab_finish_(a, R)
def ab_finish_(a, R):
    skip = a.label('abf')
    a(f's_cmp_lg_u32 s{S.WAVE}, 2'); a(f's_cbranch_scc1 {skip}')
    for n in range(8): a(f'v_lshlrev_b32 v{R+4+n}, 16, v{R+4+n}')
    a(f'v_add_f32 v{R+2}, v{R+4}, v{R+5}'); a(f'v_add_f32 v{R+3}, v{R+6}, v{R+7}')
    a(f'v_sub_f32 v{R+4}, v{R+8}, v{R+9}'); a(f'v_sub_f32 v{R+5}, v{R+10}, v{R+11}')
    a(f'v_add_f32 v{R+6}, v{R+2}, v{R+3}'); a(f'v_add_f32 v{R+7}, v{R+4}, v{R+5}')
    a(f'v_sub_f32 v{R+8}, v{R+2}, v{R+3}'); a(f'v_sub_f32 v{R+9}, v{R+4}, v{R+5}')
    for n in range(4): a(f'v_mul_f32 v{R+6+n}, 0x3e800000, v{R+6+n}')
    a(f'v_cvt_pk_bf16_f32 v{R+2}, v{R+6}, v{R+7}'); a(f'v_cvt_pk_bf16_f32 v{R+3}, v{R+8}, v{R+9}')
    a(f'v_and_b32 v{R+4}, 1, v{R}'); a(f'v_lshlrev_b32 v{R+4}, 8, v{R+4}')
    a(f'v_lshrrev_b32 v{R+5}, 8, v{R}'); a(f'v_lshl_add_u32 v{R+4}, v{R+5}, 5, v{R+4}')
    a(f'v_bfe_u32 v{R+5}, v{R}, 1, 5'); a(f'v_add_u32 v{R+4}, v{R+4}, v{R+5}')
    a(f'v_bfe_u32 v{R+5}, v{R}, 6, 2'); a(f'v_lshlrev_b32 v{R+5}, 2, v{R+5}'); a(f'v_lshl_add_u32 v{R+4}, v{R+4}, 4, v{R+5}')
    srd(a, S.D, S.WS, WS_AL, 0x4000)
    a('s_mov_b64 exec, 0xff')
    a.lines.append(f'buffer_store_dword v{R+2}, v{R+4}, s[{S.D}:{S.D+3}], 0 offen sc1')
    a(f'v_add_u32 v{R+4}, {WS_BE-WS_AL}, v{R+4}')
    a.lines.append(f'buffer_store_dword v{R+3}, v{R+4}, s[{S.D}:{S.D+3}], 0 offen sc1')
    a('s_mov_b64 exec, -1')
    a(f'{skip}:')

def phase1(a, pre):
    L = V.LANE
    VO, VT, VE = 10, 11, 44
    X, XA = 128, 144
    C32, NS32, TC, TS, A2R, A2I = 152, 160, 168, 176, 184, 188
    D1R, D1I = 192, 208
    BR, BI = 224, 232
    T = 240
    TW = 248
    WQ = 64
    AB = 96
    FI = 108
    t = S.T
    for i in range(16): a(f'v_mov_b32 v{X+i}, 0')
    a(f's_lshl_b32 s{t+8}, s2, 2'); a(f's_add_u32 s{t+8}, s{t+8}, s{S.WAVE}')
    a(f'v_bfe_u32 v{T}, v{L}, 4, 1'); a(f'v_lshlrev_b32 v{T}, 10, v{T}'); a(f'v_add_u32 v{T}, s{t+8}, v{T}')
    a(f'v_lshlrev_b32 v{T}, 10, v{T}'); a(f'v_and_b32 v{T+1}, 15, v{L}'); a(f'v_lshl_add_u32 v{T}, v{T+1}, 1, v{T}')
    a(f'v_lshrrev_b32 v{T+1}, 5, v{L}'); a(f'v_lshl_add_u32 v{VO}, v{T+1}, 7, v{T}')
    srd(a, S.A, S.X, 0, 2048 * 1024)
    for b in range(2):
        for jj in range(8):
            a(f'buffer_load_short_d16_hi v{X+8*b+jj}, v{VO}, s[{S.A}:{S.A+3}], 0 offen offset:{512*b+256*(jj//4)+32*(jj%4)} {CFG["inmod"]}')
    hx = a.mark()
    srd(a, S.B, S.WR, 0, 2048 * 514); srd(a, S.C, S.WI, 0, 2048 * 514)
    a(f's_lshr_b32 s{t}, s{S.WAVE}, 1'); a(f's_lshl_b32 s{t+1}, s2, 1'); a(f's_add_u32 s{t}, s{t}, s{t+1}')
    a(f's_and_b32 s{t+1}, s{t}, 63'); a(f's_lshr_b32 s{t+2}, s{t}, 6')
    a(f's_lshl_b32 s{t+3}, s{t+2}, 8'); a(f's_add_u32 s{t+3}, s{t+3}, s{t+1}'); a(f's_mul_i32 s{t+3}, s{t+3}, 514')
    a(f's_and_b32 s{t+4}, s{S.WAVE}, 1'); a(f's_lshl_b32 s{t+5}, s{t+4}, 8'); a(f's_add_u32 s{t+3}, s{t+3}, s{t+5}')
    a(f'v_lshlrev_b32 v{WQ}, 2, v{L}'); a(f'v_add_u32 v{WQ}, s{t+3}, v{WQ}')
    for j in range(4):
        a(f's_mov_b32 s{t+5}, {j*64*514}')
        a(f'buffer_load_dword v{WQ+2+j}, v{WQ}, s[{S.B}:{S.B+3}], s{t+5} offen {CFG["inmod"]}')
        a(f'buffer_load_dword v{WQ+6+j}, v{WQ}, s[{S.C}:{S.C+3}], s{t+5} offen {CFG["inmod"]}')
    hw = a.mark()
    a(f's_and_b32 s{t+5}, s{t}, 1'); a(f's_lshl_b32 s{t+5}, s{t+5}, 8'); a(f's_lshl_b32 s{t+6}, s{t+2}, 5'); a(f's_add_u32 s{t+5}, s{t+5}, s{t+6}')
    a(f's_lshr_b32 s{t+6}, s{t+1}, 1'); a(f's_add_u32 s{t+5}, s{t+5}, s{t+6}'); a(f's_lshl_b32 s{t+5}, s{t+5}, 7')
    a(f's_lshl_b32 s{t+6}, s{t+4}, 20'); a(f's_add_u32 s{t+5}, s{t+5}, s{t+6}')
    a(f'v_lshrrev_b32 v{WQ+1}, 3, v{L}'); a(f'v_lshlrev_b32 v{WQ+1}, 16, v{WQ+1}'); a(f'v_and_b32 v{WQ}, 7, v{L}')
    a(f'v_lshl_add_u32 v{WQ+1}, v{WQ}, 4, v{WQ+1}'); a(f'v_add_u32 v{WQ+1}, s{t+5}, v{WQ+1}')
    ab_loads(a, AB)
    def pf1():
        a(f's_and_b32 s{t+12}, s{S.J}, 3'); a(f's_lshl_b32 s{t+12}, s{t+12}, 2'); a(f's_add_u32 s{t+12}, s{t+12}, s{S.WAVE}')
        a(f's_lshl_b32 s{t+12}, s{t+12}, 7')
        a(f'v_add_u32 v{T+7}, s{t+12}, v{L}')
        a(f's_lshr_b32 s{t+13}, s{t+14}, 6')
        a(f'v_mul_lo_u32 v{T+7}, v{T+7}, s{t+13}'); a(f'v_add_u32 v{T+7}, s{PF_COL}, v{T+7}')
        a(f'buffer_load_dword v{VT}, v{T+7}, s[{PRE_SRD}:{PRE_SRD+3}], 0 offen {CFG["wmod"]}')
        a(f'buffer_load_dword v{VT}, v{T+7}, s[{PRE_SRD}:{PRE_SRD+3}], s{t+14} offen {CFG["wmod"]}')
    if CFG['pf1'] == 1: pf1()
    if CFG['early']:
        a('s_barrier')
        pre.issue(a, CFG['early'])
    finv_job(a, FI)
    lane_floats(a, D1R, D1R + 1, D1R + 2)
    gen_f32(a, D1R, D1R + 1, C32, None, NS32, D1R + 2)
    gen_twiddle(a, D1R, D1R + 1, TC, TS, [0, 1, 2, 3, 8, 9, 10, 11], 512, D1R + 2)
    gen_a2(a, D1R + 1, A2R, A2I, D1R + 2)
    a(f'v_cvt_f32_u32 v{TW}, s{t+8}'); a(f'v_mul_f32 v{TW}, 0x3a000000, v{TW}')
    a(f'v_sin_f32 v{TW+1}, v{TW}'); a(f'v_cos_f32 v{TW}, v{TW}')
    a(f'v_mov_b32 v{T+6}, 0x3b000000')
    a(f's_lshl_b32 s{t+9}, s{S.WAVE}, 12'); a(f's_add_u32 s{t+9}, s{t+9}, {LDS_EX}')
    a(f'v_lshlrev_b32 v{VE}, 4, v{L}'); a(f'v_add_u32 v{VE}, s{t+9}, v{VE}')
    stamp(a, 1, T)
    a.wait_vm(hx)
    stamp(a, 2, T)
    if CFG['pf1'] == 2: pf1()
    layernorm(a, X, XA, T, True)
    for b in range(2):
        c = '0' if b == 0 else f'v[{D1R}:{D1R+15}]'
        a(f'v_mfma_f32_32x32x16_bf16 v[{D1R}:{D1R+15}], v[{XA+4*b}:{XA+4*b+3}], v[{C32+4*b}:{C32+4*b+3}], {c}')
        c = '0' if b == 0 else f'v[{D1I}:{D1I+15}]'
        a(f'v_mfma_f32_32x32x16_bf16 v[{D1I}:{D1I+15}], v[{XA+4*b}:{XA+4*b+3}], v[{NS32+4*b}:{NS32+4*b+3}], {c}')
    a.wait_vm(hw)
    a(f's_mov_b32 s{t+10}, 0x05040100'); a(f's_mov_b32 s{t+11}, 0x07060302')
    for e in range(2):
        for j in range(4):
            a(f'v_perm_b32 v{WQ+10+4*e+j}, v{WQ+6+j}, v{WQ+2+j}, s{t+10+e}')
    a(f'v_lshlrev_b32 v{VE}, 5, v{L}'); a(f'v_add_u32 v{VE}, s{S.RING}, v{VE}')
    a(f'ds_write_b128 v{VE}, v[{WQ+10}:{WQ+13}] offset:{(NRING-1)*2048}'); a(f'ds_write_b128 v{VE}, v[{WQ+14}:{WQ+17}] offset:{(NRING-1)*2048+16}')
    a(f'v_lshlrev_b32 v{VE}, 4, v{L}'); a(f'v_add_u32 v{VE}, s{S.RING}, v{VE}')
    a(f'ds_read_b128 v[{WQ+20}:{WQ+23}], v{VE} offset:{(NRING-1)*2048}'); a(f'ds_read_b128 v[{WQ+24}:{WQ+27}], v{VE} offset:{(NRING-1)*2048+1024}')
    ab_finish(a, AB)
    srd(a, S.D, S.WS, WS_WP, 32 * 512 * 128)
    a(f's_mov_b32 s{t+5}, {8*65536}')
    a('s_waitcnt lgkmcnt(0)')
    a(f'buffer_store_dwordx4 v[{WQ+20}:{WQ+23}], v{WQ+1}, s[{S.D}:{S.D+3}], 0 offen sc1')
    a(f'buffer_store_dwordx4 v[{WQ+24}:{WQ+27}], v{WQ+1}, s[{S.D}:{S.D+3}], s{t+5} offen sc1')
    a(f'v_lshlrev_b32 v{VE}, 4, v{L}'); a(f'v_add_u32 v{VE}, s{t+9}, v{VE}')
    HP = XA
    layernorm(a, X, HP, T, False)
    a(f'v_bfe_u32 v{T}, v{L}, 4, 1'); a(f'v_mul_u32_u24 v{T}, 1056, v{T}'); a(f'v_and_b32 v{T+1}, 15, v{L}')
    a(f'v_lshl_add_u32 v{T}, v{T+1}, 1, v{T}'); a(f'v_lshrrev_b32 v{T+1}, 5, v{L}'); a(f'v_lshl_add_u32 v{T}, v{T+1}, 7, v{T}')
    a(f'v_add_u32 v{T}, s{t+9}, v{T}')
    for q in range(8):
        b, jq = q // 4, q % 4
        for e in range(2):
            jj = 2 * jq + e
            op = 'ds_write_b16_d16_hi' if e else 'ds_write_b16'
            a(f'{op} v{T}, v{HP+q} offset:{512*b+256*(jj//4)+32*(jj%4)}')
    a(f'ds_read_b128 v[{WQ+20}:{WQ+23}], v{VE}'); a(f'ds_read_b128 v[{WQ+24}:{WQ+27}], v{VE} offset:1056')
    srd(a, S.D, S.WS, WS_H, 2048 * 1024)
    a(f's_lshl_b32 s{t+5}, s{t+8}, 10'); a(f's_add_u32 s{t+6}, s{t+5}, {1024*1024}')
    a(f'v_lshlrev_b32 v{T+1}, 4, v{L}')
    Pp = lambda x: f'v[{x}:{x+1}]'
    for i in range(4):
        for j in range(0, 4, 2):
            r_, i_ = D1R + 4*i + j, D1I + 4*i + j
            tc, ts = TC + 4*(i % 2) + j, TS + 4*(i % 2) + j
            a(f'v_pk_mul_f32 {Pp(X+j)}, {Pp(r_)}, {Pp(tc)}'); a(f'v_pk_mul_f32 {Pp(X+4+j)}, {Pp(i_)}, {Pp(tc)}')
            a(f'v_pk_fma_f32 {Pp(X+j)}, {Pp(i_)}, {Pp(ts)}, {Pp(X+j)}')
            a(f'v_pk_fma_f32 {Pp(X+4+j)}, {Pp(r_)}, {Pp(ts)}, {Pp(X+4+j)} neg_lo:[1,0,0] neg_hi:[1,0,0]')
        a(f'v_cvt_pk_bf16_f32 v{BR+2*i}, v{X}, v{X+1}');   a(f'v_cvt_pk_bf16_f32 v{BR+2*i+1}, v{X+2}, v{X+3}')
        a(f'v_cvt_pk_bf16_f32 v{BI+2*i}, v{X+4}, v{X+5}'); a(f'v_cvt_pk_bf16_f32 v{BI+2*i+1}, v{X+6}, v{X+7}')
        if i == 0:
            a('s_waitcnt lgkmcnt(0)')
            a(f'buffer_store_dwordx4 v[{WQ+20}:{WQ+23}], v{T+1}, s[{S.D}:{S.D+3}], s{t+5} offen sc1')
            a(f'buffer_store_dwordx4 v[{WQ+24}:{WQ+27}], v{T+1}, s[{S.D}:{S.D+3}], s{t+6} offen sc1')
    a('s_nop 1')
    D2 = (D1R, D1I)
    for r in range(2):
        a(f'v_mfma_f32_32x32x16_bf16 v[{D2[r]}:{D2[r]+15}], v[{A2R}:{A2R+3}], v[{BR+4*r}:{BR+4*r+3}], 0')
    for r in range(2):
        a(f'v_mfma_f32_32x32x16_bf16 v[{D2[r]}:{D2[r]+15}], v[{A2I}:{A2I+3}], v[{BI+4*r}:{BI+4*r+3}], v[{D2[r]}:{D2[r]+15}]')
    a(f'v_and_b32 v{T}, 31, v0'); a(f'v_lshrrev_b32 v{T+1}, 5, v0'); a(f'v_lshrrev_b32 v{T+2}, 2, v{T+1}'); a(f'v_lshlrev_b32 v{T+2}, 10, v{T+2}')
    a(f'v_bfe_u32 v{T+3}, v{T+1}, 1, 1'); a(f'v_lshl_add_u32 v{T}, v{T+3}, 5, v{T}'); a(f'v_lshl_add_u32 v{T}, v{T}, 4, v{T+2}')
    a(f'v_and_b32 v{T+1}, 1, v{T+1}'); a(f'v_lshl_add_u32 v{T}, v{T+1}, 3, v{T}'); a(f'v_add_u32 v{T}, {LDS_EX}, v{T}')
    a(f'v_lshrrev_b32 v{T+1}, 3, v0'); a(f'v_lshlrev_b32 v{T+1}, 15, v{T+1}'); a(f'v_and_b32 v{T+2}, 7, v0')
    a(f'v_lshl_add_u32 v{T+1}, v{T+2}, 4, v{T+1}'); a(f's_lshl_b32 s{t+5}, s2, 7'); a(f'v_add_u32 v{T+1}, s{t+5}, v{T+1}')
    a('s_nop 3')
    a('s_mov_b64 exec, 1')
    a(f'v_mov_b32 v{D2[0]+1}, v{D2[0]+8}'); a(f'v_mov_b32 v{D2[1]+1}, v{D2[1]+8}')
    a('s_mov_b64 exec, -1')
    Z0, DF, Z1 = X, X + 8, XA
    for i in range(0, 8, 2):
        a(f'v_pk_add_f32 {Pp(Z0+i)}, {Pp(D2[0]+i)}, {Pp(D2[1]+i)}')
        a(f'v_pk_add_f32 {Pp(DF+i)}, {Pp(D2[0]+i)}, {Pp(D2[1]+i)} neg_lo:[0,1] neg_hi:[0,1]')
    for i in range(0, 8, 2):
        a(f'v_mul_f32 v{Z1+i}, v{DF+i}, v{TW}'); a(f'v_mul_f32 v{Z1+i+1}, v{DF+i+1}, v{TW}')
        a(f'v_fmac_f32 v{Z1+i}, v{DF+i+1}, v{TW+1}'); a(f'v_fma_f32 v{Z1+i+1}, -v{DF+i}, v{TW+1}, v{Z1+i+1}')
    for ip in range(2):
        a(f'ds_write_b128 v{VE}, v[{Z0+4*ip}:{Z0+4*ip+3}] offset:{ip*1024}')
        a(f'ds_write_b128 v{VE}, v[{Z1+4*ip}:{Z1+4*ip+3}] offset:{2048+ip*1024}')
    srd(a, S.D, S.WS, WS_ZB, 2 * 32 * 256 * 128)
    a('s_waitcnt lgkmcnt(0)')
    a('s_barrier')
    G0 = C32
    for par in range(2):
        for w in range(4):
            a(f'ds_read_b64 v[{G0+16*par+2*w}:{G0+16*par+2*w+1}], v{T} offset:{w*4096+par*2048}')
    a(f's_mov_b32 s{t+5}, {32*256*128}')
    for par in range(2):
        g = G0 + 16 * par; o = g + 8
        a(f's_waitcnt lgkmcnt({4*(1-par)})')
        a(f'v_cvt_pk_bf16_f32 v{o}, v{g}, v{g+2}');     a(f'v_cvt_pk_bf16_f32 v{o+1}, v{g+4}, v{g+6}')
        a(f'v_cvt_pk_bf16_f32 v{o+2}, v{g+1}, v{g+3}'); a(f'v_cvt_pk_bf16_f32 v{o+3}, v{g+5}, v{g+7}')
        so = f's{t+5}' if par else '0'
        a(f'buffer_store_dwordx4 v[{o}:{o+3}], v{T+1}, s[{S.D}:{S.D+3}], {so} offen sc1')
    stamp(a, 3, T + 2)
    a(f'v_mov_b32 v{T+2}, 0')
    a(f'global_load_dword v{T+3}, v{T+2}, s[{S.DBG}:{S.DBG+1}] sc1')
    hst = a.mark()
    if CFG['pf1'] == 3: pf1()
    pre.issue(a, CFG['mid'])
    a.wait_vm(hst)
    lp, ok = a.label('nonce'), a.label('nonce_ok')
    a(f's_mov_b32 s{t}, 0')
    a(f'{lp}:')
    a(f'v_readfirstlane_b32 s{S.NONCE}, v{T+3}')
    a('s_nop 3')
    a(f's_cmp_lg_u32 s{S.NONCE}, 0'); a(f's_cbranch_scc1 {ok}')
    a.lines.append(f'global_load_dword v{T+3}, v{T+2}, s[{S.DBG}:{S.DBG+1}] sc1')
    a('s_waitcnt vmcnt(0)')
    a(f's_add_u32 s{t}, s{t}, 1'); a(f's_cmp_lt_u32 s{t}, {CFG["spin"]}'); a(f's_cbranch_scc1 {lp}')
    a(f'{ok}:')
    a('s_barrier')
    publish(a, [f's_lshl_b32 s{t}, s2, 7', f's_add_u32 s{t}, s{t}, {WS_F1}'], t, T)
    stamp(a, 4, T)

def store_tile_rows(a, O, srd_, row0_lines, s_row0, stride_shift):
    L, T, t = V.LANE, V.T, S.T
    a(f's_lshr_b32 s{t}, s{S.WAVE}, 1'); a(f's_lshl_b32 s{t}, s{t}, 5')
    a(f'v_and_b32 v{T}, 31, v{L}'); a(f'v_add_u32 v{T}, s{t}, v{T}'); a(f'v_mul_u32_u24 v{T}, 144, v{T}')
    a(f's_and_b32 s{t}, s{S.WAVE}, 1'); a(f's_lshl_b32 s{t}, s{t}, 6'); a(f's_add_u32 s{t}, s{t}, {LDS_EX}')
    a(f'v_lshrrev_b32 v{T+1}, 5, v{L}'); a(f'v_lshl_add_u32 v{T}, v{T+1}, 4, v{T}'); a(f'v_add_u32 v{T}, s{t}, v{T}')
    a(f'ds_write_b128 v{T}, v[{O}:{O+3}]'); a(f'ds_write_b128 v{T}, v[{O+4}:{O+7}] offset:32')
    a(f'v_lshrrev_b32 v{T+1}, 3, v{L}'); a(f's_lshl_b32 s{t}, s{S.WAVE}, 4'); a(f'v_add_u32 v{T+1}, s{t}, v{T+1}')
    a(f'v_and_b32 v{T+2}, 7, v{L}'); a(f'v_lshlrev_b32 v{T+2}, 4, v{T+2}')
    a(f'v_mul_u32_u24 v{T+3}, 144, v{T+1}'); a(f'v_add_u32 v{T+3}, v{T+3}, v{T+2}'); a(f'v_add_u32 v{T+3}, {LDS_EX}, v{T+3}')
    for l in row0_lines: a(l)
    a(f'v_lshl_add_u32 v{T+1}, v{T+1}, {stride_shift}, v{T+2}'); a(f'v_add_u32 v{T+1}, s{s_row0}, v{T+1}')
    a.nobg('s_waitcnt lgkmcnt(0)')
    a.nobg('s_barrier')
    a(f'ds_read_b128 v[{O}:{O+3}], v{T+3}'); a(f'ds_read_b128 v[{O+4}:{O+7}], v{T+3} offset:{8*144}')
    a(f's_mov_b32 s{t}, {8 << stride_shift}')
    a.nobg('s_waitcnt lgkmcnt(0)')
    a(f'buffer_store_dwordx4 v[{O}:{O+3}], v{T+1}, s[{srd_}:{srd_+3}], 0 offen sc1')
    a(f'buffer_store_dwordx4 v[{O+4}:{O+7}], v{T+1}, s[{srd_}:{srd_+3}], s{t} offen sc1')

def w2_setup(a):
    t = S.T
    srd(a, S.B, S.W2, 0, 1792 * 4096)
    a(f's_lshl_b32 s{t+1}, s{S.ST}, 7')
    dma_offsets(a, V.Q0, V.Q1, 4096, t + 1)
    a(f's_mul_i32 s{S.SOB}, s{S.WAVE}, {16*4096}')
    a(f's_mul_i32 s{t}, s{S.ROT3}, {64*4096}'); a(f's_add_u32 s{S.SOB}, s{S.SOB}, s{t}')

def gemm1(a):
    L, T, t = V.LANE, V.T, S.T
    a('s_waitcnt vmcnt(0)')
    srd(a, S.A, S.WS, WS_H, 2048 * 1024)
    a(f's_lshl_b32 s{t+1}, s{S.DT}, 7')
    dma_offsets(a, V.P0, V.P1, 1024, t + 1)
    a(f's_mul_i32 s{S.SOA}, s{S.WAVE}, {16*1024}')
    a(f's_lshl_b32 s{t}, s{S.ROT1}, 16'); a(f's_add_u32 s{S.SOA}, s{S.SOA}, s{t}')
    V_B1 = 60
    a(f's_lshr_b32 s{t}, s{S.WAVE}, 1'); a(f's_lshl_b32 s{t}, s{t}, 5'); a(f's_lshl_b32 s{t+1}, s{S.FT}, 6'); a(f's_add_u32 s{t}, s{t}, s{t+1}')
    a(f'v_and_b32 v{T}, 31, v{L}'); a(f'v_add_u32 v{T}, s{t}, v{T}'); a(f'v_lshlrev_b32 v{T}, 1, v{T}')
    a(f'global_load_ushort v{V_B1}, v{T}, s[{S.B1}:{S.B1+1}]')
    pf = []
    if CFG.get('pf2', 1):
        srd(a, S.C, S.W2, 0, 1792 * 4096)
        a(f's_lshl_b32 s{t}, s{S.J}, 2'); a(f's_add_u32 s{t}, s{t}, s{S.WAVE}'); a(f's_lshl_b32 s{t}, s{t}, 4')
        a(f'v_lshrrev_b32 v{T}, 3, v{L}'); a(f'v_add_u32 v{T}, s{t}, v{T}'); a(f'v_lshlrev_b32 v{T}, 12, v{T}')
        a(f'v_and_b32 v{T+1}, 7, v{L}'); a(f'v_lshl_add_u32 v{T}, v{T+1}, 7, v{T}')
        a(f's_lshr_b32 s{t}, s{S.XCD}, 1'); a(f's_lshl_b32 s{t}, s{t}, 10'); a(f'v_add_u32 v61, s{t}, v{T}')
        a(f'v_add_u32 v62, {8*4096}, v61')
        pf = [[f'buffer_load_dword v63, v61, s[{S.C}:{S.C+3}], 0 offen {CFG["wmod"]}'],
              [f'buffer_load_dword v63, v62, s[{S.C}:{S.C+3}], 0 offen {CFG["wmod"]}']]
    steps = [dict(items=[(0, V.P0, V.P1, S.A, S.SOA, 1024, CFG['dmod'], (32*65536, 32*65536))], q=u) for u in range(32)]
    w2_setup(a)
    pre2 = Preload(28, S.B, 4096, CFG['wmod2'], [], wrap=(7340032, 7340032))
    def tail(a_, free):
        if pre2.issued >= CFG['tail2']: return None
        ok = [x for x in free if x >= 6]
        if not ok: return None
        free.remove(ok[0])
        return pre2.parts(a, ok[0])
    left = stream_loop(a, steps, CFG.get('depth1', 12), bg_extra=pf, tail=tail, marks={0: 1, 4: 2, 8: 3, 16: 4, 24: 5} if CFG.get('mark') == 1 else None)
    pre2.free = [x for x in left if x >= 6]
    stamp(a, 7, T)
    reduce_partials(a)
    stamp(a, 12, T)
    VD = V.VD
    a(f'v_lshlrev_b32 v{V_B1}, 16, v{V_B1}')
    c0 = -2.0 * 0.7978845608028654 * 1.4426950408889634
    a(f's_mov_b32 s{t+2}, {fb(c0)}'); a(f's_mov_b32 s{t+3}, {fb(c0 * 0.044715)}')
    a(f'v_mov_b32 v61, s{t+2}')
    for q in range(8):
        d0, d1 = VD + 2*q, VD + 2*q + 1
        a(f'v_cvt_pk_bf16_f32 v{T}, v{d0}, v{d1}')
        a(f'v_lshlrev_b32 v{d0}, 16, v{T}'); a(f'v_and_b32 v{d1}, 0xffff0000, v{T}')
        a(f'v_add_f32 v{d0}, v{d0}, v{V_B1}'); a(f'v_add_f32 v{d1}, v{d1}, v{V_B1}')
        a(f'v_cvt_pk_bf16_f32 v{T}, v{d0}, v{d1}')
        a(f'v_lshlrev_b32 v{d0}, 16, v{T}'); a(f'v_and_b32 v{d1}, 0xffff0000, v{T}')
        a(f'v_mul_f32 v{T+1}, v{d0}, v{d0}'); a(f'v_mul_f32 v{T+2}, v{d1}, v{d1}')
        a(f'v_fma_f32 v{T+1}, v{T+1}, s{t+3}, v61'); a(f'v_fma_f32 v{T+2}, v{T+2}, s{t+3}, v61')
        a(f'v_mul_f32 v{T+1}, v{T+1}, v{d0}'); a(f'v_mul_f32 v{T+2}, v{T+2}, v{d1}')
        a(f'v_exp_f32 v{T+1}, v{T+1}'); a(f'v_exp_f32 v{T+2}, v{T+2}')
        a('s_nop 0')
        a(f'v_add_f32 v{T+1}, 1.0, v{T+1}'); a(f'v_add_f32 v{T+2}, 1.0, v{T+2}')
        a(f'v_rcp_f32 v{T+1}, v{T+1}'); a(f'v_rcp_f32 v{T+2}, v{T+2}')
        a('s_nop 0')
        a(f'v_mul_f32 v{d0}, v{d0}, v{T+1}'); a(f'v_mul_f32 v{d1}, v{d1}, v{T+2}')
    a('s_nop 1')
    for p in range(2):
        for j in range(4):
            a(f'v_permlane32_swap_b32 v{VD+8*p+j}, v{VD+8*p+4+j}')
    O = 52
    for p in range(2):
        for jj in range(4):
            a(f'v_cvt_pk_bf16_f32 v{O+4*p+jj}, v{VD+8*p+2*jj}, v{VD+8*p+2*jj+1}')
    a.bg_flush()
    srd(a, S.D, S.WS, WS_GT, 1792 * 1024)
    store_tile_rows(a, O, S.D, [f's_lshl_b32 s{t+4}, s{S.FT}, 16', f's_lshl_b32 s{t+5}, s{S.DT}, 7', f's_add_u32 s{t+4}, s{t+4}, s{t+5}'], t + 4, 10)
    hst = a.mark()
    stamp(a, 13, T)
    pre2.free += list(range(6))
    pre2.issue(a, CFG['mid2'])
    a.wait_vm(hst)
    a('s_barrier')
    publish(a, [f's_lshl_b32 s{t}, s{S.DT}, 5', f's_add_u32 s{t}, s{t}, s{S.FT}', f's_lshl_b32 s{t}, s{t}, 7', f's_add_u32 s{t}, s{t}, {WS_F2}'], t, T)
    stamp(a, 8, T)
    pre2.drain(a)
    stamp(a, 14, T)

class F:
    L = 1; RZ0 = 3; RW = 5; VY = 6; T = 8
    C, S, NS = 24, 32, 40
    TC, TS = 48, 64
    UC, US = 80, 96
    AR = (112, 176); AI = (120, 184); DR = (128, 192); DI = (144, 208); W = (160, 224)
    BE = 240

def stage_mfmas(p, form, conj):
    s_for_re = F.NS if conj else F.S
    s_for_im = F.S if conj else F.NS
    DR, DI, AR, AI = F.DR[p], F.DI[p], F.AR[p], F.AI[p]
    seq = []
    for b in range(2): seq += [(DR, AR + 4*b, F.C + 4*b), (DI, AI + 4*b, F.C + 4*b)]
    for b in range(2): seq += [(DR, AI + 4*b, s_for_re + 4*b), (DI, AR + 4*b, s_for_im + 4*b)]
    seen = set(); out = []
    for (d, x, c) in seq:
        cc = f'v[{d}:{d+15}]' if d in seen else '0'
        seen.add(d)
        if form == 'A': out.append(f'v_mfma_f32_32x32x16_bf16 v[{d}:{d+15}], v[{x}:{x+3}], v[{c}:{c+3}], {cc}')
        else:           out.append(f'v_mfma_f32_32x32x16_bf16 v[{d}:{d+15}], v[{c}:{c+3}], v[{x}:{x+3}], {cc}')
    return out

PP = lambda x: f'v[{x}:{x+1}]'
def pack4(p, i):
    T = F.T
    return [f'v_cvt_pk_bf16_f32 v{F.AR[p]+2*i}, v{T}, v{T+1}', f'v_cvt_pk_bf16_f32 v{F.AR[p]+2*i+1}, v{T+2}, v{T+3}',
            f'v_cvt_pk_bf16_f32 v{F.AI[p]+2*i}, v{T+4}, v{T+5}', f'v_cvt_pk_bf16_f32 v{F.AI[p]+2*i+1}, v{T+6}, v{T+7}']

def twiddle_valu(p, conj):
    T = F.T; out = []
    if not CFG.get('fftpk'):
        for i in range(4):
            for j in range(4):
                n = 4*i + j
                r_, i_, c, s_ = F.DR[p] + n, F.DI[p] + n, F.TC + n, F.TS + n
                out += [f'v_mul_f32 v{T+j}, v{r_}, v{c}', f'v_mul_f32 v{T+4+j}, v{i_}, v{c}']
                if conj: out += [f'v_fma_f32 v{T+j}, -v{i_}, v{s_}, v{T+j}', f'v_fmac_f32 v{T+4+j}, v{r_}, v{s_}']
                else:    out += [f'v_fmac_f32 v{T+j}, v{i_}, v{s_}', f'v_fma_f32 v{T+4+j}, -v{r_}, v{s_}, v{T+4+j}']
            out += pack4(p, i)
        return out
    for i in range(4):
        for j in range(0, 4, 2):
            n = 4*i + j
            r_, i_, c, s_ = F.DR[p] + n, F.DI[p] + n, F.TC + n, F.TS + n
            out += [f'v_pk_mul_f32 {PP(T+j)}, {PP(r_)}, {PP(c)}', f'v_pk_mul_f32 {PP(T+4+j)}, {PP(i_)}, {PP(c)}']
            if conj:
                out += [f'v_pk_fma_f32 {PP(T+j)}, {PP(i_)}, {PP(s_)}, {PP(T+j)} neg_lo:[1,0,0] neg_hi:[1,0,0]',
                        f'v_pk_fma_f32 {PP(T+4+j)}, {PP(r_)}, {PP(s_)}, {PP(T+4+j)}']
            else:
                out += [f'v_pk_fma_f32 {PP(T+j)}, {PP(i_)}, {PP(s_)}, {PP(T+j)}',
                        f'v_pk_fma_f32 {PP(T+4+j)}, {PP(r_)}, {PP(s_)}, {PP(T+4+j)} neg_lo:[1,0,0] neg_hi:[1,0,0]']
        out += pack4(p, i)
    return out

def filter_valu(p):
    T = F.T; out = []
    if not CFG.get('fftpk'):
        for i in range(4):
            for j in range(4):
                n = 4*i + j
                r_, i_, w = F.DR[p] + n, F.DI[p] + n, F.W[p] + n
                t0, t1 = T + 8 + 2*(j % 2), T + 9 + 2*(j % 2)
                out += [f'v_lshlrev_b32 v{t0}, 16, v{w}', f'v_and_b32 v{t1}, 0xffff0000, v{w}',
                        f'v_mul_f32 v{T+j}, v{r_}, v{t0}', f'v_mul_f32 v{T+4+j}, v{i_}, v{t0}',
                        f'v_fma_f32 v{T+j}, -v{i_}, v{t1}, v{T+j}', f'v_fmac_f32 v{T+4+j}, v{r_}, v{t1}']
            out += pack4(p, i)
        return out
    for i in range(4):
        for j in range(0, 4, 2):
            n = 4*i + j
            r_, i_, w = F.DR[p] + n, F.DI[p] + n, F.W[p] + n
            out += [f'v_lshlrev_b32 v{T+8}, 16, v{w}', f'v_lshlrev_b32 v{T+9}, 16, v{w+1}',
                    f'v_and_b32 v{T+10}, 0xffff0000, v{w}', f'v_and_b32 v{T+11}, 0xffff0000, v{w+1}',
                    f'v_pk_mul_f32 {PP(T+j)}, {PP(r_)}, {PP(T+8)}', f'v_pk_mul_f32 {PP(T+4+j)}, {PP(i_)}, {PP(T+8)}',
                    f'v_pk_fma_f32 {PP(T+j)}, {PP(i_)}, {PP(T+10)}, {PP(T+j)} neg_lo:[1,0,0] neg_hi:[1,0,0]',
                    f'v_pk_fma_f32 {PP(T+4+j)}, {PP(r_)}, {PP(T+10)}, {PP(T+4+j)}']
        out += pack4(p, i)
    return out

def merge(a, valu, mfmas):
    n = len(valu)
    span = max(n - 14, 8)
    pos = [2 + (k * (span - 2)) // len(mfmas) for k in range(len(mfmas))]
    k = 0
    for i, v in enumerate(valu):
        while k < len(mfmas) and pos[k] <= i:
            a(mfmas[k]); k += 1
        a(v)
    while k < len(mfmas): a(mfmas[k]); k += 1
    tail = n - pos[-1]
    if tail < 12:
        need = 12 - tail
        while need > 0:
            a(f's_nop {min(need, 8) - 1}'); need -= min(need, 8)

def filter_special(a, p, SAL):
    T = F.T; L = F.L
    DR, DI, W, BE = F.DR[p], F.DI[p], F.W[p], F.BE
    a(f'v_lshlrev_b32 v{T+10}, 4, v{L}'); a(f'v_add_u32 v{T+10}, {p*4096}, v{T+10}')
    for i in range(4):
        a.lines.append(f'global_load_dwordx4 v[{W+4*i}:{W+4*i+3}], v{T+10}, s[{SAL}:{SAL+1}] offset:{i*1024} sc1')
    a(f'v_add_u32 v{T+10}, {WS_BE-WS_AL}, v{T+10}')
    for i in range(4):
        a.lines.append(f'global_load_dwordx4 v[{BE+4*i}:{BE+4*i+3}], v{T+10}, s[{SAL}:{SAL+1}] offset:{i*1024} sc1')
    a(f'v_and_b32 v{T+14}, 31, v{L}'); a(f'v_lshrrev_b32 v{T+15}, 5, v{L}')
    a(f'v_lshl_add_u32 v{T+14}, v{T+15}, 7, v{T+14}')
    a(f'v_lshlrev_b32 v{T+15}, 3, v{T+14}'); a(f'v_add_u32 v{T+15}, {LDS_X}, v{T+15}')
    for i in range(4):
        for j in range(4):
            a(f'ds_write2_b32 v{T+15}, v{DR+4*i+j}, v{DI+4*i+j} offset0:{64*j} offset1:{64*j+1}')
        if i < 3: a(f'v_add_u32 v{T+15}, 2048, v{T+15}')
    top = 1024 if p == 0 else 1023
    if p == 0:
        a('s_mov_b64 exec, 1')
        a(f'v_mov_b32 v{T+15}, {LDS_X + 1024*8}')
        a(f'ds_write2_b32 v{T+15}, v{DR}, v{DI} offset0:0 offset1:1')
        a('s_mov_b64 exec, -1')
    a(f'v_sub_u32 v{T+15}, {top - 96}, v{T+14}')
    a(f'v_lshlrev_b32 v{T+15}, 3, v{T+15}'); a(f'v_add_u32 v{T+15}, {LDS_X}, v{T+15}')
    a('s_waitcnt vmcnt(0) lgkmcnt(0)')
    for i in range(4):
        for jp in range(0, 4, 2):
            for e in range(2):
                a(f'ds_read_b64 v[{T+10+2*e}:{T+11+2*e}], v{T+15} offset:{(3-jp-e)*256}')
            a('s_waitcnt lgkmcnt(0)')
            for e in range(2):
                j = jp + e; n = 4*i + j
                r_, i_, w, be, mr, mi = DR + n, DI + n, W + n, BE + n, T + 10 + 2*e, T + 11 + 2*e
                a(f'v_lshlrev_b32 v{T+8}, 16, v{w}'); a(f'v_and_b32 v{T+9}, 0xffff0000, v{w}')
                a(f'v_mul_f32 v{T+j}, v{r_}, v{T+8}'); a(f'v_mul_f32 v{T+4+j}, v{i_}, v{T+8}')
                a(f'v_fma_f32 v{T+j}, -v{i_}, v{T+9}, v{T+j}'); a(f'v_fmac_f32 v{T+4+j}, v{r_}, v{T+9}')
                a(f'v_lshlrev_b32 v{T+8}, 16, v{be}'); a(f'v_and_b32 v{T+9}, 0xffff0000, v{be}')
                a(f'v_fmac_f32 v{T+j}, v{mr}, v{T+8}'); a(f'v_fmac_f32 v{T+j}, v{mi}, v{T+9}')
                a(f'v_fmac_f32 v{T+4+j}, v{mr}, v{T+9}'); a(f'v_fma_f32 v{T+4+j}, -v{mi}, v{T+8}, v{T+4+j}')
        for l in pack4(p, i): a(l)
        if i < 3: a(f'v_subrev_u32 v{T+15}, 2048, v{T+15}')
    a('s_nop 1')

def fft_consts(a):
    T = F.T
    lane_floats(a, T, T + 1, T + 2)
    gen_f32(a, T, T + 1, F.C, F.S, F.NS, T + 2)
    gen_twiddle(a, T, T + 1, F.TC, F.TS, [8*i + j for i in range(4) for j in range(4)], 1024, T + 2)
    gen_t2048(a, T, T + 1, F.UC, F.US, T + 2)

def fft_role(a):
    L, T, t = F.L, F.T, S.T
    SZ, SW, SY = S.A, S.B, S.C
    KAP, PASS, SAL = t + 8, t + 9, t + 10
    a('s_waitcnt vmcnt(0)')
    srd(a, SZ, S.WS, WS_ZB, 2 * 32 * 256 * 128)
    srd(a, SW, S.WS, WS_WP, 32 * 512 * 128)
    srd(a, SY, S.WS, WS_YT, 512 * 4096)
    a(f'v_lshrrev_b32 v{T}, 3, v{L}'); a(f'v_and_b32 v{T+1}, 7, v{L}')
    a(f'v_xor_b32 v{T+2}, v{T+1}, v{T}')
    a(f'v_lshrrev_b32 v{T+3}, 1, v{T}'); a(f'v_xor_b32 v{T+3}, v{T+1}, v{T+3}')
    a(f'v_lshlrev_b32 v{T}, 7, v{T}')
    a(f's_lshr_b32 s{t}, s{S.WAVE}, 1'); a(f's_lshl_b32 s{t}, s{t}, 5'); a(f's_add_u32 s{t}, s{t}, s{S.GRP}'); a(f's_lshl_b32 s{t}, s{t}, 15')
    a(f's_and_b32 s{t+1}, s{S.WAVE}, 1'); a(f's_lshl_b32 s{t+1}, s{t+1}, 14'); a(f's_add_u32 s{t}, s{t}, s{t+1}')
    a(f's_lshl_b32 s{t+2}, s{S.WAVE}, 14')
    for n in range(16):
        a(f'v_xor_b32 v{T+4}, {n & 7}, v{T+2}'); a(f'v_lshl_add_u32 v{T+4}, v{T+4}, 4, v{T}')
        a(f's_add_u32 m0, s{t+2}, {LDS_Z + n*1024}'); a(f's_add_u32 s{t+3}, s{t}, {n*1024}')
        a(f'buffer_load_dwordx4 v{T+4}, s[{SZ}:{SZ+3}], s{t+3} offen {CFG["dmod"]} lds')
    hz = a.mark()
    a(f's_lshl_b32 s{t}, s{S.GRP}, 16'); a(f's_add_u32 s{t}, s{t}, s{t+2}')
    for n in range(16):
        a(f'v_xor_b32 v{T+4}, {4*(n&1)}, v{T+3}'); a(f'v_lshl_add_u32 v{T+4}, v{T+4}, 4, v{T}')
        a(f's_add_u32 m0, s{t+2}, {LDS_W + n*1024}'); a(f's_add_u32 s{t+3}, s{t}, {n*1024}')
        a(f'buffer_load_dwordx4 v{T+4}, s[{SW}:{SW+3}], s{t+3} offen {CFG["dmod"]} lds')
    a(f'v_lshrrev_b32 v{T}, 5, v{L}'); a(f'v_bfe_u32 v{T+1}, v{L}, 2, 2'); a(f'v_lshl_add_u32 v{T}, v{T}, 2, v{T+1}')
    a(f'v_bfe_u32 v{T+1}, v{L}, 4, 1'); a(f'v_and_b32 v{T+2}, 3, v{L}'); a(f'v_lshl_add_u32 v{T+1}, v{T+1}, 2, v{T+2}')
    a(f'v_xor_b32 v{T+2}, v{T}, v{T+1}'); a(f'v_xor_b32 v{T+2}, s{S.WAVE}, v{T+2}'); a(f'v_lshlrev_b32 v{T+2}, 4, v{T+2}')
    a(f'v_lshl_add_u32 v{T}, v{T}, 3, v{T+1}'); a(f'v_lshl_add_u32 v{F.RZ0}, v{T}, 7, v{T+2}')
    a(f'v_bfe_u32 v{T}, v{L}, 1, 3'); a(f'v_xor_b32 v{T}, s{S.WAVE}, v{T}'); a(f'v_lshlrev_b32 v{T}, 4, v{T}')
    a(f'v_lshl_add_u32 v{F.RW}, v{L}, 7, v{T}'); a(f'v_add_u32 v{F.RW}, {LDS_W}, v{F.RW}')
    a(f's_lshl_b32 s{KAP}, s{S.GRP}, 3'); a(f's_add_u32 s{KAP}, s{KAP}, s{S.WAVE}')
    a(f's_lshl_b32 s{t}, s{KAP}, 13')
    a(f'v_and_b32 v{T}, 15, v{L}'); a(f'v_lshlrev_b32 v{T}, 6, v{T}')
    a(f'v_bfe_u32 v{T+1}, v{L}, 4, 1'); a(f'v_lshl_add_u32 v{T}, v{T+1}, 5, v{T}')
    a(f'v_lshrrev_b32 v{T+1}, 5, v{L}'); a(f'v_lshl_add_u32 v{T}, v{T+1}, 4, v{T}')
    a(f'v_add_u32 v{F.VY}, s{t}, v{T}')
    a(f's_add_u32 s{SAL}, s{S.WS}, {WS_AL}'); a(f's_addc_u32 s{SAL+1}, s{S.WS+1}, 0')
    a(f's_mov_b32 s{PASS}, 0')
    a.wait_vm(hz)
    a('s_barrier')
    stamp(a, 7, T)
    col = a.label('fftcol')
    a(f'{col}:')
    stamp(a, 12, T)
    for p in range(2):
        for c in range(2):
            for b in range(2):
                for q in range(2):
                    r = (F.AI[p] if c else F.AR[p]) + 4*b + 2*q
                    a(f'ds_read_b64_tr_b16 v[{r}:{r+1}], v{F.RZ0} offset:{p*32768 + (16*b+8*q)*8*128 + 8*c}')
        if p == 0: pass
    a('s_waitcnt lgkmcnt(8)')
    for m in stage_mfmas(0, 'A', False): a(m)
    wok = a.label('wok')
    a(f's_cmp_lg_u32 s{PASS}, 0'); a(f's_cbranch_scc1 {wok}')
    a('s_waitcnt vmcnt(0)'); a('s_barrier')
    a(f'{wok}:')
    a('s_waitcnt lgkmcnt(0)')
    for p in range(2):
        for i in range(4):
            a(f'ds_read_b128 v[{F.W[p]+4*i}:{F.W[p]+4*i+3}], v{F.RW} offset:{p*32768 + i*8192}')
    a('s_nop 3')
    merge(a, twiddle_valu(0, False), stage_mfmas(1, 'A', False))
    merge(a, twiddle_valu(1, False), stage_mfmas(0, 'B', False))
    a('s_waitcnt lgkmcnt(0)')
    sp, jn = a.label('spec'), a.label('join')
    a(f's_cmp_eq_u32 s{KAP}, 0'); a(f's_cbranch_scc1 {sp}')
    merge(a, filter_valu(0), stage_mfmas(1, 'B', False))
    merge(a, filter_valu(1), stage_mfmas(0, 'A', True))
    a(f's_branch {jn}')
    a(f'{sp}:')
    for m in stage_mfmas(1, 'B', False): a(m)
    filter_special(a, 0, SAL)
    for m in stage_mfmas(0, 'A', True): a(m)
    filter_special(a, 1, SAL)
    a('s_nop 7'); a('s_nop 3')
    a(f'{jn}:')
    merge(a, twiddle_valu(0, True), stage_mfmas(1, 'A', True))
    merge(a, twiddle_valu(1, True), stage_mfmas(0, 'A', True))
    a('s_nop 1')
    for m in stage_mfmas(1, 'A', True): a(m)
    a('s_nop 7'); a('s_nop 3')
    ER, EI, DR, DI = F.DR[0], F.DI[0], F.DR[1], F.DI[1]
    for n in range(0, 16, 2):
        r_, i_, c, s_ = DR + n, DI + n, F.UC + n, F.US + n
        a(f'v_pk_mul_f32 {PP(T)}, {PP(r_)}, {PP(c)}'); a(f'v_pk_mul_f32 {PP(T+2)}, {PP(i_)}, {PP(c)}')
        a(f'v_pk_fma_f32 {PP(T)}, {PP(i_)}, {PP(s_)}, {PP(T)} neg_lo:[1,0,0] neg_hi:[1,0,0]')
        a(f'v_pk_fma_f32 {PP(T+2)}, {PP(r_)}, {PP(s_)}, {PP(T+2)}')
        a(f'v_pk_add_f32 {PP(r_)}, {PP(ER+n)}, {PP(T)} neg_lo:[0,1] neg_hi:[0,1]')
        a(f'v_pk_add_f32 {PP(i_)}, {PP(EI+n)}, {PP(T+2)} neg_lo:[0,1] neg_hi:[0,1]')
        a(f'v_pk_add_f32 {PP(ER+n)}, {PP(ER+n)}, {PP(T)}'); a(f'v_pk_add_f32 {PP(EI+n)}, {PP(EI+n)}, {PP(T+2)}')
    outs = [(ER, 0, 0), (DR, 0, 2048), (EI, 1, 0), (DI, 1, 2048)]
    a(f's_movk_i32 s{t}, 0x1000')
    for n_, (src, c, hi) in enumerate(outs):
        a('s_nop 1')
        for pp in range(2):
            for j in range(4): a(f'v_permlane32_swap_b32 v{src+8*pp+j}, v{src+8*pp+4+j}')
        o = (F.AR[0], F.AI[0], F.AR[1], F.AI[1])[n_]
        for pp in range(2):
            for jj in range(4): a(f'v_cvt_pk_bf16_f32 v{o+4*pp+jj}, v{src+8*pp+2*jj}, v{src+8*pp+2*jj+1}')
        a('s_nop 1')
        for k in range(4): a(f'v_permlane16_swap_b32 v{o+k}, v{o+4+k}')
        so = f's{t}' if c else '0'
        a.lines.append(f'buffer_store_dwordx4 v[{o}:{o+3}], v{F.VY}, s[{SY}:{SY+3}], {so} offen offset:{hi} sc1')
        a.lines.append(f'buffer_store_dwordx4 v[{o+4}:{o+7}], v{F.VY}, s[{SY}:{SY+3}], {so} offen offset:{hi + 1024} sc1')
    a(f'v_xor_b32 v{F.RZ0}, 64, v{F.RZ0}'); a(f'v_xor_b32 v{F.RW}, 64, v{F.RW}')
    a(f'v_add_u32 v{F.VY}, {4*8192}, v{F.VY}'); a(f's_add_u32 s{KAP}, s{KAP}, 4')
    a(f's_add_u32 s{PASS}, s{PASS}, 1'); a(f's_cmp_lt_u32 s{PASS}, 2'); a(f's_cbranch_scc1 {col}')
    stamp(a, 13, T)
    a('s_waitcnt vmcnt(0)')
    a('s_barrier')
    publish(a, [f's_lshl_b32 s{t}, s{S.GRP}, 7', f's_add_u32 s{t}, s{t}, {WS_F3}'], t, T)
    stamp(a, 8, T)

def gemm2(a):
    L, T, t = V.LANE, V.T, S.T
    a(f'v_and_b32 v{L}, 63, v0')
    read_addresses(a)
    srd(a, S.A, S.WS, WS_GT, 2304 * 1024)
    a(f's_lshl_b32 s{t+1}, s{S.DT}, 7')
    dma_offsets(a, V.P0, V.P1, 1024, t + 1)
    a(f's_mul_i32 s{S.SOA}, s{S.WAVE}, {16*1024}')
    a(f's_lshl_b32 s{t}, s{S.ROT4}, 16'); a(f's_add_u32 s{S.SOA2}, s{S.SOA}, s{t}'); a(f's_add_u32 s{S.SOA2}, s{S.SOA2}, {28*65536}')
    a(f's_lshl_b32 s{t}, s{S.ROT3}, 16'); a(f's_add_u32 s{S.SOA}, s{S.SOA}, s{t}')
    srd(a, S.C, S.WS, WS_YT, 512 * 4096)
    a(f's_lshl_b32 s{t+1}, s{S.ST}, 7')
    dma_offsets(a, V.Q0, V.Q1, 4096, t + 1)
    a(f's_mul_i32 s{S.SOB}, s{S.WAVE}, {16*4096}')
    a(f's_lshl_b32 s{t}, s{S.ROT4}, 18'); a(f's_add_u32 s{S.SOB}, s{S.SOB}, s{t}')
    V_XO, V_X, V_B2 = 50, 52, 60
    a(f's_lshr_b32 s{t}, s{S.WAVE}, 1'); a(f's_lshl_b32 s{t}, s{t}, 5'); a(f's_lshl_b32 s{t+1}, s{S.ST}, 6'); a(f's_add_u32 s{t}, s{t}, s{t+1}')
    a(f'v_and_b32 v{T}, 31, v{L}'); a(f'v_add_u32 v{T}, s{t}, v{T}'); a(f'v_lshlrev_b32 v{T+1}, 1, v{T}')
    a('s_waitcnt vmcnt(0)')
    a(f'global_load_ushort v{V_B2}, v{T+1}, s[{S.B2}:{S.B2+1}]')
    a(f's_and_b32 s{t}, s{S.WAVE}, 1'); a(f's_lshl_b32 s{t}, s{t}, 6'); a(f's_lshl_b32 s{t+1}, s{S.DT}, 7'); a(f's_add_u32 s{t}, s{t}, s{t+1}')
    a(f'v_lshrrev_b32 v{T+1}, 5, v{L}'); a(f'v_lshlrev_b32 v{T+1}, 4, v{T+1}')
    a(f'v_lshl_add_u32 v{V_XO}, v{T}, 10, v{T+1}'); a(f'v_add_u32 v{V_XO}, s{t}, v{V_XO}')
    a(f'global_load_dwordx4 v[{V_X}:{V_X+3}], v{V_XO}, s[{S.X}:{S.X+1}]')
    a(f'global_load_dwordx4 v[{V_X+4}:{V_X+7}], v{V_XO}, s[{S.X}:{S.X+1}] offset:32')
    VF, VFA = 62, 63
    a(f'v_min_u32 v{VFA}, 31, v{L}'); a(f'v_lshlrev_b32 v{VFA}, 7, v{VFA}'); a(f'v_add_u32 v{VFA}, {WS_F3}, v{VFA}')
    groups = [([f's_lshl_b32 s{t}, s{S.DT}, 12', f's_add_u32 s{t}, s{t}, {WS_F2}'], 28)]
    if not CFG['split3']: groups.append(([f's_mov_b32 s{t}, {WS_F3}'], 32))
    poll(a, groups, 128)
    stamp(a, 9, T)
    hf = {}
    def sample(a):
        a(f'global_load_dword v{VF}, v{VFA}, s[{S.WS}:{S.WS+1}] sc1'); hf['h'] = a.mark()
    def check(a):
        ok, lp = a.label('y_ok'), a.label('y_poll')
        a.wait_vm(hf['h'])
        a(f's_mov_b32 s{t+1}, 0')
        a(f'{lp}:')
        a(f'v_cmp_eq_u32 vcc, s{S.NONCE}, v{VF}')
        a('s_nop 4')
        a('s_cmp_eq_u64 vcc, -1'); a(f's_cbranch_scc1 {ok}')
        a.lines.append(f'global_load_dword v{VF}, v{VFA}, s[{S.WS}:{S.WS+1}] sc1')
        a('s_waitcnt vmcnt(0)')
        a(f's_add_u32 s{t+1}, s{t+1}, 1'); a(f's_cmp_lt_u32 s{t+1}, {CFG["spin"]}'); a(f's_cbranch_scc1 {lp}')
        a(f'{ok}:')
    steps = []
    for u in range(36):
        if u < 28: it = [(0, V.P0, V.P1, S.A, S.SOA, 1024, CFG['dmod'], (28*65536, 28*65536))]
        else: it = [(0, V.P0, V.P1, S.A, S.SOA2, 1024, CFG['dmod'], (36*65536, 8*65536)), (1, V.Q0, V.Q1, S.C, S.SOB, 4096, CFG['dmod'], (8*262144, 8*262144))]
        steps.append(dict(items=it, q=u if u < 28 else None))
    if CFG['split3']:
        steps[CFG['samp3']]['before_issue'] = sample
        steps[28]['before_issue'] = check
    stream_loop(a, steps, CFG.get('depth3', 12), marks={0: 1, 4: 2, 8: 3, 16: 4, 28: 5} if CFG.get('mark') == 3 else None)
    stamp(a, 10, T)
    reduce_partials(a)
    VD = V.VD
    a(f'v_lshlrev_b32 v{V_B2}, 16, v{V_B2}')
    for i in range(16): a(f'v_add_f32 v{VD+i}, v{VD+i}, v{V_B2}')
    a('s_nop 1')
    for p in range(2):
        for j in range(4): a(f'v_permlane32_swap_b32 v{VD+8*p+j}, v{VD+8*p+4+j}')
    for p in range(2):
        for jj in range(4):
            xr = V_X + 4*p + jj
            d0 = VD + 8*p + 2*jj; d1 = d0 + 1
            a(f'v_lshlrev_b32 v{T}, 16, v{xr}'); a(f'v_and_b32 v{T+1}, 0xffff0000, v{xr}')
            a(f'v_add_f32 v{d0}, v{d0}, v{T}'); a(f'v_add_f32 v{d1}, v{d1}, v{T+1}')
            a(f'v_cvt_pk_bf16_f32 v{xr}, v{d0}, v{d1}')
    a(f'global_store_dwordx4 v{V_XO}, v[{V_X}:{V_X+3}], s[{S.OUT}:{S.OUT+1}]')
    a(f'global_store_dwordx4 v{V_XO}, v[{V_X+4}:{V_X+7}], s[{S.OUT}:{S.OUT+1}] offset:32')
    if CFG['stamps']:
        a('s_waitcnt vmcnt(0)')
        stamp(a, 11, T)

def mega(a, name):
    kernel_begin(a, name)
    end, fft, p3 = a.label('end'), a.label('fft'), a.label('p3')
    L, T, t = V.LANE, V.T, S.T
    a('s_cmp_ge_u32 s2, 256'); a(f's_cbranch_scc1 {end}')
    a('s_load_dwordx16 s[4:19], s[0:1], 0')
    a('s_load_dwordx4 s[20:23], s[0:1], 64')
    a('s_load_dwordx2 s[24:25], s[0:1], 80')
    a('v_lshrrev_b32 v1, 6, v0')
    a(f's_and_b32 s{S.XCD}, s2, 7'); a(f's_lshr_b32 s{S.J}, s2, 3')
    a(f'v_readfirstlane_b32 s{S.WAVE}, v1')
    a(f'v_and_b32 v{L}, 63, v0')
    a(f's_and_b32 s{t}, s{S.XCD}, 1'); a(f's_lshl_b32 s{t}, s{t}, 2'); a(f's_and_b32 s{t+1}, s{S.J}, 3'); a(f's_add_u32 s{S.DT}, s{t}, s{t+1}')
    a(f's_lshr_b32 s{t}, s{S.XCD}, 1'); a(f's_lshr_b32 s{t+2}, s{S.J}, 2')
    a(f's_lshl_b32 s{t+3}, s{t}, 3'); a(f's_add_u32 s{S.ST}, s{t+3}, s{t+2}')
    a(f's_mul_i32 s{t+3}, s{t}, 7'); a(f's_add_u32 s{S.FT}, s{t+3}, s{t+2}')
    a(f's_lshl_b32 s{t+3}, s{S.XCD}, 2'); a(f's_add_u32 s{S.GRP}, s{t+3}, s{t+1}')
    a(f's_mul_i32 s{S.RING}, s{S.WAVE}, {RINGB}')
    if CFG['rot']:
        a(f's_lshl_b32 s{t+4}, s{t+1}, 3'); a(f's_mul_i32 s{t+5}, s{t+2}, 5'); a(f's_add_u32 s{t+4}, s{t+4}, s{t+5}'); a(f's_and_b32 s{S.ROT1}, s{t+4}, 31')
        a(f's_mul_i32 s{t+4}, s{t+1}, 7'); a(f's_mul_i32 s{t+5}, s{t+2}, 7'); a(f's_lshr_b32 s{t+5}, s{t+5}, 1'); a(f's_add_u32 s{t+4}, s{t+4}, s{t+5}')
        a(f's_cmp_ge_u32 s{t+4}, 28'); a(f's_cselect_b32 s{t+5}, 28, 0'); a(f's_sub_u32 s{S.ROT3}, s{t+4}, s{t+5}')
        a(f's_lshl_b32 s{t+4}, s{t+1}, 1'); a(f's_add_u32 s{t+4}, s{t+4}, s{t+2}'); a(f's_and_b32 s{S.ROT4}, s{t+4}, 7')
    else:
        for r in (S.ROT1, S.ROT3, S.ROT4): a(f's_mov_b32 s{r}, 0')
    a('s_waitcnt lgkmcnt(0)')
    stamp(a, 0, T)
    if CFG.get('clk'):
        a('s_memtime s[80:81]'); a('s_memrealtime s[82:83]'); a('s_waitcnt lgkmcnt(0)')
    if CFG.get('echo'):
        a('s_memrealtime s[82:83]'); a('s_waitcnt lgkmcnt(0)')
    nn = a.label('nn')
    a(f's_or_b32 s{t}, s2, s{S.WAVE}'); a(f's_cmp_lg_u32 s{t}, 0'); a(f's_cbranch_scc1 {nn}')
    a(f's_memrealtime s[{t}:{t+1}]'); a('s_waitcnt lgkmcnt(0)'); a(f's_or_b32 s{t}, s{t}, 1')
    a(f'v_mov_b32 v{T}, s{t}'); a(f'v_mov_b32 v{T+1}, 0')
    a('s_mov_b64 exec, 1')
    a.lines.append(f'global_store_dword v{T+1}, v{T}, s[{S.DBG}:{S.DBG+1}] sc1')
    a('s_mov_b64 exec, -1')
    a(f'{nn}:')
    STR64 = t + 14
    read_addresses(a)
    a(f's_cmp_ge_u32 s{S.J}, 28')
    a(f's_cselect_b32 s{S.B}, s{S.W2}, s{S.W1}'); a(f's_cselect_b32 s{S.B+1}, s{S.W2+1}, s{S.W1+1}')
    a(f's_mov_b32 s{S.B+2}, {2048*3584}'); a(f's_mov_b32 s{S.B+3}, 0x20000')
    a(f's_cselect_b32 s{t+1}, s{S.ST}, s{S.FT}'); a(f's_movk_i32 s{t+2}, 3584'); a(f's_cselect_b32 s{t+2}, 4096, s{t+2}')
    a(f's_lshl_b32 s{t+1}, s{t+1}, 7'); a(f's_mov_b32 s{PF_COL}, s{t+1}')
    a(f's_lshl_b32 s{STR64}, s{t+2}, 6')
    a(f'v_lshrrev_b32 v{T}, 3, v{L}'); a(f'v_and_b32 v{T+1}, 7, v{L}'); a(f'v_lshlrev_b32 v{T+2}, 1, v{T}'); a(f'v_and_b32 v{T+2}, 4, v{T+2}')
    a(f'v_xor_b32 v{T+1}, v{T+1}, v{T+2}'); a(f'v_lshlrev_b32 v{T+1}, 4, v{T+1}')
    a(f'v_mad_u32_u24 v{V.Q0}, v{T}, s{t+2}, v{T+1}'); a(f'v_add_u32 v{V.Q0}, s{t+1}, v{V.Q0}')
    a(f's_lshl_b32 s{t+3}, s{t+2}, 3'); a(f's_sub_u32 s{t+3}, s{t+3}, 1024'); a(f'v_add_u32 v{V.Q1}, s{t+3}, v{V.Q0}')
    a(f's_mul_i32 s{S.SOB}, s{S.WAVE}, s{t+2}'); a(f's_lshl_b32 s{S.SOB}, s{S.SOB}, 4')
    a(f's_cmp_ge_u32 s{S.J}, 28'); a(f's_cselect_b32 s{t+4}, s{S.ROT3}, s{S.ROT1}')
    a(f's_mul_i32 s{t+4}, s{t+4}, s{STR64}'); a(f's_add_u32 s{S.SOB}, s{S.SOB}, s{t+4}')
    pre = Preload(32, PRE_SRD, f's{STR64}', CFG['wmod'], range(NRING), wrap=(7340032, 7340032))
    for j in range(4): a(f's_mov_b32 s{PRE_SRD+j}, s{S.B+j}')
    phase1(a, pre)
    pre.drain(a)
    nc = a.label('noc')
    a(f's_cmp_lt_u32 s{S.J}, 28'); a(f's_cbranch_scc1 {nc}')
    fft_consts(a)
    a(f'{nc}:')
    stamp(a, 5, 244)
    poll(a, [([f's_mov_b32 s{t}, {WS_F1}'], 256)], 128)
    stamp(a, 6, 244)
    a(f's_cmp_ge_u32 s{S.J}, 28'); a(f's_cbranch_scc1 {fft}')
    gemm1(a)
    a(f's_branch {p3}')
    a(f'{fft}:')
    fft_role(a)
    a(f'{p3}:')
    gemm2(a)
    if CFG.get('echo'):
        lp = a.label('echo')
        if CFG['echo'] == 11:
            a('s_waitcnt vmcnt(0)'); a('s_memrealtime s[84:85]'); a('s_waitcnt lgkmcnt(0)'); a('s_sub_u32 s84, s84, s82')
        a('s_lshl_b32 s84, s84, 2')
        a('s_memrealtime s[88:89]'); a('s_waitcnt lgkmcnt(0)')
        a(f'{lp}:')
        a('s_memrealtime s[90:91]'); a('s_waitcnt lgkmcnt(0)'); a('s_sub_u32 s90, s90, s88')
        a('s_cmp_lt_u32 s90, s84'); a(f's_cbranch_scc1 {lp}')
    if CFG.get('delay'):
        lp = a.label('dly')
        a('s_memtime s[88:89]'); a('s_waitcnt lgkmcnt(0)')
        a(f'{lp}:')
        a('s_memtime s[90:91]'); a('s_waitcnt lgkmcnt(0)'); a('s_sub_u32 s90, s90, s88')
        a(f's_cmp_lt_u32 s90, {CFG["delay"]}'); a(f's_cbranch_scc1 {lp}')
    if CFG.get('clk'):
        sk = a.label('clk')
        a('s_waitcnt vmcnt(0)')
        a('s_memtime s[84:85]'); a('s_memrealtime s[86:87]'); a('s_waitcnt lgkmcnt(0)')
        a('s_sub_u32 s84, s84, s80'); a('s_sub_u32 s86, s86, s82')
        a(f's_and_b32 s{t}, s2, 63'); a(f's_or_b32 s{t}, s{t}, s{S.WAVE}'); a(f's_cmp_lg_u32 s{t}, 0'); a(f's_cbranch_scc1 {sk}')
        a('s_mov_b64 exec, 1')
        a('v_mov_b32 v2, s84'); a('v_mov_b32 v3, s86'); a('s_lshr_b32 s84, s2, 6'); a('s_lshl_b32 s84, s84, 3'); a('s_add_u32 s84, s84, 8'); a('v_mov_b32 v4, s84')
        a(f'global_store_dwordx2 v4, v[2:3], s[{S.DBG}:{S.DBG+1}]')
        a(f'{sk}:')
    a(f'{end}:')
    a('s_endpgm')

PRE_SRD = 76
PF_COL = 92

def tables(a):
    tb.emit(a, 'tab_k1', tb.f32mat('c') + tb.f32mat('ns') + tb.t512() + tb.a2())
    tb.emit(a, 'tab_fft', tb.f32mat('c') + tb.f32mat('s') + tb.f32mat('ns') + tb.t1024() + tb.t2048())

KNAME = 'parallel_sum__spectral_gfnet__mixer_token_mlp__prompt_kernel'
def make(path, **cfg):
    CFG.update(dict(tail2=7, mid2=6, split3=1, samp3=18, rot=1, dmod='', mid=8, pf1=1, stamps=0, early=0, inmod='nt', wmod='nt', wmod2='', spin=1 << 18, pf2=1, depth1=12, depth3=12))
    CFG.update(cfg)
    a = Em()
    lst = CFG.get('aslist', 0)
    if lst:
        launches = [('empty_kernel', (256, 1, 1), (64, 1, 1), 0)] * (lst - 1) + [('mega_kernel', (256, 1, 1), (256, 1, 1), LDS_TOTAL)]
        a(HEADER + launch_lines(launches) + '.amdgcn_target "amdgcn-amd-amdhsa--gfx950"\n.text')
        mega(a, 'mega_kernel')
        if lst > 1:
            kernel_begin(a, 'empty_kernel'); a('s_endpgm')
        a('.section .rodata,"a"\n.p2align 6')
        a(descriptor('mega_kernel', 256, 256))
        if lst > 1: a(descriptor('empty_kernel', 8))
        open(path, 'w').write(a.text())
        build(path, launches)
        return
    a(HEADER + f'; @launch grid=(256,1,1) block=(256,1,1) lds={LDS_TOTAL}\n' + '.amdgcn_target "amdgcn-amd-amdhsa--gfx950"\n.text')
    mega(a, KNAME)
    a('.section .rodata,"a"\n.p2align 6')
    a(descriptor(KNAME, 256, 256))
    open(path, 'w').write(a.text())
    build(path, [(KNAME, (256, 1, 1), (256, 1, 1), LDS_TOTAL)])

if __name__ == '__main__':
    o = dict(x.split('=') for x in sys.argv[2:])
    cfg = {k: (int(v) if v.lstrip('-').isdigit() else v.replace('_', ' ')) for k, v in o.items()}
    make(sys.argv[1], **cfg)
```

```python
import sys, struct
from asm2 import *
import tables as tb

WS_BASE = 0
WS_H    = WS_BASE + 0x000000
WS_GT   = WS_BASE + 0x200000
WS_FINV = WS_GT + 1792 * 1024
WS_ZB   = WS_BASE + 0x480000
WS_WP   = WS_BASE + 0x680000
WS_AL   = WS_BASE + 0x880000
WS_BE   = WS_BASE + 0x882000
WS_F1   = WS_BASE + 0x890000
WS_F2   = WS_BASE + 0x898000
WS_F3   = WS_BASE + 0x8A0000
WS_YT   = WS_BASE + 0x900000
WS_STAMP = 0x10000000 - (16 << 20)
NSLOT = 16

NRING = 18
RINGB = NRING * 2048
LDS_EX = 4 * RINGB
LDS_TOTAL = LDS_EX + 16384
LDS_Z, LDS_W, LDS_X = 0, 65536, 131072

class S:
    WAVE = 3
    X, WR, WI, BX, W1, B1, W2, B2, OUT, DBG, WS = 4, 6, 8, 10, 12, 14, 16, 18, 20, 22, 24
    NONCE, XCD, J, RING = 26, 27, 28, 29
    DT, FT, ST, GRP = 30, 31, 32, 33
    ROT1, ROT3, ROT4, SOA2 = 94, 95, 96, 97
    A, B, C, D = 36, 40, 44, 48
    SOA, SOB = 52, 53
    TAB = 54
    T = 56
    STMP = 72

CFG = dict(stamps=0, early=12, inmod='nt', wmod='nt', spin=1 << 18)

def fb(x): return '0x%08x' % struct.unpack('<I', struct.pack('<f', x))[0]

def srd(a, s, base, off, size):
    with a.atomic():
        if off:
            a(f's_add_u32 s{s}, s{base}, {off}'); a(f's_addc_u32 s{s+1}, s{base+1}, 0')
        else:
            a(f's_mov_b32 s{s}, s{base}'); a(f's_mov_b32 s{s+1}, s{base+1}')
        a(f's_mov_b32 s{s+2}, {size}'); a(f's_mov_b32 s{s+3}, 0x20000')

def stamp(a, slot, vt):
    if CFG.get('echo') == slot:
        with a.atomic():
            a('s_memrealtime s[84:85]'); a('s_waitcnt lgkmcnt(0)'); a('s_sub_u32 s84, s84, s82')
    if not CFG['stamps']: return
    st = S.STMP
    skip = a.label('stamp')
    old = a.in_bg; a.in_bg = True
    a(f's_memrealtime s[{st}:{st+1}]')
    a(f'v_cmp_eq_u32 vcc, 0, v0')
    a(f's_and_saveexec_b64 s[{st+2}:{st+3}], vcc')
    a(f's_waitcnt lgkmcnt(0)')
    a(f's_cbranch_execz {skip}')
    a(f'v_mov_b32 v{vt}, s{st}'); a(f'v_mov_b32 v{vt+1}, s{st+1}')
    a(f's_mul_i32 s{st}, s2, {NSLOT*8}'); a(f's_add_u32 s{st}, s{st}, {WS_STAMP + slot*8}')
    a(f'v_mov_b32 v{vt+2}, s{st}')
    a.lines.append(f'global_store_dwordx2 v{vt+2}, v[{vt}:{vt+1}], s[{S.WS}:{S.WS+1}]')
    a(f'{skip}:')
    a(f's_mov_b64 exec, s[{st+2}:{st+3}]')
    a.in_bg = old
    a.nobg('s_waitcnt vmcnt(0)') if CFG['stamps'] == 2 else None

def table_base(a, s, label):
    l = a.label('pc')
    a(f's_getpc_b64 s[{s}:{s+1}]'); a(f'{l}:')
    a(f's_add_u32 s{s}, s{s}, {label}-{l}'); a(f's_addc_u32 s{s+1}, s{s+1}, 0')

def table_load(a, s, voff, dsts, g0=0):
    cur = 0
    for n, dst in enumerate(dsts):
        g = g0 + n
        while g * 1024 - cur >= 4096:
            a(f'v_add_u32 v{voff}, 4096, v{voff}'); cur += 4096
        a(f'global_load_dwordx4 {dst}, v{voff}, s[{s}:{s+1}] offset:{g*1024-cur}')

def publish(a, off_expr_lines, s_off, vt):
    skip = a.label('pub')
    a(f's_cmp_lg_u32 s{S.WAVE}, 0'); a(f's_cbranch_scc1 {skip}')
    for l in off_expr_lines: a(l)
    a('s_mov_b64 exec, 1')
    a(f'v_mov_b32 v{vt}, s{S.NONCE}'); a(f'v_mov_b32 v{vt+1}, s{s_off}')
    a.lines.append(f'global_store_dword v{vt+1}, v{vt}, s[{S.WS}:{S.WS+1}] sc1')
    a('s_mov_b64 exec, -1')
    a(f'{skip}:')

def poll(a, groups, vt):
    skip, loop, ok = a.label('poll_skip'), a.label('poll'), a.label('poll_ok')
    T = S.T
    a(f's_cmp_lg_u32 s{S.WAVE}, 0'); a(f's_cbranch_scc1 {skip}')
    loads = []
    nv = 0
    for (lines, count) in groups:
        for l in lines: a(l)
        for c0 in range(0, count, 64):
            n = min(64, count - c0)
            va = vt + 2 * nv
            a(f'v_and_b32 v{va}, 63, v0')
            if n < 64: a(f'v_min_u32 v{va}, {n-1}, v{va}')
            a(f'v_lshlrev_b32 v{va}, 7, v{va}')
            a(f'v_add_u32 v{va}, s{T}, v{va}')
            if c0: a(f'v_add_u32 v{va}, {c0*128}, v{va}')
            loads.append(va); nv += 1
    a(f's_mov_b32 s{T+1}, 0')
    a(f'{loop}:')
    for va in loads:
        a.lines.append(f'global_load_dword v{va+1}, v{va}, s[{S.WS}:{S.WS+1}] sc1')
    a('s_waitcnt vmcnt(0)')
    first = True
    for va in loads:
        a(f'v_xor_b32 v{va+1}, s{S.NONCE}, v{va+1}')
        if not first: a(f'v_or_b32 v{loads[0]+1}, v{loads[0]+1}, v{va+1}')
        first = False
    a(f'v_cmp_eq_u32 vcc, 0, v{loads[0]+1}')
    a('s_nop 4')
    a('s_cmp_eq_u64 vcc, -1'); a(f's_cbranch_scc1 {ok}')
    a(f's_add_u32 s{T+1}, s{T+1}, 1'); a(f's_cmp_lt_u32 s{T+1}, {CFG["spin"]}'); a(f's_cbranch_scc1 {loop}')
    a(f'{ok}:')
    a(f'{skip}:')
    a('s_barrier')

class V:
    LANE = 1
    P0, P1, Q0, Q1 = 2, 3, 4, 5
    RA0, RA1, RB0, RB1 = 6, 7, 8, 9
    FR = 12
    FQ = 144
    T = 44
    ACC = 64
    VD = 128

def dma_offsets(a, dst0, dst1, stride, s_col):
    L, T = V.LANE, V.T
    a(f'v_lshrrev_b32 v{T}, 3, v{L}'); a(f'v_and_b32 v{T+1}, 7, v{L}')
    a(f'v_lshlrev_b32 v{T+2}, 1, v{T}'); a(f'v_and_b32 v{T+2}, 4, v{T+2}')
    a(f'v_xor_b32 v{T+1}, v{T+1}, v{T+2}'); a(f'v_lshlrev_b32 v{T+1}, 4, v{T+1}')
    a(f's_mov_b32 s{S.T}, {stride}')
    a(f'v_mad_u32_u24 v{dst0}, v{T}, s{S.T}, v{T+1}')
    a(f'v_add_u32 v{dst0}, s{s_col}, v{dst0}')
    a(f'v_add_u32 v{dst1}, {8*stride-1024}, v{dst0}')

def read_addresses(a):
    L, T = V.LANE, V.T
    a(f'v_lshrrev_b32 v{T}, 5, v{L}'); a(f'v_lshlrev_b32 v{T}, 3, v{T}')
    a(f'v_bfe_u32 v{T+1}, v{L}, 2, 2'); a(f'v_add_u32 v{T}, v{T}, v{T+1}'); a(f'v_lshlrev_b32 v{T}, 7, v{T}')
    a(f'v_bfe_u32 v{T+2}, v{L}, 4, 1'); a(f'v_lshlrev_b32 v{T+2}, 5, v{T+2}')
    a(f'v_and_b32 v{T+3}, 3, v{L}'); a(f'v_lshl_add_u32 v{T+2}, v{T+3}, 3, v{T+2}')
    a(f'v_lshlrev_b32 v{T+1}, 5, v{T+1}'); a(f'v_and_b32 v{T+1}, 64, v{T+1}'); a(f'v_or_b32 v{T+2}, v{T+2}, v{T+1}')
    a(f'v_add3_u32 v{T}, v{T}, v{T+2}, s{S.RING}')
    a(f's_lshl_b32 s{S.T}, s{S.WAVE}, 6'); a(f's_and_b32 s{S.T}, s{S.T}, 64')
    a(f'v_xor_b32 v{V.RA0}, s{S.T}, v{T}'); a(f'v_xor_b32 v{V.RA1}, 64, v{V.RA0}')
    a(f's_lshl_b32 s{S.T}, s{S.WAVE}, 5'); a(f's_and_b32 s{S.T}, s{S.T}, 64')
    a(f'v_xor_b32 v{V.RB0}, s{S.T}, v{T}'); a(f'v_xor_b32 v{V.RB1}, 64, v{V.RB0}')

S_WRAP = 93
def dma_groups(slot, v0, v1, srd_, so, stride, mods, wrap=None):
    g0 = [f's_add_u32 m0, s{S.RING}, {slot*2048}', 's_nop 0',
          f'buffer_load_dwordx4 v{v0}, s[{srd_}:{srd_+3}], s{so} offen {mods} lds']
    g1 = [f'buffer_load_dwordx4 v{v1}, s[{srd_}:{srd_+3}], s{so} offen offset:1024 {mods} lds',
          f's_add_u32 s{so}, s{so}, {stride if isinstance(stride, str) else 64*stride}']
    if wrap:
        g1 += [f's_cmp_ge_u32 s{so}, {wrap[0]}', f's_cselect_b32 s{S_WRAP}, {wrap[1]}, 0', f's_sub_u32 s{so}, s{so}, s{S_WRAP}']
    return g0, g1

def tile_reads(a, slot, side, dst):
    if CFG.get('x_nods') and side == 0: return
    for t in range(2):
        ra = (V.RA0, V.RA1, V.RB0, V.RB1)[side * 2 + t]
        for q in range(2):
            a(f'ds_read_b64_tr_b16 {dst(t, q)}, v{ra} offset:{slot*2048 + q*512}')

def vpair(base): return lambda t, q: f'v[{base+4*t+2*q}:{base+4*t+2*q+1}]'
def apair(base): return lambda t, q: f'a[{base+4*t+2*q}:{base+4*t+2*q+1}]'

class Preload:
    def __init__(self, nsteps, srd_, stride, mods, slots, wrap=None):
        self.wrap = wrap
        self.n, self.srd, self.stride, self.mods, self.slots = nsteps, srd_, stride, mods, list(slots)
        self.issued = 0; self.done = 0; self.h = {}; self.slot = {}; self.free = list(slots)
    def issue_groups(self, k):
        out = []
        for _ in range(k):
            if self.issued >= self.n or not self.free: break
            u = self.issued; self.issued += 1
            sl = self.free.pop(0); self.slot[u] = sl
            g0, g1 = dma_groups(sl, V.Q0, V.Q1, self.srd, S.SOB, self.stride, self.mods, self.wrap)
            def mk(u, g1):
                def f(a):
                    for l in g1: a(l)
                    self.h[u] = a.mark()
                return f
            out += [g0, mk(u, g1)]
        return out
    def parts(self, a, sl):
        u = self.issued; self.issued += 1; self.slot[u] = sl
        g0, g1 = dma_groups(sl, V.Q0, V.Q1, self.srd, S.SOB, self.stride, self.mods, self.wrap)
        def p0():
            for l in g0: a(l)
        def p1():
            for l in g1: a(l)
            self.h[u] = a.mark()
        return p0, p1
    def issue(self, a, k):
        for g in self.issue_groups(k):
            with a.atomic():
                g(a) if callable(g) else [a(l) for l in g]
    def drain(self, a, upto=None, more_slots=()):
        self.free += list(more_slots)
        upto = self.n if upto is None else upto
        self.issue(a, len(self.free))
        pend = None
        while self.done < upto:
            u = self.done
            a.wait_vm(self.h[u])
            tile_reads(a, self.slot[u], 1, apair(8 * u))
            if pend is not None:
                a('s_waitcnt lgkmcnt(4)')
                self.free.append(self.slot[pend]); self.issue(a, 1)
            pend = u
            self.done += 1
        a('s_waitcnt lgkmcnt(0)')
        if pend is not None: self.free.append(self.slot[pend])

def mfma_step(fs, qreg, first=False, pbase=None):
    f = V.FR + 8 * fs if pbase is None else pbase
    out = []
    if CFG.get('x_nomfma'): return ['s_nop 0'] * 4
    if CFG.get('x_vq'): qreg = lambda nt: f'v[{V.FQ+4*nt}:{V.FQ+4*nt+3}]'
    for nt in range(2):
        for mt in range(2):
            acc = V.ACC + (nt * 2 + mt) * 16
            c = '0' if first else f'v[{acc}:{acc+15}]'
            out.append(f'v_mfma_f32_32x32x16_bf16 v[{acc}:{acc+15}], v[{f+4*mt}:{f+4*mt+3}], {qreg(nt)}, {c}')
    return out

def stream_loop(a, steps, depth, bg_extra=(), tail=None, marks=None, cont=False):
    NS = 3
    items = []
    for u, st in enumerate(steps):
        for it in st['items']: items.append((u, it))
    nxt = 0; free = list(range(NRING)); slot = {}; h = {}
    def issue_parts():
        nonlocal nxt
        u, it = items[nxt]; key = (u, it[0]); nxt += 1
        sl = free.pop(0); slot[key] = sl
        hook = steps[u].get('before_issue')
        g0, g1 = dma_groups(sl, it[1], it[2], it[3], it[4], it[5], it[6], it[7] if len(it) > 7 else None)
        def p0():
            if hook and it is steps[u]['items'][0]: hook(a)
            for l in g0: a(l)
        def p1():
            for l in g1: a(l)
            h[key] = a.mark()
        return p0, p1
    def read_list(u):
        fs = u % NS; out = []
        for it in steps[u]['items']:
            key = (u, it[0])
            for t in range(2):
                ra = (V.RA0, V.RA1, V.RB0, V.RB1)[it[0] * 2 + t]
                base = (V.FR if it[0] == 0 else V.FQ) + 8 * fs
                for q in range(2):
                    if CFG.get('x_nods'): continue
                    out.append(f'ds_read_b64_tr_b16 v[{base+4*t+2*q}:{base+4*t+2*q+1}], v{ra} offset:{slot[key]*2048 + q*512}')
        return out
    def last_handle(u): return max(h[(u, it[0])] for it in steps[u]['items'])
    inflight = lambda: NRING - len(free)
    while nxt < len(items) and inflight() < min(depth, CFG['k0']):
        p0, p1 = issue_parts(); p0(); p1()
    for g in bg_extra:
        g(a) if callable(g) else [a(l) for l in g]
    while nxt < len(items) and inflight() < depth:
        p0, p1 = issue_parts(); p0(); p1()
    n = len(steps)
    nreads = {}
    for u in range(min(2, n)):
        a.wait_vm(last_handle(u))
        rl = read_list(u); nreads[u] = len(rl)
        for l in rl: a(l)
    for u in range(n):
        fs = u % NS
        q = steps[u]['q']
        qreg = (lambda nt, q=q: f'a[{8*q+4*nt}:{8*q+4*nt+3}]') if q is not None else (lambda nt, fs=fs: f'v[{V.FQ+8*fs+4*nt}:{V.FQ+8*fs+4*nt+3}]')
        m = mfma_step(fs, qreg, first=(u == 0 and not cont), pbase=steps[u].get('p'))
        if marks and u in marks: stamp(a, marks[u], 240)
        a(f's_waitcnt lgkmcnt({nreads.get(u+1, 0) if u + 1 < n else 0})')
        a(m[0])
        for it in steps[u]['items']: free.append(slot[(u, it[0])])
        parts = []
        while nxt < len(items) and inflight() < depth and free:
            parts.append(issue_parts())
        if nxt >= len(items) and not parts and tail:
            tp = tail(a, free)
            if tp: parts.append(tp)
        order = CFG.get('order', 'A')
        rl = []
        def get_reads():
            nonlocal rl
            if u + 2 < n:
                a.wait_vm(last_handle(u + 2))
                rl = read_list(u + 2); nreads[u + 2] = len(rl)
        if order == 'A':
            if parts: parts[0][0]()
            a(m[1])
            if parts: parts[0][1]()
            for p0, p1 in parts[1:]:
                p0(); p1()
            get_reads()
            a(m[2])
            for l in rl[:len(rl)//2]: a(l)
            a(m[3])
            for l in rl[len(rl)//2:]: a(l)
        elif order == 'B':
            get_reads()
            for l in rl[:len(rl)//2]: a(l)
            a(m[1])
            for l in rl[len(rl)//2:]: a(l)
            a(m[2])
            if parts: parts[0][0]()
            a(m[3])
            if parts: parts[0][1]()
            for p0, p1 in parts[1:]:
                p0(); p1()
        elif order == 'C':
            for p0, p1 in parts:
                p0(); p1()
            a(m[1])
            get_reads()
            for l in rl[:len(rl)//2]: a(l)
            a(m[2])
            for l in rl[len(rl)//2:]: a(l)
            a(m[3])
        elif order == 'D':
            if parts: parts[0][0]()
            a(m[1])
            get_reads()
            for l in rl[:len(rl)//2]: a(l)
            a(m[2])
            if parts: parts[0][1]()
            for p0, p1 in parts[1:]:
                p0(); p1()
            a(m[3])
            for l in rl[len(rl)//2:]: a(l)
    return free

def reduce_partials(a, bg=None):
    L, T = V.LANE, V.T
    a(f'v_lshlrev_b32 v{T}, 4, v{L}')
    a(f'v_add_u32 v{T+1}, s{S.RING}, v{T}')
    for t in range(1, 4):
        a(f's_xor_b32 s{S.T}, s{S.WAVE}, {t}'); a(f's_mul_i32 s{S.T}, s{S.T}, {RINGB}')
        a(f'v_add_u32 v{T+1+t}, s{S.T}, v{T}')
    a('s_nop 7')
    for t in range(1, 4):
        for i in range(4):
            r = V.ACC + t*16 + i*4
            a(f'ds_write_b128 v{T+1}, v[{r}:{r+3}] offset:{(t-1)*4096+i*1024}')
    a('s_waitcnt lgkmcnt(0)')
    a('s_barrier')
    for t in range(1, 4):
        for i in range(4):
            r = V.ACC + t*16 + i*4
            a(f'ds_read_b128 v[{r}:{r+3}], v{T+1+t} offset:{(t-1)*4096+i*1024}')
    a('s_waitcnt lgkmcnt(8)')
    for i in range(16): a(f'v_add_f32 v{V.VD+i}, v{V.ACC+i}, v{V.ACC+16+i}')
    a('s_waitcnt lgkmcnt(4)')
    for i in range(16): a(f'v_add_f32 v{V.VD+i}, v{V.VD+i}, v{V.ACC+32+i}')
    a('s_waitcnt lgkmcnt(0)')
    for i in range(16): a(f'v_add_f32 v{V.VD+i}, v{V.VD+i}, v{V.ACC+48+i}')


def ff(x): return fb(float(x))
def lane_floats(a, fa, fh, tmp):
    L = V.LANE
    a(f'v_and_b32 v{tmp}, 31, v{L}'); a(f'v_cvt_f32_u32 v{fa}, v{tmp}')
    a(f'v_lshrrev_b32 v{tmp}, 5, v{L}'); a(f'v_cvt_f32_u32 v{fh}, v{tmp}')

def gen_f32(a, fa, fh, C, S_, NS, tmp):
    st, ba = tmp, tmp + 1
    a(f'v_mul_f32 v{st}, {ff(1/32)}, v{fa}')
    a(f'v_mul_f32 v{ba}, v{fa}, v{fh}'); a(f'v_mul_f32 v{ba}, {ff(1/8)}, v{ba}')
    for b in range(2):
        for q in range(4):
            r = []
            for e in range(2):
                jj = 2*q + e; kb = 16*b + 8*(jj//4) + jj % 4
                a(f'v_fmamk_f32 v{tmp+2+e}, v{st}, {ff(kb)}, v{ba}')
            for e in range(2):
                a(f'v_sin_f32 v{tmp+4+e}, v{tmp+2+e}')
            for e in range(2):
                a(f'v_cos_f32 v{tmp+2+e}, v{tmp+2+e}')
            if S_ is not None: a(f'v_cvt_pk_bf16_f32 v{S_+4*b+q}, v{tmp+4}, v{tmp+5}')
            if NS is not None: a(f'v_cvt_pk_bf16_f32 v{NS+4*b+q}, -v{tmp+4}, -v{tmp+5}')
            a(f'v_cvt_pk_bf16_f32 v{C+4*b+q}, v{tmp+2}, v{tmp+3}')

def gen_twiddle(a, fa, fh, TC, TS, ns, den, tmp):
    st, ba = tmp, tmp + 1
    a(f'v_mul_f32 v{st}, {ff(1/den)}, v{fa}')
    a(f'v_mul_f32 v{ba}, v{fa}, v{fh}'); a(f'v_mul_f32 v{ba}, {ff(4/den)}, v{ba}')
    for i, n in enumerate(ns):
        a(f'v_fmamk_f32 v{TC+i}, v{st}, {ff(n)}, v{ba}')
        a(f'v_sin_f32 v{TS+i}, v{TC+i}'); a(f'v_cos_f32 v{TC+i}, v{TC+i}')

def gen_t2048(a, fa, fh, UC, US, tmp):
    a(f'v_mul_f32 v{tmp}, {ff(1/64)}, v{fa}'); a(f'v_fmamk_f32 v{tmp}, v{fh}, {ff(4/2048)}, v{tmp}')
    for i in range(4):
        for j in range(4):
            n = 4*i + j
            a(f'v_add_f32 v{UC+n}, {ff((8*i+j)/2048)}, v{tmp}')
            a(f'v_sin_f32 v{US+n}, v{UC+n}'); a(f'v_cos_f32 v{UC+n}, v{UC+n}')

def gen_a2(a, fh, A2R, A2I, tmp):
    L = V.LANE
    k2, c4, st, ba = tmp, tmp + 1, tmp + 2, tmp + 3
    a(f'v_bfe_u32 v{k2}, v{L}, 3, 2'); a(f'v_lshlrev_b32 v{k2}, 2, v{k2}')
    a(f'v_bfe_u32 v{c4}, v{L}, 2, 1'); a(f'v_lshl_add_u32 v{k2}, v{c4}, 1, v{k2}')
    a(f'v_bfe_u32 v{c4}, v{L}, 1, 1'); a(f'v_add_u32 v{k2}, v{k2}, v{c4}'); a(f'v_cvt_f32_u32 v{k2}, v{k2}')
    a(f'v_and_b32 v{c4}, 1, v{L}'); a(f'v_cvt_f32_u32 v{c4}, v{c4}'); a(f'v_mul_f32 v{c4}, 0x3e800000, v{c4}')
    a(f'v_mul_f32 v{st}, {ff(1/16)}, v{k2}')
    a(f'v_mul_f32 v{ba}, v{k2}, v{fh}'); a(f'v_fmamk_f32 v{ba}, v{ba}, {ff(1/4)}, v{c4}')
    for q in range(4):
        for e in range(2):
            jj = 2*q + e; nb = 8*(jj//4) + jj % 4
            a(f'v_fmamk_f32 v{tmp+4+e}, v{st}, {ff(nb)}, v{ba}')
        for e in range(2): a(f'v_sin_f32 v{tmp+6+e}, v{tmp+4+e}')
        for e in range(2): a(f'v_cos_f32 v{tmp+4+e}, v{tmp+4+e}')
        a(f'v_cvt_pk_bf16_f32 v{A2I+q}, v{tmp+6}, v{tmp+7}')
        a(f'v_cvt_pk_bf16_f32 v{A2R+q}, v{tmp+4}, v{tmp+5}')

def row_sum(a, v, t):
    for n in (8, 4, 2, 1):
        a('s_nop 1')
        a(f'v_add_f32_dpp v{v}, v{v}, v{v} row_ror:{n} row_mask:0xf bank_mask:0xf')
    a(f'v_mov_b32 v{t}, v{v}')
    a('s_nop 1')
    a(f'v_permlane32_swap_b32 v{v}, v{t}')
    a('s_nop 0')
    a(f'v_add_f32 v{v}, v{v}, v{t}')

def rbf(a, d, s):
    a(f'v_cvt_pk_bf16_f32 v{d}, v{s}, v{s}')
    a(f'v_lshlrev_b32 v{d}, 16, v{d}')

def layernorm(a, X, P, T, unpack):
    t0, t1, t2, t3 = T, T + 1, T + 2, T + 3
    Pp = lambda x: f'v[{x}:{x+1}]'
    a(f'v_pk_add_f32 {Pp(t0)}, {Pp(X)}, {Pp(X+2)}'); a(f'v_pk_add_f32 {Pp(t2)}, {Pp(X+4)}, {Pp(X+6)}')
    for i in (8, 12):
        a(f'v_pk_add_f32 {Pp(t0)}, {Pp(t0)}, {Pp(X+i)}'); a(f'v_pk_add_f32 {Pp(t2)}, {Pp(t2)}, {Pp(X+i+2)}')
    a(f'v_pk_add_f32 {Pp(t0)}, {Pp(t0)}, {Pp(t2)}')
    a(f'v_add_f32 v{t0}, v{t0}, v{t1}')
    row_sum(a, t0, t1)
    a(f'v_mul_f32 v{t0}, 0x3b000000, v{t0}')
    rbf(a, t2, t0)
    a(f'v_sub_f32 v{t3}, v{t0}, v{t2}')
    for i in range(0, 16, 2):
        a(f'v_pk_add_f32 {Pp(X+i)}, {Pp(X+i)}, {Pp(t2)} op_sel_hi:[1,0] neg_lo:[0,1] neg_hi:[0,1]')
    a(f'v_mul_f32 v{t3}, v{t3}, v{t3}')
    a(f'v_pk_mul_f32 {Pp(t0)}, {Pp(X)}, {Pp(X)}'); a(f'v_pk_mul_f32 {Pp(T+4)}, {Pp(X+2)}, {Pp(X+2)}')
    for i in range(4, 16, 4):
        a(f'v_pk_fma_f32 {Pp(t0)}, {Pp(X+i)}, {Pp(X+i)}, {Pp(t0)}'); a(f'v_pk_fma_f32 {Pp(T+4)}, {Pp(X+i+2)}, {Pp(X+i+2)}, {Pp(T+4)}')
    a(f'v_pk_add_f32 {Pp(t0)}, {Pp(t0)}, {Pp(T+4)}')
    a(f'v_add_f32 v{t0}, v{t0}, v{t1}')
    for n in (8, 4, 2, 1):
        a(f'v_cvt_pk_bf16_f32 v{P+2*[8,4,2,1].index(n)}, v{X+4*[8,4,2,1].index(n)}, v{X+4*[8,4,2,1].index(n)+1}')
        a(f'v_cvt_pk_bf16_f32 v{P+2*[8,4,2,1].index(n)+1}, v{X+4*[8,4,2,1].index(n)+2}, v{X+4*[8,4,2,1].index(n)+3}')
        a(f'v_add_f32_dpp v{t0}, v{t0}, v{t0} row_ror:{n} row_mask:0xf bank_mask:0xf')
    a(f'v_lshlrev_b32 v{X}, 16, v{P}')
    a(f'v_mov_b32 v{t1}, v{t0}')
    a(f'v_and_b32 v{X+1}, 0xffff0000, v{P}'); a(f'v_lshlrev_b32 v{X+2}, 16, v{P+1}')
    a(f'v_permlane32_swap_b32 v{t0}, v{t1}')
    a(f'v_and_b32 v{X+3}, 0xffff0000, v{P+1}')
    a(f'v_add_f32 v{t0}, v{t0}, v{t1}')
    a(f'v_fma_f32 v{t0}, v{t0}, v{T+6}, -v{t3}')
    a(f'v_max_f32 v{t0}, 0, v{t0}')
    rbf(a, t0, t0)
    a(f'v_add_f32 v{t0}, 0x3727c5ac, v{t0}')
    rbf(a, t0, t0)
    a(f'v_sqrt_f32 v{t0}, v{t0}')
    a(f'v_lshlrev_b32 v{X+4}, 16, v{P+2}')
    rbf(a, t0, t0)
    a(f'v_rcp_f32 v{t0}, v{t0}')
    a(f'v_and_b32 v{X+5}, 0xffff0000, v{P+2}')
    for q in range(3, 8):
        a(f'v_lshlrev_b32 v{X+2*q}, 16, v{P+q}'); a(f'v_and_b32 v{X+2*q+1}, 0xffff0000, v{P+q}')
    for i in range(0, 16, 2):
        a(f'v_pk_mul_f32 {Pp(X+i)}, {Pp(X+i)}, {Pp(t0)} op_sel_hi:[1,0]')
    for q in range(8):
        a(f'v_cvt_pk_bf16_f32 v{P+q}, v{X+2*q}, v{X+2*q+1}')
    if unpack:
        for q in range(8):
            a(f'v_lshlrev_b32 v{X+2*q}, 16, v{P+q}'); a(f'v_and_b32 v{X+2*q+1}, 0xffff0000, v{P+q}')

def finv_job(a, R):
    skip = a.label('finv')
    a(f's_cmp_lg_u32 s{S.WAVE}, 3'); a(f's_cbranch_scc1 {skip}')
    srd(a, S.D, S.WS, WS_FINV, 512 * 1024)
    L = V.LANE
    for e in range(2):
        t = S.T
        a(f's_mov_b32 s{t}, s2')
        a(f's_mov_b32 s{t+1}, {128*e}')
        a(f's_mov_b32 s{t+2}, 0x36000000')
        a('s_cmp_eq_u32 s2, 0')
        a(f's_cselect_b32 s{t+2}, 0x35800000, s{t+2}')
        if e == 1:
            a(f's_cselect_b32 s{t}, 0x100, s{t}')
            a(f's_cselect_b32 s{t+1}, 0, s{t+1}')
        a(f'v_lshlrev_b32 v{R}, 3, v{L}')
        a(f'v_mul_u32_u24 v{R}, s{t}, v{R}'); a(f'v_add_u32 v{R}, s{t+1}, v{R}')
        for k in range(8):
            r = R + 2 + k
            a(f'v_and_b32 v{r}, 511, v{R}'); a(f'v_cvt_f32_u32 v{r}, v{r}'); a(f'v_mul_f32 v{r}, 0x3b000000, v{r}')
            a(f'v_cos_f32 v{r}, v{r}'); a(f'v_add_u32 v{R}, s{t}, v{R}'); a(f'v_mul_f32 v{r}, s{t+2}, v{r}')
        o = R + 12 + 4*e
        for q in range(4): a(f'v_cvt_pk_bf16_f32 v{o+q}, v{R+2+2*q}, v{R+3+2*q}')
        a(f's_lshl_b32 s{t+3}, s2, 11'); a(f's_add_u32 s{t+3}, s{t+3}, {1024*e}')
        a(f'v_lshlrev_b32 v{R+1}, 4, v{L}')
        a.lines.append(f'buffer_store_dwordx4 v[{o}:{o+3}], v{R+1}, s[{S.D}:{S.D+3}], s{t+3} offen sc1')
    a(f'{skip}:')

def ab_loads(a, R):
    skip = a.label('abl')
    a(f's_cmp_lg_u32 s{S.WAVE}, 2'); a(f's_cbranch_scc1 {skip}')
    L = V.LANE
    a(f's_lshl_b32 s{S.T}, s2, 3')
    a(f'v_and_b32 v{R}, 7, v{L}'); a(f'v_add_u32 v{R}, s{S.T}, v{R}')
    a(f'v_sub_u32 v{R+1}, 0x800, v{R}'); a(f'v_and_b32 v{R+1}, 0x7ff, v{R+1}')
    a(f's_movk_i32 s{S.T}, 514')
    a(f'v_mul_lo_u32 v{R+2}, v{R}, s{S.T}'); a(f'v_mul_lo_u32 v{R+3}, v{R+1}, s{S.T}')
    for n, (v, s, off) in enumerate([(2, S.B, 0), (3, S.B, 0), (2, S.B, 512), (3, S.B, 512), (2, S.C, 0), (3, S.C, 0), (2, S.C, 512), (3, S.C, 512)]):
        a.lines.append(f'buffer_load_ushort v{R+4+n}, v{R+v}, s[{s}:{s+3}], 0 offen offset:{off}')
    a(f'{skip}:')

def ab_finish(a, R):
    with a.atomic(): ab_finish_(a, R)
def ab_finish_(a, R):
    skip = a.label('abf')
    a(f's_cmp_lg_u32 s{S.WAVE}, 2'); a(f's_cbranch_scc1 {skip}')
    for n in range(8): a(f'v_lshlrev_b32 v{R+4+n}, 16, v{R+4+n}')
    a(f'v_add_f32 v{R+2}, v{R+4}, v{R+5}'); a(f'v_add_f32 v{R+3}, v{R+6}, v{R+7}')
    a(f'v_sub_f32 v{R+4}, v{R+8}, v{R+9}'); a(f'v_sub_f32 v{R+5}, v{R+10}, v{R+11}')
    a(f'v_mul_f32 v{R+2}, 0.5, v{R+2}'); a(f'v_mul_f32 v{R+4}, 0.5, v{R+4}')
    a(f'v_add_f32 v{R+6}, v{R+2}, v{R+3}'); a(f'v_add_f32 v{R+7}, v{R+4}, v{R+5}')
    a(f'v_sub_f32 v{R+8}, v{R+2}, v{R+3}'); a(f'v_sub_f32 v{R+9}, v{R+4}, v{R+5}')
    for n in range(4): a(f'v_mul_f32 v{R+6+n}, 0x3e800000, v{R+6+n}')
    a(f'v_cvt_pk_bf16_f32 v{R+2}, v{R+6}, v{R+7}'); a(f'v_cvt_pk_bf16_f32 v{R+3}, v{R+8}, v{R+9}')
    a(f'v_and_b32 v{R+4}, 1, v{R}'); a(f'v_lshlrev_b32 v{R+4}, 8, v{R+4}')
    a(f'v_lshrrev_b32 v{R+5}, 8, v{R}'); a(f'v_lshl_add_u32 v{R+4}, v{R+5}, 5, v{R+4}')
    a(f'v_bfe_u32 v{R+5}, v{R}, 1, 5'); a(f'v_add_u32 v{R+4}, v{R+4}, v{R+5}')
    a(f'v_bfe_u32 v{R+5}, v{R}, 6, 2'); a(f'v_lshlrev_b32 v{R+5}, 2, v{R+5}'); a(f'v_lshl_add_u32 v{R+4}, v{R+4}, 4, v{R+5}')
    srd(a, S.D, S.WS, WS_AL, 0x4000)
    a('s_mov_b64 exec, 0xff')
    a.lines.append(f'buffer_store_dword v{R+2}, v{R+4}, s[{S.D}:{S.D+3}], 0 offen sc1')
    a(f'v_add_u32 v{R+4}, {WS_BE-WS_AL}, v{R+4}')
    a.lines.append(f'buffer_store_dword v{R+3}, v{R+4}, s[{S.D}:{S.D+3}], 0 offen sc1')
    a('s_mov_b64 exec, -1')
    a(f'{skip}:')

def phase1(a, pre):
    L = V.LANE
    VO, VT, VE = 10, 11, 44
    X, XA = 128, 144
    C32, NS32, TC, TS, A2R, A2I = 152, 160, 168, 176, 184, 188
    D1R, D1I = 192, 208
    BR, BI = 224, 232
    T = 240
    TW = 248
    WQ = 64
    AB = 96
    FI = 108
    t = S.T
    a(f's_lshl_b32 s{t+8}, s2, 2'); a(f's_add_u32 s{t+8}, s{t+8}, s{S.WAVE}')
    a(f's_lshl_b32 s{t+9}, s{S.WAVE}, 12'); a(f's_add_u32 s{t+9}, s{t+9}, {LDS_EX}')
    srd(a, S.A, S.X, 0, 2048 * 1024)
    a(f'v_lshlrev_b32 v{VO}, 4, v{L}')
    a(f's_lshl_b32 s{t+5}, s{t+8}, 10'); a(f's_add_u32 s{t+6}, s{t+5}, {1024*1024}')
    a(f's_mov_b32 m0, s{t+9}'); a('s_nop 0')
    a(f'buffer_load_dwordx4 v{VO}, s[{S.A}:{S.A+3}], s{t+5} offen {CFG["inmod"]} lds')
    a(f's_add_u32 m0, s{t+9}, 1056'); a('s_nop 0')
    a(f'buffer_load_dwordx4 v{VO}, s[{S.A}:{S.A+3}], s{t+6} offen {CFG["inmod"]} lds')
    hx = a.mark()
    srd(a, S.B, S.WR, 0, 2048 * 514); srd(a, S.C, S.WI, 0, 2048 * 514)
    a(f's_lshr_b32 s{t}, s{S.WAVE}, 1'); a(f's_lshl_b32 s{t+1}, s2, 1'); a(f's_add_u32 s{t}, s{t}, s{t+1}')
    a(f's_and_b32 s{t+1}, s{t}, 63'); a(f's_lshr_b32 s{t+2}, s{t}, 6')
    a(f's_lshl_b32 s{t+3}, s{t+2}, 8'); a(f's_add_u32 s{t+3}, s{t+3}, s{t+1}'); a(f's_mul_i32 s{t+3}, s{t+3}, 514')
    a(f's_and_b32 s{t+4}, s{S.WAVE}, 1'); a(f's_lshl_b32 s{t+5}, s{t+4}, 8'); a(f's_add_u32 s{t+3}, s{t+3}, s{t+5}')
    a(f'v_lshlrev_b32 v{WQ}, 2, v{L}'); a(f'v_add_u32 v{WQ}, s{t+3}, v{WQ}')
    for j in range(4):
        a(f's_mov_b32 s{t+5}, {j*64*514}')
        a(f'buffer_load_dword v{WQ+2+j}, v{WQ}, s[{S.B}:{S.B+3}], s{t+5} offen {CFG["inmod"]}')
        a(f'buffer_load_dword v{WQ+6+j}, v{WQ}, s[{S.C}:{S.C+3}], s{t+5} offen {CFG["inmod"]}')
    hw = a.mark()
    a(f's_and_b32 s{t+5}, s{t}, 1'); a(f's_lshl_b32 s{t+5}, s{t+5}, 8'); a(f's_lshl_b32 s{t+6}, s{t+2}, 5'); a(f's_add_u32 s{t+5}, s{t+5}, s{t+6}')
    a(f's_lshr_b32 s{t+6}, s{t+1}, 1'); a(f's_add_u32 s{t+5}, s{t+5}, s{t+6}'); a(f's_lshl_b32 s{t+5}, s{t+5}, 7')
    a(f's_lshl_b32 s{t+6}, s{t+4}, 20'); a(f's_add_u32 s{t+5}, s{t+5}, s{t+6}')
    a(f'v_lshrrev_b32 v{WQ+1}, 3, v{L}'); a(f'v_lshlrev_b32 v{WQ+1}, 16, v{WQ+1}'); a(f'v_and_b32 v{WQ}, 7, v{L}')
    a(f'v_lshl_add_u32 v{WQ+1}, v{WQ}, 4, v{WQ+1}'); a(f'v_add_u32 v{WQ+1}, s{t+5}, v{WQ+1}')
    ab_loads(a, AB)
    def pf1():
        a(f's_and_b32 s{t+12}, s{S.J}, 3'); a(f's_lshl_b32 s{t+12}, s{t+12}, 2'); a(f's_add_u32 s{t+12}, s{t+12}, s{S.WAVE}')
        a(f's_lshl_b32 s{t+12}, s{t+12}, 7')
        a(f'v_add_u32 v{T+7}, s{t+12}, v{L}')
        a(f's_lshr_b32 s{t+13}, s{t+14}, 6')
        a(f'v_mul_lo_u32 v{T+7}, v{T+7}, s{t+13}'); a(f'v_add_u32 v{T+7}, s{PF_COL}, v{T+7}')
        a(f'buffer_load_dword v{VT}, v{T+7}, s[{PRE_SRD}:{PRE_SRD+3}], 0 offen {CFG["wmod"]}')
        a(f'buffer_load_dword v{VT}, v{T+7}, s[{PRE_SRD}:{PRE_SRD+3}], s{t+14} offen {CFG["wmod"]}')
    if CFG['pf1'] == 1: pf1()
    if CFG['early']:
        a('s_barrier')
        pre.issue(a, CFG['early'])
    lane_floats(a, D1R, D1R + 1, D1R + 2)
    gen_f32(a, D1R, D1R + 1, C32, None, NS32, D1R + 2)
    gen_twiddle(a, D1R, D1R + 1, TC, TS, [0, 1, 2, 3, 8, 9, 10, 11], 512, D1R + 2)
    gen_a2(a, D1R + 1, A2R, A2I, D1R + 2)
    a(f'v_cvt_f32_u32 v{TW}, s{t+8}'); a(f'v_mul_f32 v{TW}, 0x3a000000, v{TW}')
    a(f'v_sin_f32 v{TW+1}, v{TW}'); a(f'v_cos_f32 v{TW}, v{TW}')
    a(f'v_mov_b32 v{T+6}, 0x3b000000')
    a(f'v_lshlrev_b32 v{VE}, 4, v{L}'); a(f'v_add_u32 v{VE}, s{t+9}, v{VE}')
    a(f'v_bfe_u32 v{VO}, v{L}, 4, 1'); a(f'v_mul_u32_u24 v{VO}, 1056, v{VO}'); a(f'v_and_b32 v{T+1}, 15, v{L}')
    a(f'v_lshl_add_u32 v{VO}, v{T+1}, 1, v{VO}'); a(f'v_lshrrev_b32 v{T+1}, 5, v{L}'); a(f'v_lshl_add_u32 v{VO}, v{T+1}, 7, v{VO}')
    a(f'v_add_u32 v{VO}, s{t+9}, v{VO}')
    for i in range(16): a(f'v_mov_b32 v{X+i}, 0')
    stamp(a, 1, T)
    a.wait_vm(hx)
    for b in range(2):
        for jj in range(8):
            a(f'ds_read_u16_d16_hi v{X+8*b+jj}, v{VO} offset:{512*b+256*(jj//4)+32*(jj%4)}')
    a('s_waitcnt lgkmcnt(0)')
    stamp(a, 2, T)
    pre.issue(a, CFG['early2'])
    if CFG['pf1'] == 2: pf1()
    layernorm(a, X, XA, T, True)
    for b in range(2):
        c = '0' if b == 0 else f'v[{D1R}:{D1R+15}]'
        a(f'v_mfma_f32_32x32x16_bf16 v[{D1R}:{D1R+15}], v[{XA+4*b}:{XA+4*b+3}], v[{C32+4*b}:{C32+4*b+3}], {c}')
        c = '0' if b == 0 else f'v[{D1I}:{D1I+15}]'
        a(f'v_mfma_f32_32x32x16_bf16 v[{D1I}:{D1I+15}], v[{XA+4*b}:{XA+4*b+3}], v[{NS32+4*b}:{NS32+4*b+3}], {c}')
    a.wait_vm(hw)
    a(f's_mov_b32 s{t+10}, 0x05040100'); a(f's_mov_b32 s{t+11}, 0x07060302')
    for e in range(2):
        for j in range(4):
            a(f'v_perm_b32 v{WQ+10+4*e+j}, v{WQ+6+j}, v{WQ+2+j}, s{t+10+e}')
    a(f'v_lshlrev_b32 v{VE}, 5, v{L}'); a(f'v_add_u32 v{VE}, s{S.RING}, v{VE}')
    a(f'ds_write_b128 v{VE}, v[{WQ+10}:{WQ+13}] offset:{(NRING-1)*2048}'); a(f'ds_write_b128 v{VE}, v[{WQ+14}:{WQ+17}] offset:{(NRING-1)*2048+16}')
    a(f'v_lshlrev_b32 v{VE}, 4, v{L}'); a(f'v_add_u32 v{VE}, s{S.RING}, v{VE}')
    a(f'ds_read_b128 v[{WQ+20}:{WQ+23}], v{VE} offset:{(NRING-1)*2048}'); a(f'ds_read_b128 v[{WQ+24}:{WQ+27}], v{VE} offset:{(NRING-1)*2048+1024}')
    ab_finish(a, AB)
    srd(a, S.D, S.WS, WS_WP, 32 * 512 * 128)
    a(f's_mov_b32 s{t+5}, {8*65536}')
    a('s_waitcnt lgkmcnt(0)')
    a(f'buffer_store_dwordx4 v[{WQ+20}:{WQ+23}], v{WQ+1}, s[{S.D}:{S.D+3}], 0 offen sc1')
    a(f'buffer_store_dwordx4 v[{WQ+24}:{WQ+27}], v{WQ+1}, s[{S.D}:{S.D+3}], s{t+5} offen sc1')
    a(f'v_lshlrev_b32 v{VE}, 4, v{L}'); a(f'v_add_u32 v{VE}, s{t+9}, v{VE}')
    HP = XA
    layernorm(a, X, HP, T, False)
    for q in range(8):
        b, jq = q // 4, q % 4
        for e in range(2):
            jj = 2 * jq + e
            op = 'ds_write_b16_d16_hi' if e else 'ds_write_b16'
            a(f'{op} v{VO}, v{HP+q} offset:{512*b+256*(jj//4)+32*(jj%4)}')
    a(f'ds_read_b128 v[{WQ+20}:{WQ+23}], v{VE}'); a(f'ds_read_b128 v[{WQ+24}:{WQ+27}], v{VE} offset:1056')
    srd(a, S.D, S.WS, WS_H, 2048 * 1024)
    a(f's_lshl_b32 s{t+5}, s{t+8}, 10'); a(f's_add_u32 s{t+6}, s{t+5}, {1024*1024}')
    a(f'v_lshlrev_b32 v{T+1}, 4, v{L}')
    Pp = lambda x: f'v[{x}:{x+1}]'
    for i in range(4):
        for j in range(0, 4, 2):
            r_, i_ = D1R + 4*i + j, D1I + 4*i + j
            tc, ts = TC + 4*(i % 2) + j, TS + 4*(i % 2) + j
            a(f'v_pk_mul_f32 {Pp(X+j)}, {Pp(r_)}, {Pp(tc)}'); a(f'v_pk_mul_f32 {Pp(X+4+j)}, {Pp(i_)}, {Pp(tc)}')
            a(f'v_pk_fma_f32 {Pp(X+j)}, {Pp(i_)}, {Pp(ts)}, {Pp(X+j)}')
            a(f'v_pk_fma_f32 {Pp(X+4+j)}, {Pp(r_)}, {Pp(ts)}, {Pp(X+4+j)} neg_lo:[1,0,0] neg_hi:[1,0,0]')
        a(f'v_cvt_pk_bf16_f32 v{BR+2*i}, v{X}, v{X+1}');   a(f'v_cvt_pk_bf16_f32 v{BR+2*i+1}, v{X+2}, v{X+3}')
        a(f'v_cvt_pk_bf16_f32 v{BI+2*i}, v{X+4}, v{X+5}'); a(f'v_cvt_pk_bf16_f32 v{BI+2*i+1}, v{X+6}, v{X+7}')
        if i == 0:
            a('s_waitcnt lgkmcnt(0)')
            a(f'buffer_store_dwordx4 v[{WQ+20}:{WQ+23}], v{T+1}, s[{S.D}:{S.D+3}], s{t+5} offen sc1')
            a(f'buffer_store_dwordx4 v[{WQ+24}:{WQ+27}], v{T+1}, s[{S.D}:{S.D+3}], s{t+6} offen sc1')
    a('s_nop 1')
    D2 = (D1R, D1I)
    for r in range(2):
        a(f'v_mfma_f32_32x32x16_bf16 v[{D2[r]}:{D2[r]+15}], v[{A2R}:{A2R+3}], v[{BR+4*r}:{BR+4*r+3}], 0')
    for r in range(2):
        a(f'v_mfma_f32_32x32x16_bf16 v[{D2[r]}:{D2[r]+15}], v[{A2I}:{A2I+3}], v[{BI+4*r}:{BI+4*r+3}], v[{D2[r]}:{D2[r]+15}]')
    a(f'v_and_b32 v{T}, 31, v0'); a(f'v_lshrrev_b32 v{T+1}, 5, v0'); a(f'v_lshrrev_b32 v{T+2}, 2, v{T+1}'); a(f'v_lshlrev_b32 v{T+2}, 10, v{T+2}')
    a(f'v_bfe_u32 v{T+3}, v{T+1}, 1, 1'); a(f'v_lshl_add_u32 v{T}, v{T+3}, 5, v{T}'); a(f'v_lshl_add_u32 v{T}, v{T}, 4, v{T+2}')
    a(f'v_and_b32 v{T+1}, 1, v{T+1}'); a(f'v_lshl_add_u32 v{T}, v{T+1}, 3, v{T}'); a(f'v_add_u32 v{T}, {LDS_EX}, v{T}')
    a(f'v_lshrrev_b32 v{T+1}, 3, v0'); a(f'v_lshlrev_b32 v{T+1}, 15, v{T+1}'); a(f'v_and_b32 v{T+2}, 7, v0')
    a(f'v_lshl_add_u32 v{T+1}, v{T+2}, 4, v{T+1}'); a(f's_lshl_b32 s{t+5}, s2, 7'); a(f'v_add_u32 v{T+1}, s{t+5}, v{T+1}')
    a('s_nop 3')
    a('s_mov_b64 exec, 1')
    a(f'v_mov_b32 v{D2[0]+1}, v{D2[0]+8}'); a(f'v_mov_b32 v{D2[1]+1}, v{D2[1]+8}')
    a('s_mov_b64 exec, -1')
    Z0, DF, Z1 = X, X + 8, XA
    for i in range(0, 8, 2):
        a(f'v_pk_add_f32 {Pp(Z0+i)}, {Pp(D2[0]+i)}, {Pp(D2[1]+i)}')
        a(f'v_pk_add_f32 {Pp(DF+i)}, {Pp(D2[0]+i)}, {Pp(D2[1]+i)} neg_lo:[0,1] neg_hi:[0,1]')
    for i in range(0, 8, 2):
        a(f'v_mul_f32 v{Z1+i}, v{DF+i}, v{TW}'); a(f'v_mul_f32 v{Z1+i+1}, v{DF+i+1}, v{TW}')
        a(f'v_fmac_f32 v{Z1+i}, v{DF+i+1}, v{TW+1}'); a(f'v_fma_f32 v{Z1+i+1}, -v{DF+i}, v{TW+1}, v{Z1+i+1}')
    for ip in range(2):
        a(f'ds_write_b128 v{VE}, v[{Z0+4*ip}:{Z0+4*ip+3}] offset:{ip*1024}')
        a(f'ds_write_b128 v{VE}, v[{Z1+4*ip}:{Z1+4*ip+3}] offset:{2048+ip*1024}')
    srd(a, S.D, S.WS, WS_ZB, 2 * 32 * 256 * 128)
    a('s_waitcnt lgkmcnt(0)')
    a('s_barrier')
    G0 = C32
    for par in range(2):
        for w in range(4):
            a(f'ds_read_b64 v[{G0+16*par+2*w}:{G0+16*par+2*w+1}], v{T} offset:{w*4096+par*2048}')
    a(f's_mov_b32 s{t+5}, {32*256*128}')
    for par in range(2):
        g = G0 + 16 * par; o = g + 8
        a(f's_waitcnt lgkmcnt({4*(1-par)})')
        a(f'v_cvt_pk_bf16_f32 v{o}, v{g}, v{g+2}');     a(f'v_cvt_pk_bf16_f32 v{o+1}, v{g+4}, v{g+6}')
        a(f'v_cvt_pk_bf16_f32 v{o+2}, v{g+1}, v{g+3}'); a(f'v_cvt_pk_bf16_f32 v{o+3}, v{g+5}, v{g+7}')
        so = f's{t+5}' if par else '0'
        a(f'buffer_store_dwordx4 v[{o}:{o+3}], v{T+1}, s[{S.D}:{S.D+3}], {so} offen sc1')
    stamp(a, 3, T + 2)
    a(f'v_mov_b32 v{T+2}, 0')
    a(f'global_load_dword v{T+3}, v{T+2}, s[{S.DBG}:{S.DBG+1}] sc1')
    hst = a.mark()
    if CFG['pf1'] == 3: pf1()
    pre.issue(a, CFG['mid'])
    a.wait_vm(hst)
    lp, ok = a.label('nonce'), a.label('nonce_ok')
    a(f's_mov_b32 s{t}, 0')
    a(f'{lp}:')
    a(f'v_readfirstlane_b32 s{S.NONCE}, v{T+3}')
    a('s_nop 3')
    a(f's_cmp_lg_u32 s{S.NONCE}, 0'); a(f's_cbranch_scc1 {ok}')
    a.lines.append(f'global_load_dword v{T+3}, v{T+2}, s[{S.DBG}:{S.DBG+1}] sc1')
    a('s_waitcnt vmcnt(0)')
    a(f's_add_u32 s{t}, s{t}, 1'); a(f's_cmp_lt_u32 s{t}, {CFG["spin"]}'); a(f's_cbranch_scc1 {lp}')
    a(f'{ok}:')
    a('s_barrier')
    publish(a, [f's_lshl_b32 s{t}, s2, 7', f's_add_u32 s{t}, s{t}, {WS_F1}'], t, T)
    stamp(a, 4, T)


FINV = 192
def finv_groups(a, u0=0, u1=8):
    L, T, t = V.LANE, 36, S.T
    fd0, fd1, kb, kk = T, T + 1, T + 2, T + 3
    pre = [f's_and_b32 s{t+6}, s{S.WAVE}, 1', f's_lshl_b32 s{t+6}, s{t+6}, 5', f's_lshl_b32 s{t+7}, s{S.DT}, 6', f's_add_u32 s{t+6}, s{t+6}, s{t+7}',
           f'v_and_b32 v{fd0}, 31, v{L}', f'v_add_u32 v{fd0}, s{t+6}, v{fd0}', f'v_xor_b32 v{fd1}, 32, v{fd0}',
           f'v_cvt_f32_u32 v{fd0}, v{fd0}', f'v_cvt_f32_u32 v{fd1}, v{fd1}',
           f'v_mul_f32 v{fd0}, 0x3b000000, v{fd0}', f'v_mul_f32 v{fd1}, 0x3b000000, v{fd1}',
           f'v_lshrrev_b32 v{kb}, 5, v{L}', f'v_lshlrev_b32 v{kb}, 2, v{kb}', f's_lshl_b32 s{t+6}, s{S.WAVE}, 3', f'v_add_u32 v{kb}, s{t+6}, v{kb}',
           f's_add_u32 s{t+7}, s{S.ROT4}, {u0}', f's_and_b32 s{t+7}, s{t+7}, 7']
    groups = [pre]
    for u in range(u0, u1):
        g = [f's_lshl_b32 s{t+6}, s{t+7}, 5', f'v_add_u32 v{kk}, s{t+6}, v{kb}', f'v_cvt_f32_u32 v{kk}, v{kk}',
             f's_add_u32 s{t+7}, s{t+7}, 1', f's_and_b32 s{t+7}, s{t+7}, 7']
        groups.append(g)
        for rho in range(4):
            r0, r1 = FINV + 8*u + rho, FINV + 8*u + 4 + rho
            g = [f'v_mul_f32 v{T+4}, v{kk}, v{fd0}', f'v_mul_f32 v{T+5}, v{kk}, v{fd1}',
                 f'v_sin_f32 v{T+6}, v{T+4}', f'v_sin_f32 v{T+7}, v{T+5}',
                 f'v_cos_f32 v{T+4}, v{T+4}', f'v_cos_f32 v{T+5}, v{T+5}',
                 f'v_add_f32 v{kk}, 1.0, v{kk}',
                 f'v_cvt_pk_bf16_f32 v{r0}, v{T+4}, -v{T+6}', f'v_cvt_pk_bf16_f32 v{r1}, v{T+5}, -v{T+7}']
            groups.append(g)
    return groups

def store_tile_rows(a, O, srd_, row0_lines, s_row0, stride_shift):
    L, T, t = V.LANE, V.T, S.T
    a(f's_lshr_b32 s{t}, s{S.WAVE}, 1'); a(f's_lshl_b32 s{t}, s{t}, 5')
    a(f'v_and_b32 v{T}, 31, v{L}'); a(f'v_add_u32 v{T}, s{t}, v{T}'); a(f'v_mul_u32_u24 v{T}, 144, v{T}')
    a(f's_and_b32 s{t}, s{S.WAVE}, 1'); a(f's_lshl_b32 s{t}, s{t}, 6'); a(f's_add_u32 s{t}, s{t}, {LDS_EX}')
    a(f'v_lshrrev_b32 v{T+1}, 5, v{L}'); a(f'v_lshl_add_u32 v{T}, v{T+1}, 4, v{T}'); a(f'v_add_u32 v{T}, s{t}, v{T}')
    a(f'ds_write_b128 v{T}, v[{O}:{O+3}]'); a(f'ds_write_b128 v{T}, v[{O+4}:{O+7}] offset:32')
    a(f'v_lshrrev_b32 v{T+1}, 3, v{L}'); a(f's_lshl_b32 s{t}, s{S.WAVE}, 4'); a(f'v_add_u32 v{T+1}, s{t}, v{T+1}')
    a(f'v_and_b32 v{T+2}, 7, v{L}'); a(f'v_lshlrev_b32 v{T+2}, 4, v{T+2}')
    a(f'v_mul_u32_u24 v{T+3}, 144, v{T+1}'); a(f'v_add_u32 v{T+3}, v{T+3}, v{T+2}'); a(f'v_add_u32 v{T+3}, {LDS_EX}, v{T+3}')
    for l in row0_lines: a(l)
    a(f'v_lshl_add_u32 v{T+1}, v{T+1}, {stride_shift}, v{T+2}'); a(f'v_add_u32 v{T+1}, s{s_row0}, v{T+1}')
    a.nobg('s_waitcnt lgkmcnt(0)')
    a.nobg('s_barrier')
    a(f'ds_read_b128 v[{O}:{O+3}], v{T+3}'); a(f'ds_read_b128 v[{O+4}:{O+7}], v{T+3} offset:{8*144}')
    a(f's_mov_b32 s{t}, {8 << stride_shift}')
    a.nobg('s_waitcnt lgkmcnt(0)')
    a(f'buffer_store_dwordx4 v[{O}:{O+3}], v{T+1}, s[{srd_}:{srd_+3}], 0 offen sc1')
    a(f'buffer_store_dwordx4 v[{O+4}:{O+7}], v{T+1}, s[{srd_}:{srd_+3}], s{t} offen sc1')

def w2_setup(a):
    t = S.T
    srd(a, S.B, S.W2, 0, 1792 * 4096)
    a(f's_lshl_b32 s{t+1}, s{S.ST}, 7')
    dma_offsets(a, V.Q0, V.Q1, 4096, t + 1)
    a(f's_mul_i32 s{S.SOB}, s{S.WAVE}, {16*4096}')
    a(f's_mul_i32 s{t}, s{S.ROT3}, {64*4096}'); a(f's_add_u32 s{S.SOB}, s{S.SOB}, s{t}')

V_B1 = 60
def gemm1_setup(a):
    L, T, t = V.LANE, V.T, S.T
    srd(a, S.A, S.WS, WS_H, 2048 * 1024)
    a(f's_lshl_b32 s{t+1}, s{S.DT}, 7')
    dma_offsets(a, V.P0, V.P1, 1024, t + 1)
    a(f's_mul_i32 s{S.SOA}, s{S.WAVE}, {16*1024}')
    a(f's_lshl_b32 s{t}, s{S.ROT1}, 16'); a(f's_add_u32 s{S.SOA}, s{S.SOA}, s{t}')
    a(f's_lshr_b32 s{t}, s{S.WAVE}, 1'); a(f's_lshl_b32 s{t}, s{t}, 5'); a(f's_lshl_b32 s{t+1}, s{S.FT}, 6'); a(f's_add_u32 s{t}, s{t}, s{t+1}')
    a(f'v_and_b32 v{T}, 31, v{L}'); a(f'v_add_u32 v{T}, s{t}, v{T}'); a(f'v_lshlrev_b32 v{T}, 1, v{T}')
    a(f'global_load_ushort v{V_B1}, v{T}, s[{S.B1}:{S.B1+1}]')
    resid_address(a)
    w2_setup(a)

def gemm1(a):
    L, T, t = V.LANE, V.T, S.T
    pf = finv_groups(a, 0, CFG['fsplit'])
    steps = [dict(items=[(0, V.P0, V.P1, S.A, S.SOA, 1024, CFG['dmod'], (32*65536, 32*65536))], q=u) for u in range(32)]
    pre2 = Preload(28, S.B, 4096, CFG['wmod2'], [], wrap=(7340032, 7340032))
    once = []
    def tail(a_, free):
        if not once:
            once.append(1)
            return (lambda: resid_loads(a)), (lambda: None)
        if pre2.issued >= CFG['tail2']: return None
        ok = [x for x in free if x >= 6]
        if not ok: return None
        free.remove(ok[0])
        return pre2.parts(a, ok[0])
    left = stream_loop(a, steps, CFG.get('depth1', 12), bg_extra=pf, tail=tail, marks={0: 1, 4: 2, 8: 3, 16: 4, 24: 5} if CFG.get('mark') == 1 else None)
    pre2.free = [x for x in left if x >= 6]
    stamp(a, 7, T)
    pre2.issue(a, CFG['post2'])
    reduce_partials(a)
    stamp(a, 12, T)
    VD = V.VD
    a(f'v_lshlrev_b32 v{V_B1}, 16, v{V_B1}')
    c0 = -2.0 * 0.7978845608028654 * 1.4426950408889634
    a(f's_mov_b32 s{t+2}, {fb(c0)}'); a(f's_mov_b32 s{t+3}, {fb(c0 * 0.044715)}')
    a(f'v_mov_b32 v61, s{t+2}')
    for q in range(8):
        d0, d1 = VD + 2*q, VD + 2*q + 1
        a(f'v_cvt_pk_bf16_f32 v{T}, v{d0}, v{d1}')
        a(f'v_lshlrev_b32 v{d0}, 16, v{T}'); a(f'v_and_b32 v{d1}, 0xffff0000, v{T}')
        a(f'v_add_f32 v{d0}, v{d0}, v{V_B1}'); a(f'v_add_f32 v{d1}, v{d1}, v{V_B1}')
        a(f'v_cvt_pk_bf16_f32 v{T}, v{d0}, v{d1}')
        a(f'v_lshlrev_b32 v{d0}, 16, v{T}'); a(f'v_and_b32 v{d1}, 0xffff0000, v{T}')
        a(f'v_mul_f32 v{T+1}, v{d0}, v{d0}'); a(f'v_mul_f32 v{T+2}, v{d1}, v{d1}')
        a(f'v_fma_f32 v{T+1}, v{T+1}, s{t+3}, v61'); a(f'v_fma_f32 v{T+2}, v{T+2}, s{t+3}, v61')
        a(f'v_mul_f32 v{T+1}, v{T+1}, v{d0}'); a(f'v_mul_f32 v{T+2}, v{T+2}, v{d1}')
        a(f'v_exp_f32 v{T+1}, v{T+1}'); a(f'v_exp_f32 v{T+2}, v{T+2}')
        a('s_nop 0')
        a(f'v_add_f32 v{T+1}, 1.0, v{T+1}'); a(f'v_add_f32 v{T+2}, 1.0, v{T+2}')
        a(f'v_rcp_f32 v{T+1}, v{T+1}'); a(f'v_rcp_f32 v{T+2}, v{T+2}')
        a('s_nop 0')
        a(f'v_mul_f32 v{d0}, v{d0}, v{T+1}'); a(f'v_mul_f32 v{d1}, v{d1}, v{T+2}')
    a('s_nop 1')
    for p in range(2):
        for j in range(4):
            a(f'v_permlane32_swap_b32 v{VD+8*p+j}, v{VD+8*p+4+j}')
    O = 52
    for p in range(2):
        for jj in range(4):
            a(f'v_cvt_pk_bf16_f32 v{O+4*p+jj}, v{VD+8*p+2*jj}, v{VD+8*p+2*jj+1}')
    a.bg_flush()
    srd(a, S.D, S.WS, WS_GT, 1792 * 1024)
    store_tile_rows(a, O, S.D, [f's_lshl_b32 s{t+4}, s{S.FT}, 16', f's_lshl_b32 s{t+5}, s{S.DT}, 7', f's_add_u32 s{t+4}, s{t+4}, s{t+5}'], t + 4, 10)
    hst = a.mark()
    stamp(a, 13, T)
    pre2.free += list(range(6))
    pre2.issue(a, CFG['mid2'])
    a.wait_vm(hst)
    a('s_barrier')
    publish(a, [f's_lshl_b32 s{t}, s{S.DT}, 5', f's_add_u32 s{t}, s{t}, s{S.FT}', f's_lshl_b32 s{t}, s{t}, 7', f's_add_u32 s{t}, s{t}, {WS_F2}'], t, T)
    stamp(a, 8, T)
    gemm2_setup(a, False)
    pre2.drain(a)
    stamp(a, 14, T)

class F:
    L = 1; RZ0 = 3; RW = 5; VY = 6; T = 8
    C, S, NS = 24, 32, 40
    TC, TS = 48, 64
    UC, US = 80, 96
    AR = (112, 176); AI = (120, 184); DR = (128, 192); DI = (144, 208); W = (160, 224)
    BE = 240

def stage_mfmas(p, form, conj):
    s_for_re = F.NS if conj else F.S
    s_for_im = F.S if conj else F.NS
    DR, DI, AR, AI = F.DR[p], F.DI[p], F.AR[p], F.AI[p]
    seq = []
    for b in range(2): seq += [(DR, AR + 4*b, F.C + 4*b), (DI, AI + 4*b, F.C + 4*b)]
    for b in range(2): seq += [(DR, AI + 4*b, s_for_re + 4*b), (DI, AR + 4*b, s_for_im + 4*b)]
    seen = set(); out = []
    for (d, x, c) in seq:
        cc = f'v[{d}:{d+15}]' if d in seen else '0'
        seen.add(d)
        if form == 'A': out.append(f'v_mfma_f32_32x32x16_bf16 v[{d}:{d+15}], v[{x}:{x+3}], v[{c}:{c+3}], {cc}')
        else:           out.append(f'v_mfma_f32_32x32x16_bf16 v[{d}:{d+15}], v[{c}:{c+3}], v[{x}:{x+3}], {cc}')
    return out

PP = lambda x: f'v[{x}:{x+1}]'
def pack4(p, i):
    T = F.T
    return [f'v_cvt_pk_bf16_f32 v{F.AR[p]+2*i}, v{T}, v{T+1}', f'v_cvt_pk_bf16_f32 v{F.AR[p]+2*i+1}, v{T+2}, v{T+3}',
            f'v_cvt_pk_bf16_f32 v{F.AI[p]+2*i}, v{T+4}, v{T+5}', f'v_cvt_pk_bf16_f32 v{F.AI[p]+2*i+1}, v{T+6}, v{T+7}']

def twiddle_valu(p, conj):
    T = F.T; out = []
    if not CFG.get('fftpk'):
        for i in range(4):
            for j in range(4):
                n = 4*i + j
                r_, i_, c, s_ = F.DR[p] + n, F.DI[p] + n, F.TC + n, F.TS + n
                out += [f'v_mul_f32 v{T+j}, v{r_}, v{c}', f'v_mul_f32 v{T+4+j}, v{i_}, v{c}']
                if conj: out += [f'v_fma_f32 v{T+j}, -v{i_}, v{s_}, v{T+j}', f'v_fmac_f32 v{T+4+j}, v{r_}, v{s_}']
                else:    out += [f'v_fmac_f32 v{T+j}, v{i_}, v{s_}', f'v_fma_f32 v{T+4+j}, -v{r_}, v{s_}, v{T+4+j}']
            out += pack4(p, i)
        return out
    for i in range(4):
        for j in range(0, 4, 2):
            n = 4*i + j
            r_, i_, c, s_ = F.DR[p] + n, F.DI[p] + n, F.TC + n, F.TS + n
            out += [f'v_pk_mul_f32 {PP(T+j)}, {PP(r_)}, {PP(c)}', f'v_pk_mul_f32 {PP(T+4+j)}, {PP(i_)}, {PP(c)}']
            if conj:
                out += [f'v_pk_fma_f32 {PP(T+j)}, {PP(i_)}, {PP(s_)}, {PP(T+j)} neg_lo:[1,0,0] neg_hi:[1,0,0]',
                        f'v_pk_fma_f32 {PP(T+4+j)}, {PP(r_)}, {PP(s_)}, {PP(T+4+j)}']
            else:
                out += [f'v_pk_fma_f32 {PP(T+j)}, {PP(i_)}, {PP(s_)}, {PP(T+j)}',
                        f'v_pk_fma_f32 {PP(T+4+j)}, {PP(r_)}, {PP(s_)}, {PP(T+4+j)} neg_lo:[1,0,0] neg_hi:[1,0,0]']
        out += pack4(p, i)
    return out

def filter_valu(p):
    T = F.T; out = []
    if not CFG.get('fftpk'):
        for i in range(4):
            for j in range(4):
                n = 4*i + j
                r_, i_, w = F.DR[p] + n, F.DI[p] + n, F.W[p] + n
                t0, t1 = T + 8 + 2*(j % 2), T + 9 + 2*(j % 2)
                out += [f'v_lshlrev_b32 v{t0}, 16, v{w}', f'v_and_b32 v{t1}, 0xffff0000, v{w}',
                        f'v_mul_f32 v{T+j}, v{r_}, v{t0}', f'v_mul_f32 v{T+4+j}, v{i_}, v{t0}',
                        f'v_fma_f32 v{T+j}, -v{i_}, v{t1}, v{T+j}', f'v_fmac_f32 v{T+4+j}, v{r_}, v{t1}']
            out += pack4(p, i)
        return out
    for i in range(4):
        for j in range(0, 4, 2):
            n = 4*i + j
            r_, i_, w = F.DR[p] + n, F.DI[p] + n, F.W[p] + n
            out += [f'v_lshlrev_b32 v{T+8}, 16, v{w}', f'v_lshlrev_b32 v{T+9}, 16, v{w+1}',
                    f'v_and_b32 v{T+10}, 0xffff0000, v{w}', f'v_and_b32 v{T+11}, 0xffff0000, v{w+1}',
                    f'v_pk_mul_f32 {PP(T+j)}, {PP(r_)}, {PP(T+8)}', f'v_pk_mul_f32 {PP(T+4+j)}, {PP(i_)}, {PP(T+8)}',
                    f'v_pk_fma_f32 {PP(T+j)}, {PP(i_)}, {PP(T+10)}, {PP(T+j)} neg_lo:[1,0,0] neg_hi:[1,0,0]',
                    f'v_pk_fma_f32 {PP(T+4+j)}, {PP(r_)}, {PP(T+10)}, {PP(T+4+j)}']
        out += pack4(p, i)
    return out

def merge(a, valu, mfmas):
    n = len(valu)
    span = max(n - 14, 8)
    pos = [2 + (k * (span - 2)) // len(mfmas) for k in range(len(mfmas))]
    k = 0
    for i, v in enumerate(valu):
        while k < len(mfmas) and pos[k] <= i:
            a(mfmas[k]); k += 1
        a(v)
    while k < len(mfmas): a(mfmas[k]); k += 1
    tail = n - pos[-1]
    if tail < 12:
        need = 12 - tail
        while need > 0:
            a(f's_nop {min(need, 8) - 1}'); need -= min(need, 8)

AB_BETA = 224
def special_loads(a, SAL):
    T, L = F.T, F.L
    a(f'v_lshlrev_b32 v{T+10}, 4, v{L}')
    for p in range(2):
        for i in range(4):
            a.lines.append(f'global_load_dwordx4 v[{F.W[p]+4*i}:{F.W[p]+4*i+3}], v{T+10}, s[{SAL}:{SAL+1}] offset:{i*1024} sc1')
        a(f'v_add_u32 v{T+10}, 4096, v{T+10}')
    for p in range(2):
        for i in range(4):
            r = AB_BETA + 16*p + 4*i
            a.lines.append(f'global_load_dwordx4 a[{r}:{r+3}], v{T+10}, s[{SAL}:{SAL+1}] offset:{i*1024} sc1')
        a(f'v_add_u32 v{T+10}, 4096, v{T+10}')

def filter_special(a, p):
    T = F.T; L = F.L
    DR, DI, W, MR = F.DR[p], F.DI[p], F.W[p], F.BE
    a(f'v_and_b32 v{T+14}, 31, v{L}'); a(f'v_lshrrev_b32 v{T+15}, 5, v{L}')
    a(f'v_lshl_add_u32 v{T+14}, v{T+15}, 7, v{T+14}')
    a(f'v_lshlrev_b32 v{T+15}, 3, v{T+14}'); a(f'v_add_u32 v{T+15}, {LDS_X}, v{T+15}')
    for i in range(4):
        for j in range(4):
            a(f'ds_write2_b32 v{T+15}, v{DR+4*i+j}, v{DI+4*i+j} offset0:{64*j} offset1:{64*j+1}')
        if i < 3: a(f'v_add_u32 v{T+15}, 2048, v{T+15}')
    top = 1024 if p == 0 else 1023
    if p == 0:
        a('s_mov_b64 exec, 1')
        a(f'v_mov_b32 v{T+15}, {LDS_X + 1024*8}')
        a(f'ds_write2_b32 v{T+15}, v{DR}, v{DI} offset0:0 offset1:1')
        a('s_mov_b64 exec, -1')
    a(f'v_sub_u32 v{T+15}, {top - 96 - 768}, v{T+14}')
    a(f'v_lshlrev_b32 v{T+15}, 3, v{T+15}'); a(f'v_add_u32 v{T+15}, {LDS_X}, v{T+15}')
    def reads(i):
        for j in range(4):
            r = MR + 8*(i % 2) + 2*j
            a(f'ds_read_b64 v[{r}:{r+1}], v{T+15} offset:{(3-i)*2048 + (3-j)*256}')
    def compute(i):
        for j in range(4):
            n = 4*i + j
            r_, i_, w, mr, mi = DR + n, DI + n, W + n, MR + 8*(i % 2) + 2*j, MR + 8*(i % 2) + 2*j + 1
            a(f'v_accvgpr_read_b32 v{T+10}, a{AB_BETA + 16*p + n}')
            a(f'v_lshlrev_b32 v{T+8}, 16, v{w}'); a(f'v_and_b32 v{T+9}, 0xffff0000, v{w}')
            a(f'v_mul_f32 v{T+j}, v{r_}, v{T+8}'); a(f'v_mul_f32 v{T+4+j}, v{i_}, v{T+8}')
            a(f'v_fma_f32 v{T+j}, -v{i_}, v{T+9}, v{T+j}'); a(f'v_fmac_f32 v{T+4+j}, v{r_}, v{T+9}')
            a(f'v_lshlrev_b32 v{T+8}, 16, v{T+10}'); a(f'v_and_b32 v{T+9}, 0xffff0000, v{T+10}')
            a(f'v_fmac_f32 v{T+j}, v{mr}, v{T+8}'); a(f'v_fmac_f32 v{T+4+j}, v{mr}, v{T+9}')
            a(f'v_fmac_f32 v{T+j}, v{mi}, v{T+9}'); a(f'v_fma_f32 v{T+4+j}, -v{mi}, v{T+8}, v{T+4+j}')
        for l in pack4(p, i): a(l)
    reads(0); reads(1)
    a('s_waitcnt lgkmcnt(4)'); compute(0); reads(2)
    a('s_waitcnt lgkmcnt(4)'); compute(1); reads(3)
    a('s_waitcnt lgkmcnt(4)'); compute(2)
    a('s_waitcnt lgkmcnt(0)'); compute(3)
    a('s_nop 1')

def fft_consts(a):
    T = F.T
    lane_floats(a, T, T + 1, T + 2)
    gen_f32(a, T, T + 1, F.C, F.S, F.NS, T + 2)
    gen_twiddle(a, T, T + 1, F.TC, F.TS, [8*i + j for i in range(4) for j in range(4)], 1024, T + 2)
    for i in range(32): a(f'v_mul_f32 v{F.TC+i}, {ff(2.0 ** -9.5)}, v{F.TC+i}')
    gen_t2048(a, T, T + 1, F.UC, F.US, T + 2)

def fft_role(a):
    L, T, t = F.L, F.T, S.T
    SZ, SW, SY = S.A, S.B, S.C
    KAP, PASS, SAL = t + 8, t + 9, t + 10
    a('s_waitcnt vmcnt(0)')
    srd(a, SZ, S.WS, WS_ZB, 2 * 32 * 256 * 128)
    srd(a, SW, S.WS, WS_WP, 32 * 512 * 128)
    srd(a, SY, S.WS, WS_YT, 512 * 4096)
    a(f'v_lshrrev_b32 v{T}, 3, v{L}'); a(f'v_and_b32 v{T+1}, 7, v{L}')
    a(f'v_xor_b32 v{T+2}, v{T+1}, v{T}')
    a(f'v_lshrrev_b32 v{T+3}, 1, v{T}'); a(f'v_xor_b32 v{T+3}, v{T+1}, v{T+3}')
    a(f'v_lshlrev_b32 v{T}, 7, v{T}')
    a(f's_lshr_b32 s{t}, s{S.WAVE}, 1'); a(f's_lshl_b32 s{t}, s{t}, 5'); a(f's_add_u32 s{t}, s{t}, s{S.GRP}'); a(f's_lshl_b32 s{t}, s{t}, 15')
    a(f's_and_b32 s{t+1}, s{S.WAVE}, 1'); a(f's_lshl_b32 s{t+1}, s{t+1}, 14'); a(f's_add_u32 s{t}, s{t}, s{t+1}')
    a(f's_lshl_b32 s{t+2}, s{S.WAVE}, 14')
    SV = 240
    a(f'v_mov_b32 v{SV}, v{T}'); a(f'v_mov_b32 v{SV+2}, v{T+2}'); a(f'v_mov_b32 v{SV+3}, v{T+3}')
    def zcopy(n):
        a(f'v_xor_b32 v{SV+4}, {n & 7}, v{SV+2}'); a(f'v_lshl_add_u32 v{SV+4}, v{SV+4}, 4, v{SV}')
        a(f's_add_u32 m0, s{t+2}, {LDS_Z + n*1024}'); a(f's_add_u32 s{t+3}, s{t}, {n*1024}')
        a(f'buffer_load_dwordx4 v{SV+4}, s[{SZ}:{SZ+3}], s{t+3} offen {CFG["dmod"]} lds')
    def wcopy(n):
        a(f'v_xor_b32 v{SV+4}, {4*(n&1)}, v{SV+3}'); a(f'v_lshl_add_u32 v{SV+4}, v{SV+4}, 4, v{SV}')
        a(f's_add_u32 m0, s{t+2}, {LDS_W + n*1024}'); a(f's_add_u32 s{t+3}, s{t+4}, {n*1024}')
        a(f'buffer_load_dwordx4 v{SV+4}, s[{SW}:{SW+3}], s{t+3} offen {CFG["dmod"]} lds')
    a(f's_lshl_b32 s{t+4}, s{S.GRP}, 16'); a(f's_add_u32 s{t+4}, s{t+4}, s{t+2}')
    z0 = CFG['z0']
    for n in range(z0): zcopy(n)
    fft_consts(a)
    for n in range(z0, 16): zcopy(n)
    hz = a.mark()
    for n in range(16): wcopy(n)
    a(f'v_lshrrev_b32 v{T}, 5, v{L}'); a(f'v_bfe_u32 v{T+1}, v{L}, 2, 2'); a(f'v_lshl_add_u32 v{T}, v{T}, 2, v{T+1}')
    a(f'v_bfe_u32 v{T+1}, v{L}, 4, 1'); a(f'v_and_b32 v{T+2}, 3, v{L}'); a(f'v_lshl_add_u32 v{T+1}, v{T+1}, 2, v{T+2}')
    a(f'v_xor_b32 v{T+2}, v{T}, v{T+1}'); a(f'v_xor_b32 v{T+2}, s{S.WAVE}, v{T+2}'); a(f'v_lshlrev_b32 v{T+2}, 4, v{T+2}')
    a(f'v_lshl_add_u32 v{T}, v{T}, 3, v{T+1}'); a(f'v_lshl_add_u32 v{F.RZ0}, v{T}, 7, v{T+2}')
    a(f'v_bfe_u32 v{T}, v{L}, 1, 3'); a(f'v_xor_b32 v{T}, s{S.WAVE}, v{T}'); a(f'v_lshlrev_b32 v{T}, 4, v{T}')
    a(f'v_lshl_add_u32 v{F.RW}, v{L}, 7, v{T}'); a(f'v_add_u32 v{F.RW}, {LDS_W}, v{F.RW}')
    a(f's_lshl_b32 s{KAP}, s{S.GRP}, 3'); a(f's_add_u32 s{KAP}, s{KAP}, s{S.WAVE}')
    a(f's_lshl_b32 s{t}, s{KAP}, 13')
    a(f'v_and_b32 v{T}, 15, v{L}'); a(f'v_lshlrev_b32 v{T}, 6, v{T}')
    a(f'v_bfe_u32 v{T+1}, v{L}, 4, 1'); a(f'v_lshl_add_u32 v{T}, v{T+1}, 5, v{T}')
    a(f'v_lshrrev_b32 v{T+1}, 5, v{L}'); a(f'v_lshl_add_u32 v{T}, v{T+1}, 4, v{T}')
    a(f'v_add_u32 v{F.VY}, s{t}, v{T}')
    a(f's_add_u32 s{SAL}, s{S.WS}, {WS_AL}'); a(f's_addc_u32 s{SAL+1}, s{S.WS+1}, 0')
    a(f's_mov_b32 s{PASS}, 0')
    nsp = a.label('nsp')
    a(f's_cmp_lg_u32 s{KAP}, 0'); a(f's_cbranch_scc1 {nsp}')
    special_loads(a, SAL)
    a(f'{nsp}:')
    a.wait_vm(hz)
    a('s_barrier')
    stamp(a, 7, T)
    col = a.label('fftcol')
    a(f'{col}:')
    stamp(a, 12, T)
    for p in range(2):
        for c in range(2):
            for b in range(2):
                for q in range(2):
                    r = (F.AI[p] if c else F.AR[p]) + 4*b + 2*q
                    a(f'ds_read_b64_tr_b16 v[{r}:{r+1}], v{F.RZ0} offset:{p*32768 + (16*b+8*q)*8*128 + 8*c}')
        if p == 0: pass
    a('s_waitcnt lgkmcnt(8)')
    for m in stage_mfmas(0, 'A', False): a(m)
    a('s_waitcnt lgkmcnt(0)')
    a('s_nop 7'); a('s_nop 3')
    merge(a, twiddle_valu(0, False), stage_mfmas(1, 'A', False))
    wok = a.label('wok')
    a(f's_cmp_lg_u32 s{PASS}, 0'); a(f's_cbranch_scc1 {wok}')
    a('s_waitcnt vmcnt(0)'); a('s_barrier')
    a(f'{wok}:')
    now = a.label('now')
    a(f's_cmp_eq_u32 s{KAP}, 0'); a(f's_cbranch_scc1 {now}')
    for p in range(2):
        for i in range(4):
            a(f'ds_read_b128 v[{F.W[p]+4*i}:{F.W[p]+4*i+3}], v{F.RW} offset:{p*32768 + i*8192}')
    a(f'{now}:')
    merge(a, twiddle_valu(1, False), stage_mfmas(0, 'B', False))
    a('s_waitcnt lgkmcnt(0)')
    sp, jn = a.label('spec'), a.label('join')
    a(f's_cmp_eq_u32 s{KAP}, 0'); a(f's_cbranch_scc1 {sp}')
    merge(a, filter_valu(0), stage_mfmas(1, 'B', False))
    merge(a, filter_valu(1), stage_mfmas(0, 'A', True))
    a(f's_branch {jn}')
    a(f'{sp}:')
    for m in stage_mfmas(1, 'B', False): a(m)
    filter_special(a, 0)
    for m in stage_mfmas(0, 'A', True): a(m)
    filter_special(a, 1)
    a('s_nop 7'); a('s_nop 3')
    a(f'{jn}:')
    merge(a, twiddle_valu(0, True), stage_mfmas(1, 'A', True))
    merge(a, twiddle_valu(1, True), stage_mfmas(0, 'A', True))
    a('s_nop 1')
    for m in stage_mfmas(1, 'A', True): a(m)
    a('s_nop 7'); a('s_nop 3')
    ER, EI, DR, DI = F.DR[0], F.DI[0], F.DR[1], F.DI[1]
    for n in range(0, 16, 2):
        r_, i_, c, s_ = DR + n, DI + n, F.UC + n, F.US + n
        a(f'v_pk_mul_f32 {PP(T)}, {PP(r_)}, {PP(c)}'); a(f'v_pk_mul_f32 {PP(T+2)}, {PP(i_)}, {PP(c)}')
        a(f'v_pk_fma_f32 {PP(T)}, {PP(i_)}, {PP(s_)}, {PP(T)} neg_lo:[1,0,0] neg_hi:[1,0,0]')
        a(f'v_pk_fma_f32 {PP(T+2)}, {PP(r_)}, {PP(s_)}, {PP(T+2)}')
        a(f'v_pk_add_f32 {PP(r_)}, {PP(ER+n)}, {PP(T)} neg_lo:[0,1] neg_hi:[0,1]')
        a(f'v_pk_add_f32 {PP(i_)}, {PP(EI+n)}, {PP(T+2)} neg_lo:[0,1] neg_hi:[0,1]')
        a(f'v_pk_add_f32 {PP(ER+n)}, {PP(ER+n)}, {PP(T)}'); a(f'v_pk_add_f32 {PP(EI+n)}, {PP(EI+n)}, {PP(T+2)}')
    outs = [(ER, 0, 0), (DR, 0, 2048), (EI, 1, 0), (DI, 1, 2048)]
    a(f's_movk_i32 s{t}, 0x1000')
    for n_, (src, c, hi) in enumerate(outs):
        a('s_nop 1')
        for pp in range(2):
            for j in range(4): a(f'v_permlane32_swap_b32 v{src+8*pp+j}, v{src+8*pp+4+j}')
        o = (F.AR[0], F.AI[0], F.AR[1], F.AI[1])[n_]
        for pp in range(2):
            for jj in range(4): a(f'v_cvt_pk_bf16_f32 v{o+4*pp+jj}, v{src+8*pp+2*jj}, v{src+8*pp+2*jj+1}')
        a('s_nop 1')
        for k in range(4): a(f'v_permlane16_swap_b32 v{o+k}, v{o+4+k}')
        so = f's{t}' if c else '0'
        a.lines.append(f'buffer_store_dwordx4 v[{o}:{o+3}], v{F.VY}, s[{SY}:{SY+3}], {so} offen offset:{hi} sc1')
        a.lines.append(f'buffer_store_dwordx4 v[{o+4}:{o+7}], v{F.VY}, s[{SY}:{SY+3}], {so} offen offset:{hi + 1024} sc1')
    a(f'v_xor_b32 v{F.RZ0}, 64, v{F.RZ0}'); a(f'v_xor_b32 v{F.RW}, 64, v{F.RW}')
    a(f'v_add_u32 v{F.VY}, {4*8192}, v{F.VY}'); a(f's_add_u32 s{KAP}, s{KAP}, 4')
    a(f's_add_u32 s{PASS}, s{PASS}, 1'); a(f's_cmp_lt_u32 s{PASS}, 2'); a(f's_cbranch_scc1 {col}')
    stamp(a, 13, T)
    a('s_waitcnt vmcnt(0)')
    a('s_barrier')
    publish(a, [f's_lshl_b32 s{t}, s{S.GRP}, 7', f's_add_u32 s{t}, s{t}, {WS_F3}'], t, T)
    stamp(a, 8, T)
    gemm2_setup(a, True)
    for g in finv_groups(a, 0, CFG['fsplit']):
        for l in g: a(l)

V_XO, V_X, V_B2, VF, VFA, V_NY, V_NYA = 50, 168, 176, 62, 63, 61, 49
def resid_address(a):
    L, T, t = V.LANE, V.T, S.T
    a(f's_lshr_b32 s{t}, s{S.WAVE}, 1'); a(f's_lshl_b32 s{t}, s{t}, 5'); a(f's_lshl_b32 s{t+1}, s{S.ST}, 6'); a(f's_add_u32 s{t}, s{t}, s{t+1}')
    a(f'v_and_b32 v{T}, 31, v{L}'); a(f'v_add_u32 v{T}, s{t}, v{T}')
    a(f's_and_b32 s{t}, s{S.WAVE}, 1'); a(f's_lshl_b32 s{t}, s{t}, 6'); a(f's_lshl_b32 s{t+1}, s{S.DT}, 7'); a(f's_add_u32 s{t}, s{t}, s{t+1}')
    a(f'v_lshrrev_b32 v{T+1}, 5, v{L}'); a(f'v_lshlrev_b32 v{T+1}, 4, v{T+1}')
    a(f'v_lshl_add_u32 v{V_XO}, v{T}, 10, v{T+1}'); a(f'v_add_u32 v{V_XO}, s{t}, v{V_XO}')
def resid_loads(a):
    T = V.T
    a(f'v_lshrrev_b32 v{T+1}, 9, v{V_XO}'); a(f'v_and_b32 v{T+1}, 0xfffffffe, v{T+1}')
    a(f'global_load_ushort v{V_B2}, v{T+1}, s[{S.B2}:{S.B2+1}]')
    a(f'global_load_dwordx4 v[{V_X}:{V_X+3}], v{V_XO}, s[{S.X}:{S.X+1}]')
    a(f'global_load_dwordx4 v[{V_X+4}:{V_X+7}], v{V_XO}, s[{S.X}:{S.X+1}] offset:32')

def gemm2_setup(a, loads):
    L, T, t = V.LANE, V.T, S.T
    a(f'v_and_b32 v{L}, 63, v0')
    read_addresses(a)
    srd(a, S.A, S.WS, WS_GT, 1792 * 1024)
    a(f's_lshl_b32 s{t+1}, s{S.DT}, 7')
    dma_offsets(a, V.P0, V.P1, 1024, t + 1)
    a(f's_mul_i32 s{S.SOA}, s{S.WAVE}, {16*1024}')
    a(f's_lshl_b32 s{t}, s{S.ROT3}, 16'); a(f's_add_u32 s{S.SOA}, s{S.SOA}, s{t}')
    srd(a, S.C, S.WS, WS_YT, 512 * 4096)
    a(f's_lshl_b32 s{t+1}, s{S.ST}, 7')
    dma_offsets(a, V.Q0, V.Q1, 4096, t + 1)
    a(f's_mul_i32 s{S.SOA2}, s{S.WAVE}, {16*4096}')
    a(f's_lshl_b32 s{t}, s{S.ROT4}, 18'); a(f's_add_u32 s{S.SOA2}, s{S.SOA2}, s{t}')
    resid_address(a)
    if loads: resid_loads(a)
    a(f'v_lshrrev_b32 v{V_NYA}, 9, v{V_XO}'); a(f'v_and_b32 v{V_NYA}, 0xfffffffe, v{V_NYA}'); a(f'v_add_u32 v{V_NYA}, {WS_YT + 4096}, v{V_NYA}')
    a(f'v_min_u32 v{VFA}, 31, v{L}'); a(f'v_lshlrev_b32 v{VFA}, 7, v{VFA}'); a(f'v_add_u32 v{VFA}, {WS_F3}, v{VFA}')

def wave_poll(a, vaddr, vval):
    t = S.T
    ok, lp = a.label('wp_ok'), a.label('wp')
    a(f's_mov_b32 s{t+1}, 0')
    a(f'{lp}:')
    a.lines.append(f'global_load_dword v{vval}, v{vaddr}, s[{S.WS}:{S.WS+1}] sc1')
    a('s_waitcnt vmcnt(0)')
    a(f'v_cmp_eq_u32 vcc, s{S.NONCE}, v{vval}')
    a('s_nop 4')
    a('s_cmp_eq_u64 vcc, -1'); a(f's_cbranch_scc1 {ok}')
    a(f's_add_u32 s{t+1}, s{t+1}, 1'); a(f's_cmp_lt_u32 s{t+1}, {CFG["spin"]}'); a(f's_cbranch_scc1 {lp}')
    a(f'{ok}:')

def gemm2(a):
    L, T, t = V.LANE, V.T, S.T
    ysteps = [dict(items=[(1, V.Q0, V.Q1, S.C, S.SOA2, 4096, CFG['dmod'], (8*262144, 8*262144))], q=None, p=FINV + 8*u) for u in range(8)]
    gsteps = [dict(items=[(0, V.P0, V.P1, S.A, S.SOA, 1024, CFG['dmod'], (28*65536, 28*65536))], q=u) for u in range(28)]
    def f2_address():
        a(f'v_min_u32 v128, 27, v{L}'); a(f'v_lshlrev_b32 v128, 7, v128'); a(f's_lshl_b32 s{t}, s{S.DT}, 12'); a(f's_add_u32 s{t}, s{t}, {WS_F2}')
        a(f'v_add_u32 v128, s{t}, v128')
    ny = lambda a_: a(f'global_load_ushort v{V_NY}, v{V_NYA}, s[{S.WS}:{S.WS+1}] sc1')
    if CFG['a3first']:
        f2_address()
        wave_poll(a, VFA, VF)
        stamp(a, 15, T)
        stream_loop(a, ysteps, CFG['depth3'], bg_extra=[ny] + finv_groups(a, CFG['fsplit'], 8))
        wave_poll(a, 128, 129)
        stamp(a, 9, T)
        stream_loop(a, gsteps, CFG['depth3'], cont=True, marks={0: 1, 4: 2, 8: 3, 16: 4} if CFG.get('mark') == 3 else None)
    else:
        f2_address()
        wave_poll(a, 128, 129)
        stamp(a, 9, T)
        hf = {}
        def sample(a):
            a(f'global_load_dword v{VF}, v{VFA}, s[{S.WS}:{S.WS+1}] sc1'); hf['h'] = a.mark()
        def check(a):
            ok, lp = a.label('y_ok'), a.label('y_poll')
            a.wait_vm(hf['h'])
            a(f's_mov_b32 s{t+1}, 0')
            a(f'{lp}:')
            a(f'v_cmp_eq_u32 vcc, s{S.NONCE}, v{VF}')
            a('s_nop 4')
            a('s_cmp_eq_u64 vcc, -1'); a(f's_cbranch_scc1 {ok}')
            a.lines.append(f'global_load_dword v{VF}, v{VFA}, s[{S.WS}:{S.WS+1}] sc1')
            a('s_waitcnt vmcnt(0)')
            a(f's_add_u32 s{t+1}, s{t+1}, 1'); a(f's_cmp_lt_u32 s{t+1}, {CFG["spin"]}'); a(f's_cbranch_scc1 {lp}')
            a(f'{ok}:')
            ny(a)
        steps = gsteps + ysteps
        steps[CFG['samp3']]['before_issue'] = sample
        steps[28]['before_issue'] = check
        stream_loop(a, steps, CFG['depth3'], bg_extra=finv_groups(a, CFG['fsplit'], 8), marks={0: 1, 4: 2, 8: 3, 16: 4, 28: 5} if CFG.get('mark') == 3 else None)
    stamp(a, 10, T)
    reduce_partials(a)
    VD = V.VD
    a(f'v_lshlrev_b32 v{V_B2}, 16, v{V_B2}'); a(f'v_lshlrev_b32 v{V_NY}, 16, v{V_NY}')
    a(f'v_fma_f32 v{T}, v{V_NY}, 0.5, v{V_B2}'); a(f'v_fma_f32 v{T+1}, v{V_NY}, -0.5, v{V_B2}')
    for i in range(0, 16, 2): a(f'v_pk_add_f32 v[{VD+i}:{VD+i+1}], v[{VD+i}:{VD+i+1}], v[{T}:{T+1}]')
    a('s_nop 1')
    for p in range(2):
        for j in range(4): a(f'v_permlane32_swap_b32 v{VD+8*p+j}, v{VD+8*p+4+j}')
    for p in range(2):
        for jj in range(4):
            xr = V_X + 4*p + jj
            d0 = VD + 8*p + 2*jj; d1 = d0 + 1
            a(f'v_lshlrev_b32 v{T}, 16, v{xr}'); a(f'v_and_b32 v{T+1}, 0xffff0000, v{xr}')
            a(f'v_add_f32 v{d0}, v{d0}, v{T}'); a(f'v_add_f32 v{d1}, v{d1}, v{T+1}')
            a(f'v_cvt_pk_bf16_f32 v{xr}, v{d0}, v{d1}')
    a(f'global_store_dwordx4 v{V_XO}, v[{V_X}:{V_X+3}], s[{S.OUT}:{S.OUT+1}]')
    a(f'global_store_dwordx4 v{V_XO}, v[{V_X+4}:{V_X+7}], s[{S.OUT}:{S.OUT+1}] offset:32')
    if CFG['stamps']:
        a('s_waitcnt vmcnt(0)')
        stamp(a, 11, T)

KLABEL = [None, None]
def mega(a, name):
    kernel_begin(a, name)
    end, fft, p3 = a.label('end'), a.label('fft'), a.label('p3')
    KLABEL[0], KLABEL[1] = name, end
    L, T, t = V.LANE, V.T, S.T
    a('s_cmp_ge_u32 s2, 256'); a(f's_cbranch_scc1 {end}')
    a('s_load_dwordx16 s[4:19], s[0:1], 0')
    a('s_load_dwordx4 s[20:23], s[0:1], 64')
    a('s_load_dwordx2 s[24:25], s[0:1], 80')
    if CFG.get('cpf'):
        sk = a.label('cpf'); pc = a.label('cpc')
        a(f's_getpc_b64 s[68:69]'); a(f'{pc}:')
        a(f's_sub_u32 s68, s68, {pc}-{name}'); a(f's_subb_u32 s69, s69, 0')
        a('s_lshr_b32 s62, s2, 3'); a('s_mul_i32 s62, s62, 12')
        a('v_add_u32 v2, s62, v0'); a('v_lshlrev_b32 v2, 7, v2')
        a(f'v_min_u32 v2, {end}-{name}-4, v2')
        a('v_cmp_gt_u32 vcc, 12, v0')
        a('s_and_saveexec_b64 s[62:63], vcc')
        a(f's_cbranch_execz {sk}')
        a.lines.append('global_load_dword v11, v2, s[68:69]')
        a(f'{sk}:')
        a('s_mov_b64 exec, s[62:63]')
    a('v_lshrrev_b32 v1, 6, v0')
    a(f's_and_b32 s{S.XCD}, s2, 7'); a(f's_lshr_b32 s{S.J}, s2, 3')
    a(f'v_readfirstlane_b32 s{S.WAVE}, v1')
    a(f'v_and_b32 v{L}, 63, v0')
    a(f'v_mov_b32 v{V.P0}, 0'); a(f'v_mov_b32 v{V.P1}, 0'); a('v_mov_b32 v50, 0')
    a(f's_and_b32 s{t}, s{S.XCD}, 1'); a(f's_lshl_b32 s{t}, s{t}, 2'); a(f's_and_b32 s{t+1}, s{S.J}, 3'); a(f's_add_u32 s{S.DT}, s{t}, s{t+1}')
    a(f's_lshr_b32 s{t}, s{S.XCD}, 1'); a(f's_lshr_b32 s{t+2}, s{S.J}, 2')
    a(f's_lshl_b32 s{t+3}, s{t}, 3'); a(f's_add_u32 s{S.ST}, s{t+3}, s{t+2}')
    a(f's_mul_i32 s{t+3}, s{t}, 7'); a(f's_add_u32 s{S.FT}, s{t+3}, s{t+2}')
    a(f's_lshl_b32 s{t+3}, s{S.XCD}, 2'); a(f's_add_u32 s{S.GRP}, s{t+3}, s{t+1}')
    a(f's_mul_i32 s{S.RING}, s{S.WAVE}, {RINGB}')
    if CFG['rot']:
        a(f's_lshl_b32 s{t+4}, s{t+1}, 3'); a(f's_mul_i32 s{t+5}, s{t+2}, 5'); a(f's_add_u32 s{t+4}, s{t+4}, s{t+5}'); a(f's_and_b32 s{S.ROT1}, s{t+4}, 31')
        a(f's_mul_i32 s{t+4}, s{t+1}, 7'); a(f's_mul_i32 s{t+5}, s{t+2}, 7'); a(f's_lshr_b32 s{t+5}, s{t+5}, 1'); a(f's_add_u32 s{t+4}, s{t+4}, s{t+5}')
        a(f's_cmp_ge_u32 s{t+4}, 28'); a(f's_cselect_b32 s{t+5}, 28, 0'); a(f's_sub_u32 s{S.ROT3}, s{t+4}, s{t+5}')
        a(f's_lshl_b32 s{t+4}, s{t+1}, 1'); a(f's_add_u32 s{t+4}, s{t+4}, s{t+2}'); a(f's_and_b32 s{S.ROT4}, s{t+4}, 7')
    else:
        for r in (S.ROT1, S.ROT3, S.ROT4): a(f's_mov_b32 s{r}, 0')
    a('s_waitcnt lgkmcnt(0)')
    stamp(a, 0, T)
    if CFG.get('clk'):
        a('s_memtime s[80:81]'); a('s_memrealtime s[82:83]'); a('s_waitcnt lgkmcnt(0)')
    if CFG.get('echo'):
        a('s_memrealtime s[82:83]'); a('s_waitcnt lgkmcnt(0)')
    nn = a.label('nn')
    a(f's_or_b32 s{t}, s2, s{S.WAVE}'); a(f's_cmp_lg_u32 s{t}, 0'); a(f's_cbranch_scc1 {nn}')
    a(f's_memrealtime s[{t}:{t+1}]'); a('s_waitcnt lgkmcnt(0)'); a(f's_or_b32 s{t}, s{t}, 1')
    a(f'v_mov_b32 v{T}, s{t}'); a(f'v_mov_b32 v{T+1}, 0')
    a('s_mov_b64 exec, 1')
    a.lines.append(f'global_store_dword v{T+1}, v{T}, s[{S.DBG}:{S.DBG+1}] sc1')
    a('s_mov_b64 exec, -1')
    a(f'{nn}:')
    STR64 = t + 14
    read_addresses(a)
    a(f's_cmp_ge_u32 s{S.J}, 28')
    a(f's_cselect_b32 s{S.B}, s{S.W2}, s{S.W1}'); a(f's_cselect_b32 s{S.B+1}, s{S.W2+1}, s{S.W1+1}')
    a(f's_mov_b32 s{S.B+2}, {2048*3584}'); a(f's_mov_b32 s{S.B+3}, 0x20000')
    a(f's_cselect_b32 s{t+1}, s{S.ST}, s{S.FT}'); a(f's_movk_i32 s{t+2}, 3584'); a(f's_cselect_b32 s{t+2}, 4096, s{t+2}')
    a(f's_lshl_b32 s{t+1}, s{t+1}, 7'); a(f's_mov_b32 s{PF_COL}, s{t+1}')
    a(f's_lshl_b32 s{STR64}, s{t+2}, 6')
    a(f'v_lshrrev_b32 v{T}, 3, v{L}'); a(f'v_and_b32 v{T+1}, 7, v{L}'); a(f'v_lshlrev_b32 v{T+2}, 1, v{T}'); a(f'v_and_b32 v{T+2}, 4, v{T+2}')
    a(f'v_xor_b32 v{T+1}, v{T+1}, v{T+2}'); a(f'v_lshlrev_b32 v{T+1}, 4, v{T+1}')
    a(f'v_mad_u32_u24 v{V.Q0}, v{T}, s{t+2}, v{T+1}'); a(f'v_add_u32 v{V.Q0}, s{t+1}, v{V.Q0}')
    a(f's_lshl_b32 s{t+3}, s{t+2}, 3'); a(f's_sub_u32 s{t+3}, s{t+3}, 1024'); a(f'v_add_u32 v{V.Q1}, s{t+3}, v{V.Q0}')
    a(f's_mul_i32 s{S.SOB}, s{S.WAVE}, s{t+2}'); a(f's_lshl_b32 s{S.SOB}, s{S.SOB}, 4')
    a(f's_cmp_ge_u32 s{S.J}, 28'); a(f's_cselect_b32 s{t+4}, s{S.ROT3}, s{S.ROT1}')
    a(f's_mul_i32 s{t+4}, s{t+4}, s{STR64}'); a(f's_add_u32 s{S.SOB}, s{S.SOB}, s{t+4}')
    pre = Preload(32, PRE_SRD, f's{STR64}', CFG['wmod'], range(NRING), wrap=(7340032, 7340032))
    for j in range(4): a(f's_mov_b32 s{PRE_SRD+j}, s{S.B+j}')
    phase1(a, pre)
    pre.drain(a)
    nc, nd = a.label('noc'), a.label('nod')
    a(f's_cmp_ge_u32 s{S.J}, 28'); a(f's_cbranch_scc1 {nc}')
    gemm1_setup(a)
    a(f's_branch {nd}')
    a(f'{nc}:')
    a(f'{nd}:')
    stamp(a, 5, 244)
    poll(a, [([f's_mov_b32 s{t}, {WS_F1}'], 256)], 128)
    stamp(a, 6, 244)
    a(f's_cmp_ge_u32 s{S.J}, 28'); a(f's_cbranch_scc1 {fft}')
    gemm1(a)
    a(f's_branch {p3}')
    a(f'{fft}:')
    fft_role(a)
    a(f'{p3}:')
    gemm2(a)
    if CFG.get('echo'):
        lp = a.label('echo')
        if CFG['echo'] == 11:
            a('s_waitcnt vmcnt(0)'); a('s_memrealtime s[84:85]'); a('s_waitcnt lgkmcnt(0)'); a('s_sub_u32 s84, s84, s82')
        a('s_lshl_b32 s84, s84, 2')
        a('s_memrealtime s[88:89]'); a('s_waitcnt lgkmcnt(0)')
        a(f'{lp}:')
        a('s_memrealtime s[90:91]'); a('s_waitcnt lgkmcnt(0)'); a('s_sub_u32 s90, s90, s88')
        a('s_cmp_lt_u32 s90, s84'); a(f's_cbranch_scc1 {lp}')
    if CFG.get('delay'):
        lp = a.label('dly')
        a('s_memtime s[88:89]'); a('s_waitcnt lgkmcnt(0)')
        a(f'{lp}:')
        a('s_memtime s[90:91]'); a('s_waitcnt lgkmcnt(0)'); a('s_sub_u32 s90, s90, s88')
        a(f's_cmp_lt_u32 s90, {CFG["delay"]}'); a(f's_cbranch_scc1 {lp}')
    if CFG.get('clk'):
        sk = a.label('clk')
        a('s_waitcnt vmcnt(0)')
        a('s_memtime s[84:85]'); a('s_memrealtime s[86:87]'); a('s_waitcnt lgkmcnt(0)')
        a('s_sub_u32 s84, s84, s80'); a('s_sub_u32 s86, s86, s82')
        a(f's_and_b32 s{t}, s2, 63'); a(f's_or_b32 s{t}, s{t}, s{S.WAVE}'); a(f's_cmp_lg_u32 s{t}, 0'); a(f's_cbranch_scc1 {sk}')
        a('s_mov_b64 exec, 1')
        a('v_mov_b32 v2, s84'); a('v_mov_b32 v3, s86'); a('s_lshr_b32 s84, s2, 6'); a('s_lshl_b32 s84, s84, 3'); a('s_add_u32 s84, s84, 8'); a('v_mov_b32 v4, s84')
        a(f'global_store_dwordx2 v4, v[2:3], s[{S.DBG}:{S.DBG+1}]')
        a(f'{sk}:')
    a(f'{end}:')
    a('s_endpgm')

PRE_SRD = 76
PF_COL = 92

def tables(a):
    tb.emit(a, 'tab_k1', tb.f32mat('c') + tb.f32mat('ns') + tb.t512() + tb.a2())
    tb.emit(a, 'tab_fft', tb.f32mat('c') + tb.f32mat('s') + tb.f32mat('ns') + tb.t1024() + tb.t2048())

KNAME = 'parallel_sum__spectral_gfnet__mixer_token_mlp__prompt_kernel'
def make(path, **cfg):
    CFG.update(dict(z0=10, a3first=0, k0=5, fsplit=4, wpoll=0, finv_every=8, early2=0, post2=5, tail2=0, mid2=6, split3=1, samp3=18, rot=1, dmod='', mid=8, pf1=1, stamps=0, early=0, inmod='nt', wmod='nt', wmod2='', spin=1 << 18, pf2=1, depth1=12, depth3=12))
    CFG.update(cfg)
    a = Em()
    lst = CFG.get('aslist', 0)
    if lst:
        launches = [('empty_kernel', (256, 1, 1), (64, 1, 1), 0)] * (lst - 1) + [('mega_kernel', (256, 1, 1), (256, 1, 1), LDS_TOTAL)]
        a(HEADER + launch_lines(launches) + '.amdgcn_target "amdgcn-amd-amdhsa--gfx950"\n.text')
        mega(a, 'mega_kernel')
        if lst > 1:
            kernel_begin(a, 'empty_kernel'); a('s_endpgm')
        a('.section .rodata,"a"\n.p2align 6')
        a(descriptor('mega_kernel', 256, 256))
        if lst > 1: a(descriptor('empty_kernel', 8))
        open(path, 'w').write(a.text())
        build(path, launches)
        return
    a(HEADER + f'; @launch grid=(256,1,1) block=(256,1,1) lds={LDS_TOTAL}\n' + '.amdgcn_target "amdgcn-amd-amdhsa--gfx950"\n.text')
    mega(a, KNAME)
    a('.section .rodata,"a"\n.p2align 6')
    a(descriptor(KNAME, 256, 256))
    open(path, 'w').write(a.text())
    build(path, [(KNAME, (256, 1, 1), (256, 1, 1), LDS_TOTAL)])

if __name__ == '__main__':
    o = dict(x.split('=') for x in sys.argv[2:])
    cfg = {k: (int(v) if v.lstrip('-').isdigit() else v.replace('_', ' ')) for k, v in o.items()}
    make(sys.argv[1], **cfg)
```
